```python
import torch

def _softmax(x, axis=-1):
    return torch.softmax(x, dim=axis)
def _gelu(x):
    return torch.nn.functional.gelu(x, approximate="tanh")
def _silu(x):
    return torch.nn.functional.silu(x)
def _sigmoid(x):
    return torch.sigmoid(x)
def _layernorm(x, axis=-1, eps=1e-5):
    m = x.mean(dim=axis, keepdim=True)
    v = x.var(dim=axis, keepdim=True, unbiased=False)
    return (x - m) / torch.sqrt(v + eps)
def _scatter_add(tgt, idx, src, axis=0):
    return tgt.clone().index_add_(axis, idx, src)
def _segment_sum(src, seg, n):
    out = torch.zeros((n,) + src.shape[1:], dtype=src.dtype)
    return out.index_add_(0, seg, src)
def _pad(x, pw):
    flat = tuple(v for pair in reversed(pw) for v in pair)
    return torch.nn.functional.pad(x, flat)

kernel_name = 'standalone__paged_block_table_kv_radixattention__decode'

def setup_inputs():

    _w = (lambda a: (lambda t: t.to(torch.bfloat16) if t.is_floating_point() else t)(torch.as_tensor(a)))
    B, H, Hkv, Dh = 4, 32, 8, 128
    Lk = 8192
    bs = 16
    nb = max(2, Lk // bs)
    P = max(1, nb // 2)
    n_phys = P + B * (nb - P)
    shared = torch.arange(P, dtype=torch.int64)
    priv = P + torch.arange(B * (nb - P), dtype=torch.int64).reshape(B, nb - P)
    bt = torch.cat([torch.tile(shared[None, :], (B, 1)), priv], dim=1)
    ctx = nb * bs - (torch.arange(1, B + 1, dtype=torch.int64) * 2654435761) % max(1, (nb * bs - P * bs) // 2)
    return {
        "q": _w((lambda *s: torch.randn(*s, dtype=torch.bfloat16) * 0.8)(B, H, Dh)),
        "k_cache": _w((lambda *s: torch.randn(*s, dtype=torch.bfloat16) * 0.8)(n_phys, bs, Hkv, Dh)),
        "v_cache": _w((lambda *s: torch.randn(*s, dtype=torch.bfloat16) * 0.05)(n_phys, bs, Hkv, Dh)),
        "block_table": _w(bt.to(torch.int64)),
        "ctx_lens": _w(torch.as_tensor(ctx).to(torch.int64)),
    }

def reference(q, k_cache, v_cache, block_table, ctx_lens):
    B, H, Dh = q.shape
    n_phys, bs, Hkv, _ = k_cache.shape
    nb = block_table.shape[1]
    Lk = nb * bs
    rep = H // Hkv
    k = k_cache[block_table].reshape(B, Lk, Hkv, Dh)
    v = v_cache[block_table].reshape(B, Lk, Hkv, Dh)
    k = (lambda x, n, axis: torch.repeat_interleave(x, n, dim=axis))(k, rep, axis=2)
    v = (lambda x, n, axis: torch.repeat_interleave(x, n, dim=axis))(v, rep, axis=2)
    scores = torch.einsum("bhd,bkhd->bhk", q, k) * (Dh ** -0.5)
    pos = torch.arange(Lk)
    valid = pos[None, :] < ctx_lens[:, None]
    scores = torch.where(valid[:, None, :], scores, -1e9)
    p = _softmax(scores, axis=-1)
    return torch.einsum("bhk,bkhd->bhd", p, v)
```

```python
import sys

NAME = "standalone__paged_block_table_kv_radixattention__decode"

class Asm:
    def __init__(self):
        self.lines = []
    def __call__(self, s=""):
        for l in s.split("\n"):
            self.lines.append("    " + l.strip() if l.strip() and not l.strip().endswith(":") else l.strip())
    def label(self, n):
        self.lines.append(n + ":")
    def c(self, s):
        self.lines.append("    ; " + s)
    def text(self):
        return "\n".join(self.lines) + "\n"

def gen(opts):
    a = Asm()
    KPOL = opts.get("kpol", "")
    VPOL = opts.get("vpol", "")
    STAMP = opts.get("stamp", False)

    TBL = 0
    PC = 8192
    MX = 8448
    LS = 8960
    OB = 9472
    BSTR = 2112
    SSTR = 4 * BSTR
    LDS_BYTES = OB + 8 * SSTR

    vTid, vLane, vG, vN, vKoff, vVoff, vLim, vM, vL, vMXa = range(10)
    vMask = 10
    vT = 14
    vKa = 20
    vVa = 24
    vS = 28
    vP = 44
    vPv = 52
    vQ = 68
    vAcc = 84
    vK = 116
    vV = 180
    vX = 244
    NVGPR = 256

    sK, sV, sQ, sWS, sOUT, sDBG = 20, 24, 28, 36, 40, 44
    sN = 48
    sNB = 52
    sKvh, sI, sWv, sU = 56, 57, 58, 59
    sS, sSh = 60, 61
    sBase = 62
    sCol0, sColEnd, sBsel, sShared = 67, 68, 69, 70
    sRnd, sR = 71, 72
    sC, sSelLo, sSelHi, s4096 = 73, 74, 75, 76
    sCm = 78
    sT = 94
    sStamp = 32

    KV_BYTES = 1280 * 32768

    def stamp(idx):
        if not STAMP:
            return
        a(f"s_memrealtime s[{sStamp}:{sStamp+1}]")
        a("s_waitcnt lgkmcnt(0)")
        a(f"v_mov_b32 v{vX+8}, s{sStamp}")
        a(f"v_mov_b32 v{vX+9}, s{sStamp+1}")
        a(f"s_lshl_b32 s{sStamp+2}, s2, 3")
        a(f"s_add_u32 s{sStamp+2}, s{sStamp+2}, s{sWv}")
        a(f"s_lshl_b32 s{sStamp+2}, s{sStamp+2}, 7")
        a(f"s_add_u32 s{sStamp+2}, s{sStamp+2}, {(16<<20) + idx*8}")
        a(f"v_mov_b32 v{vX+10}, s{sStamp+2}")
        a("s_mov_b64 s[34:35], exec")
        a("s_mov_b64 exec, 1")
        a(f"buffer_store_dwordx2 v[{vX+8}:{vX+9}], v{vX+10}, s[{sWS}:{sWS+3}], 0 offen")
        a("s_mov_b64 exec, s[34:35]")

    a.label(f"{NAME}_kernel")
    a("s_cmp_ge_u32 s2, 256")
    a("s_cbranch_scc1 L_end")
    if STAMP:
        a("s_memrealtime s[100:101]")
    a("s_load_dwordx16 s[4:19], s[0:1], 0")
    a(f"s_and_b32 s{sKvh}, s2, 7")
    a(f"s_lshr_b32 s{sI}, s2, 3")
    a(f"v_and_b32 v{vLane}, 63, v0")
    a(f"v_lshrrev_b32 v{vT}, 6, v0")
    a(f"v_lshlrev_b32 v{vT+1}, 2, v0")
    a(f"v_readfirstlane_b32 s{sWv}, v{vT}")
    a(f"v_lshrrev_b32 v{vG}, 4, v{vLane}")
    a(f"v_and_b32 v{vN}, 15, v{vLane}")
    a(f"s_lshl_b32 s{sT}, s{sKvh}, 8")
    a(f"v_lshlrev_b32 v{vKoff}, 11, v{vN}")
    a(f"v_lshl_add_u32 v{vKoff}, v{vG}, 4, v{vKoff}")
    a(f"v_add_u32 v{vKoff}, s{sT}, v{vKoff}")
    a(f"v_lshlrev_b32 v{vVoff}, 13, v{vG}")
    a(f"v_lshl_add_u32 v{vVoff}, v{vN}, 4, v{vVoff}")
    a(f"v_add_u32 v{vVoff}, s{sT}, v{vVoff}")
    a(f"s_lshl_b32 s{sU}, s{sI}, 3")
    a(f"s_add_u32 s{sU}, s{sU}, s{sWv}")
    a(f"s_mov_b32 s{sC}, 0x3e0293ee")
    a(f"s_mov_b32 s{sSelLo}, 0x05040100")
    a(f"s_mov_b32 s{sSelHi}, 0x07060302")
    a(f"s_mov_b32 s{s4096}, 4096")
    a("s_waitcnt lgkmcnt(0)")
    a("s_add_u32 s10, s10, 4096")
    a("s_addc_u32 s11, s11, 0")
    a(f"global_load_dword v{vKa}, v{vT+1}, s[10:11] offset:-4096")
    a(f"global_load_dword v{vKa+1}, v{vT+1}, s[10:11] offset:-2048")
    a(f"global_load_dword v{vKa+2}, v{vT+1}, s[10:11]")
    a(f"global_load_dword v{vKa+3}, v{vT+1}, s[10:11] offset:2048")
    a(f"s_load_dwordx4 s[{sN}:{sN+3}], s[12:13], 0")
    def srd(d, p, nbytes):
        a(f"s_mov_b32 s{d}, s{p}")
        a(f"s_and_b32 s{d+1}, s{p+1}, 0xffff")
        a(f"s_mov_b32 s{d+2}, {nbytes}")
        a(f"s_mov_b32 s{d+3}, 0x20000")
    srd(sK, 6, KV_BYTES)
    srd(sV, 8, KV_BYTES)
    srd(sQ, 4, 32768)
    srd(sWS, 18, 1 << 28)
    srd(sOUT, 14, 32768)
    srd(sDBG, 16, 256)
    for r in range(4):
        a(f"v_mov_b32 v{vS+r}, 0")
    a(f"s_mul_i32 s{sT}, s{sWv}, {SSTR}")
    a(f"v_lshlrev_b32 v{vT+2}, 4, v{vLane}")
    a(f"v_add_u32 v{vT+2}, s{sT}, v{vT+2}")
    for b in range(4):
        for h in range(2):
            a(f"ds_write_b128 v{vT+2}, v[{vS}:{vS+3}] offset:{OB + b*BSTR + h*1024}")
    a(f"s_lshl_b32 s{sT}, s{sWv}, 2")
    a(f"v_lshlrev_b32 v{vT+3}, 5, v{vN}")
    a(f"v_add_u32 v{vT+3}, s{sT}, v{vT+3}")
    a(f"v_mov_b32 v{vM}, 0xf149f2ca")
    a(f"v_mov_b32 v{vL}, 0")
    a(f"ds_write_b32 v{vT+3}, v{vM} offset:{MX}")
    a(f"ds_write_b32 v{vT+3}, v{vL} offset:{LS}")
    for r in range(32):
        a(f"v_mov_b32 v{vAcc+r}, 0")
    a(f"v_bfe_u32 v{vT+4}, v{vLane}, 2, 2")
    for v in range(4):
        a(f"v_cmp_eq_u32 s[{sCm+2*v}:{sCm+2*v+1}], {v}, v{vT+4}")
    a("s_nop 1")
    for v in range(4):
        a(f"v_cndmask_b32 v{vMask+v}, 0, -1, s[{sCm+2*v}:{sCm+2*v+1}]")
    a("s_waitcnt lgkmcnt(0)")
    a(f"s_mov_b32 s{sT+1}, 0")
    for b in range(4):
        a(f"s_min_i32 s{sT}, s{sN+b}, 0x2000")
        a(f"s_cmp_lt_i32 s{sN+b}, 1")
        a(f"s_cselect_b32 s{sN+b}, 0x2000, s{sT}")
        a(f"s_cselect_b32 s{sT}, {1<<b}, 0")
        a(f"s_or_b32 s{sT+1}, s{sT+1}, s{sT}")
        a(f"s_add_u32 s{sNB+b}, s{sN+b}, 15")
        a(f"s_lshr_b32 s{sNB+b}, s{sNB+b}, 4")
    a(f"s_max_u32 s{sT+2}, s{sNB}, s{sNB+1}")
    a(f"s_max_u32 s{sT+2}, s{sT+2}, s{sNB+2}")
    a(f"s_max_u32 s{sT+2}, s{sT+2}, s{sNB+3}")
    a("s_waitcnt vmcnt(0)")
    for b in range(4):
        a(f"ds_write_b32 v{vT+1}, v{vKa+b} offset:{TBL + b*2048}")
    for b in range(1, 4):
        a(f"v_cmp_ne_u32 s[{sCm+2*b}:{sCm+2*b+1}], v{vKa}, v{vKa+b}")
    a("s_nop 1")
    a(f"s_or_b64 s[{sCm}:{sCm+1}], s[{sCm+2}:{sCm+3}], s[{sCm+4}:{sCm+5}]")
    a(f"s_or_b64 s[{sCm}:{sCm+1}], s[{sCm}:{sCm+1}], s[{sCm+6}:{sCm+7}]")
    a(f"s_ff1_i32_b64 s3, s[{sCm}:{sCm+1}]")
    a(f"s_lshl_b32 s{sT}, s{sWv}, 6")
    a(f"s_add_u32 s{sT}, s{sT}, s3")
    a("s_cmp_lt_i32 s3, 0")
    a(f"s_cselect_b32 s3, 0x200, s{sT}")
    a(f"s_lshl_b32 s{sT}, s{sWv}, 2")
    a(f"v_mov_b32 v{vT+2}, s3")
    a(f"v_mov_b32 v{vT+3}, s{sT}")
    a(f"v_mov_b32 v{vT+4}, 0")
    a(f"ds_write_b32 v{vT+3}, v{vT+2} offset:{PC}")
    a("s_waitcnt lgkmcnt(0)")
    a("s_barrier")
    a(f"ds_read_b128 v[{vKa}:{vKa+3}], v{vT+4} offset:{PC}")
    a(f"ds_read_b128 v[{vVa}:{vVa+3}], v{vT+4} offset:{PC+16}")
    a("s_waitcnt lgkmcnt(0)")
    a(f"v_min3_u32 v{vKa}, v{vKa}, v{vKa+1}, v{vKa+2}")
    a(f"v_min3_u32 v{vVa}, v{vVa}, v{vVa+1}, v{vVa+2}")
    a(f"v_min3_u32 v{vKa}, v{vKa}, v{vKa+3}, v{vVa+3}")
    a(f"v_min_u32 v{vKa}, v{vKa}, v{vVa}")
    a("s_nop 0")
    a(f"v_readfirstlane_b32 s{sS}, v{vKa}")
    a("s_nop 0")
    a(f"s_min_u32 s{sS}, s{sS}, s{sT+2}")
    for b in range(4):
        a(f"s_sub_i32 s{sCm+b}, s{sNB+b}, s{sS}")
        a(f"s_max_i32 s{sCm+b}, s{sCm+b}, 0")
    a(f"s_mov_b32 s{sSh}, 1")
    a.label("L_part")
    a(f"s_add_u32 s{sSh}, s{sSh}, 1")
    a(f"s_bfm_b32 s{sT}, s{sSh}, 0")
    a(f"s_add_u32 s{sBase}, s{sS}, s{sT}")
    a(f"s_lshr_b32 s{sBase}, s{sBase}, s{sSh}")
    for b in range(4):
        a(f"s_add_u32 s3, s{sCm+b}, s{sT}")
        a(f"s_lshr_b32 s3, s3, s{sSh}")
        a(f"s_add_u32 s{sBase+b+1}, s{sBase+b}, s3")
    a(f"s_cmp_gt_u32 s{sBase+4}, 0x100")
    a("s_cbranch_scc1 L_part")
    a(f"s_mov_b32 s{sT}, 0")
    a(f"s_mov_b32 s{sT+3}, 0")
    a(f"s_mov_b32 s{sColEnd}, s{sS}")
    a(f"s_mov_b32 s{sBsel}, 0")
    a(f"s_mov_b32 s{sShared}, 1")
    for b in range(4):
        a(f"s_cmp_ge_u32 s{sU}, s{sBase+b}")
        a(f"s_cselect_b32 s{sT}, s{sBase+b}, s{sT}")
        a(f"s_cselect_b32 s{sColEnd}, s{sNB+b}, s{sColEnd}")
        a(f"s_cselect_b32 s{sBsel}, {b}, s{sBsel}")
        if b == 0:
            a(f"s_cselect_b32 s{sShared}, 0, 1")
            a(f"s_cselect_b32 s{sT+3}, s{sS}, 0")
    a(f"s_sub_u32 s{sCol0}, s{sU}, s{sT}")
    a(f"s_lshl_b32 s{sCol0}, s{sCol0}, s{sSh}")
    a(f"s_add_u32 s{sCol0}, s{sCol0}, s{sT+3}")
    a(f"s_sub_u32 s{sR}, s{sSh}, 2")
    a(f"s_lshl_b32 s{sR}, 1, s{sR}")
    a(f"s_mov_b32 s{sRnd}, 0")
    a(f"v_lshrrev_b32 v{vT}, 2, v{vN}")
    a(f"v_mov_b32 v{vT+1}, s{sBsel}")
    a(f"s_cmp_eq_u32 s{sShared}, 1")
    a(f"s_cselect_b64 vcc, -1, 0")
    a(f"v_cndmask_b32 v{vT}, v{vT+1}, v{vT}, vcc")
    a(f"v_and_b32 v{vT+1}, 3, v{vN}")
    a(f"v_lshl_add_u32 v{vMXa}, v{vT}, 2, v{vT+1}")
    a(f"v_lshlrev_b32 v{vMXa}, 5, v{vMXa}")
    a(f"v_lshlrev_b32 v{vT+2}, 13, v{vT}")
    a(f"v_lshl_add_u32 v{vT+2}, v{vT+1}, 8, v{vT+2}")
    a(f"v_lshl_add_u32 v{vT+2}, v{vG}, 4, v{vT+2}")
    a(f"s_lshl_b32 s{sT}, s{sKvh}, 10")
    a(f"v_add_u32 v{vT+2}, s{sT}, v{vT+2}")
    a(f"v_lshrrev_b32 v{vT+3}, v{vT}, s{sT+1}")
    a(f"v_lshlrev_b32 v{vT+3}, 31, v{vT+3}")
    a(f"v_or_b32 v{vT+2}, v{vT+2}, v{vT+3}")
    for j in range(4):
        a(f"buffer_load_dwordx4 v[{vQ+4*j}:{vQ+4*j+3}], v{vT+2}, s[{sQ}:{sQ+3}], 0 offen offset:{64*j}")
    a(f"v_mov_b32 v{vLim}, s{sN}")
    for b in range(1, 4):
        a(f"v_cmp_eq_u32 vcc, {b}, v{vT}")
        a(f"v_mov_b32 v{vT+3}, s{sN+b}")
        a("s_nop 0")
        a(f"v_cndmask_b32 v{vLim}, v{vLim}, v{vT+3}, vcc")
    a(f"s_lshl_b32 s{sT}, s{sColEnd}, 4")
    a(f"v_min_u32 v{vLim}, s{sT}, v{vLim}")
    a(f"s_lshl_b32 s{sT}, s{sCol0}, 4")
    a(f"v_subrev_u32 v{vLim}, s{sT}, v{vLim}")
    a(f"v_lshlrev_b32 v{vT+3}, 2, v{vG}")
    a(f"v_sub_u32 v{vLim}, v{vLim}, v{vT+3}")

    a.label("L_round")
    a(f"s_lshl_b32 s{sT}, s{sBsel}, 9")
    a(f"s_add_u32 s{sT}, s{sT}, s{sCol0}")
    a(f"s_lshl_b32 s{sT}, s{sT}, 2")
    a(f"v_mov_b32 v{vT}, s{sT}")
    a(f"ds_read2_b32 v[{vVa}:{vVa+1}], v{vT} offset0:0 offset1:1")
    a(f"ds_read2_b32 v[{vVa+2}:{vVa+3}], v{vT} offset0:2 offset1:3")
    for k in range(4):
        a(f"s_add_u32 s3, s{sCol0}, {k}")
        a(f"s_cmp_lt_u32 s3, s{sColEnd}")
        a(f"s_cselect_b32 s{sCm+k}, 0, 0x80000000")
    a("s_waitcnt lgkmcnt(0)")
    for k in range(4):
        a(f"v_lshlrev_b32 v{vVa+k}, 15, v{vVa+k}")
        a(f"v_or_b32 v{vVa+k}, s{sCm+k}, v{vVa+k}")
        a(f"v_add_u32 v{vKa+k}, v{vVa+k}, v{vKoff}")
        for j in range(4):
            r = vK + 16 * k + 4 * j
            a(f"buffer_load_dwordx4 v[{r}:{r+3}], v{vKa+k}, s[{sK}:{sK+3}], 0 offen offset:{64*j} {KPOL}")
    for k in range(4):
        a(f"v_add_u32 v{vVa+k}, v{vVa+k}, v{vVoff}")
        for i in range(4):
            r = vV + 16 * k + 4 * i
            so = "0" if i < 2 else f"s{s4096}"
            a(f"buffer_load_dwordx4 v[{r}:{r+3}], v{vVa+k}, s[{sV}:{sV+3}], {so} offen offset:{2048*(i&1)} {VPOL}")
    stamp(1)
    nst = 1 if STAMP else 0
    for k in range(4):
        a(f"s_waitcnt vmcnt({16 + 4*(3-k) + nst})")
        for j in range(4):
            r = vK + 16 * k + 4 * j
            c = "0" if j == 0 else f"v[{vS+4*k}:{vS+4*k+3}]"
            a(f"v_mfma_f32_16x16x32_bf16 v[{vS+4*k}:{vS+4*k+3}], v[{r}:{r+3}], v[{vQ+4*j}:{vQ+4*j+3}], {c}")
    a(f"v_mov_b32 v{vT}, 0xff800000")
    for half in range(2):
        for e in range(8):
            idx = half * 8 + e
            k, rr = idx >> 2, idx & 3
            a(f"v_cmp_lt_i32 s[{sCm+2*e}:{sCm+2*e+1}], {16*k+rr}, v{vLim}")
        if half == 0:
            a("s_nop 1")
        for e in range(8):
            idx = half * 8 + e
            a(f"v_cndmask_b32 v{vS+idx}, v{vT}, v{vS+idx}, s[{sCm+2*e}:{sCm+2*e+1}]")
    a(f"v_max3_f32 v{vT}, v{vS}, v{vS+1}, v{vS+2}")
    a(f"v_max3_f32 v{vT+1}, v{vS+3}, v{vS+4}, v{vS+5}")
    a(f"v_max3_f32 v{vT}, v{vT}, v{vS+6}, v{vS+7}")
    a(f"v_max3_f32 v{vT+1}, v{vT+1}, v{vS+8}, v{vS+9}")
    a(f"v_max3_f32 v{vT}, v{vT}, v{vS+10}, v{vS+11}")
    a(f"v_max3_f32 v{vT+1}, v{vT+1}, v{vS+12}, v{vS+13}")
    a(f"v_max3_f32 v{vT}, v{vT}, v{vS+14}, v{vS+15}")
    a(f"v_max_f32 v{vT}, v{vT}, v{vT+1}")
    a(f"v_mul_f32 v{vT}, s{sC}, v{vT}")
    a(f"v_max_f32 v{vT}, v{vT}, v{vM}")
    a(f"v_mov_b32 v{vT+1}, v{vT}")
    a("s_nop 1")
    a(f"v_permlane32_swap_b32 v{vT}, v{vT+1}")
    a("s_nop 1")
    a(f"v_max_f32 v{vT}, v{vT}, v{vT+1}")
    a(f"v_mov_b32 v{vT+1}, v{vT}")
    a("s_nop 1")
    a(f"v_permlane16_swap_b32 v{vT}, v{vT+1}")
    a("s_nop 1")
    a(f"v_max_f32 v{vT}, v{vT}, v{vT+1}")
    a(f"s_lshl_b32 s{sT}, s{sWv}, 2")
    a(f"v_add_u32 v{vT+1}, s{sT}, v{vMXa}")
    a(f"ds_write_b32 v{vT+1}, v{vT} offset:{MX}")
    a("s_waitcnt lgkmcnt(0)")
    a("s_barrier")
    a(f"ds_read_b128 v[{vPv}:{vPv+3}], v{vMXa} offset:{MX}")
    a(f"ds_read_b128 v[{vPv+4}:{vPv+7}], v{vMXa} offset:{MX+16}")
    a("s_waitcnt lgkmcnt(0)")
    a(f"v_max3_f32 v{vT}, v{vPv}, v{vPv+1}, v{vPv+2}")
    a(f"v_max3_f32 v{vT+1}, v{vPv+3}, v{vPv+4}, v{vPv+5}")
    a(f"v_max3_f32 v{vT}, v{vT}, v{vPv+6}, v{vPv+7}")
    a(f"v_max_f32 v{vT}, v{vT}, v{vT+1}")
    a(f"v_sub_f32 v{vT+1}, v{vM}, v{vT}")
    a(f"v_exp_f32 v{vT+1}, v{vT+1}")
    a(f"v_mov_b32 v{vM}, v{vT}")
    for e in range(16):
        a(f"v_fma_f32 v{vS+e}, v{vS+e}, s{sC}, -v{vM}")
    for e in range(16):
        a(f"v_exp_f32 v{vS+e}, v{vS+e}")
    a(f"v_mul_f32 v{vL}, v{vL}, v{vT+1}")
    for r in range(32):
        a(f"v_mul_f32 v{vAcc+r}, v{vAcc+r}, v{vT+1}")
    for e in range(8):
        a(f"v_cvt_pk_bf16_f32 v{vP+e}, v{vS+2*e}, v{vS+2*e+1}")
    for e in range(0, 16, 2):
        a(f"v_add_f32 v{vS+e}, v{vS+e}, v{vS+e+1}")
    for e in range(0, 16, 4):
        a(f"v_add_f32 v{vS+e}, v{vS+e}, v{vS+e+2}")
    a(f"v_add_f32 v{vS}, v{vS}, v{vS+4}")
    a(f"v_add_f32 v{vS+8}, v{vS+8}, v{vS+12}")
    a(f"v_add_f32 v{vS}, v{vS}, v{vS+8}")
    a(f"v_add_f32 v{vL}, v{vL}, v{vS}")
    stamp(2)
    nst2 = 2 if STAMP else 0

    def pv(shared):
        for t in range(2):
            vt = vK + 32 * t
            if not shared:
                for v in range(4):
                    for p in range(4):
                        a(f"v_and_b32 v{vPv+4*v+p}, v{vP+4*t+p}, v{vMask+v}")
            for p in range(4):
                remaining = 16 - (8 * t + 2 * p + 2)
                a(f"s_waitcnt vmcnt({remaining + nst2})")
                r0 = vV + 32 * t + 8 * p
                r1 = r0 + 4
                for w in range(4):
                    a(f"v_perm_b32 v{vt + 4*(2*w) + p}, v{r1+w}, v{r0+w}, s{sSelLo}")
                    a(f"v_perm_b32 v{vt + 4*(2*w+1) + p}, v{r1+w}, v{r0+w}, s{sSelHi}")
            a("s_nop 0")
            for j in range(8):
                A = f"v[{vt+4*j}:{vt+4*j+3}]"
                if shared:
                    D = f"v[{vAcc+4*j}:{vAcc+4*j+3}]"
                    B = f"v[{vP+4*t}:{vP+4*t+3}]"
                else:
                    D = f"v[{vAcc+4*(j>>2)}:{vAcc+4*(j>>2)+3}]"
                    B = f"v[{vPv+4*(j&3)}:{vPv+4*(j&3)+3}]"
                a(f"v_mfma_f32_16x16x32_bf16 {D}, {A}, {B}, {D}")

    a(f"s_cmp_eq_u32 s{sShared}, 1")
    a("s_cbranch_scc1 L_pv_shared")
    pv(False)
    a("s_branch L_pv_done")
    a.label("L_pv_shared")
    pv(True)
    a.label("L_pv_done")
    a(f"s_add_u32 s{sRnd}, s{sRnd}, 1")
    a(f"s_add_u32 s{sCol0}, s{sCol0}, 4")
    a(f"v_subrev_u32 v{vLim}, 64, v{vLim}")
    a(f"s_cmp_lt_u32 s{sRnd}, s{sR}")
    a("s_nop 7")
    a("s_cbranch_scc1 L_round")
    stamp(3)

    a(f"v_mov_b32 v{vT+1}, v{vL}")
    a("s_nop 1")
    a(f"v_permlane32_swap_b32 v{vL}, v{vT+1}")
    a("s_nop 1")
    a(f"v_add_f32 v{vL}, v{vL}, v{vT+1}")
    a(f"v_mov_b32 v{vT+1}, v{vL}")
    a("s_nop 1")
    a(f"v_permlane16_swap_b32 v{vL}, v{vT+1}")
    a("s_nop 1")
    a(f"v_add_f32 v{vL}, v{vL}, v{vT+1}")
    a(f"s_lshl_b32 s{sT}, s{sWv}, 2")
    a(f"v_add_u32 v{vT+1}, s{sT}, v{vMXa}")
    a(f"ds_write_b32 v{vT+1}, v{vL} offset:{LS}")
    a(f"s_mul_i32 s{sT}, s{sWv}, {SSTR}")
    a(f"v_lshlrev_b32 v{vT+2}, 9, v{vG}")
    a(f"v_add_u32 v{vT+2}, s{sT}, v{vT+2}")
    a(f"s_cmp_eq_u32 s{sShared}, 1")
    a("s_cbranch_scc1 L_ow_shared")
    a(f"s_mul_i32 s{sT}, s{sBsel}, {BSTR}")
    a(f"v_lshl_add_u32 v{vT+2}, v{vN}, 4, v{vT+2}")
    a(f"v_add_u32 v{vT+2}, s{sT}, v{vT+2}")
    for jj in range(2):
        a(f"ds_write_b128 v{vT+2}, v[{vAcc+4*jj}:{vAcc+4*jj+3}] offset:{OB + jj*256}")
    a("s_branch L_ow_done")
    a.label("L_ow_shared")
    a(f"v_lshrrev_b32 v{vT+3}, 2, v{vN}")
    a(f"v_mul_u32_u24 v{vT+3}, {BSTR}, v{vT+3}")
    a(f"v_and_b32 v{vT+4}, 3, v{vN}")
    a(f"v_lshlrev_b32 v{vT+4}, 4, v{vT+4}")
    a(f"v_add3_u32 v{vT+2}, v{vT+2}, v{vT+3}, v{vT+4}")
    for j in range(8):
        a(f"ds_write_b128 v{vT+2}, v[{vAcc+4*j}:{vAcc+4*j+3}] offset:{OB + j*64}")
    a.label("L_ow_done")
    sB, sHalf, sMaskC, sCnt = sBsel, sShared, sCol0, sColEnd
    a(f"s_lshr_b32 s{sB}, s{sWv}, 1")
    a(f"s_and_b32 s{sHalf}, s{sWv}, 1")
    a(f"s_add_u32 s{sT}, s{sBase}, 7")
    a(f"s_lshr_b32 s{sT}, s{sT}, 3")
    a(f"s_bfm_b64 s[{sCm}:{sCm+1}], s{sT}, 0")
    a(f"s_mov_b32 s{sT+2}, s{sBase}")
    a(f"s_mov_b32 s{sT+3}, s{sBase+1}")
    for b in range(1, 4):
        a(f"s_cmp_eq_u32 s{sB}, {b}")
        a(f"s_cselect_b32 s{sT+2}, s{sBase+b}, s{sT+2}")
        a(f"s_cselect_b32 s{sT+3}, s{sBase+b+1}, s{sT+3}")
    a(f"s_cmp_eq_u32 s{sT+2}, s{sT+3}")
    a(f"s_cselect_b32 s{sT+4}, 0, -1")
    a(f"s_lshr_b32 s{sT+2}, s{sT+2}, 3")
    a(f"s_add_u32 s{sT+3}, s{sT+3}, 7")
    a(f"s_lshr_b32 s{sT+3}, s{sT+3}, 3")
    a(f"s_sub_u32 s{sT+3}, s{sT+3}, s{sT+2}")
    a(f"s_bfm_b64 s[{sCm+2}:{sCm+3}], s{sT+3}, s{sT+2}")
    a(f"s_and_b32 s{sCm+2}, s{sCm+2}, s{sT+4}")
    a(f"s_or_b32 s{sMaskC}, s{sCm}, s{sCm+2}")
    a(f"s_bcnt1_i32_b32 s{sCnt}, s{sMaskC}")
    a(f"s_mul_i32 s{sT}, s{sB}, {BSTR}")
    a(f"s_lshl_b32 s{sT+1}, s{sHalf}, 10")
    a(f"s_add_u32 s{sT}, s{sT}, s{sT+1}")
    a(f"s_add_u32 s{sT}, s{sT}, {OB}")
    a(f"v_lshlrev_b32 v{vT}, 4, v{vLane}")
    a(f"v_add_u32 v{vT+1}, s{sT}, v{vT}")
    a(f"v_and_b32 v{vT+2}, 3, v{vLane}")
    a(f"s_lshl_b32 s{sT}, s{sB}, 7")
    a(f"v_lshlrev_b32 v{vT+3}, 5, v{vT+2}")
    a(f"v_add_u32 v{vT+3}, s{sT}, v{vT+3}")
    a("s_waitcnt lgkmcnt(0)")
    a("s_barrier")
    a(f"s_bitcmp1_b32 s{sMaskC}, s{sI}")
    a("s_cbranch_scc0 L_end")
    R0 = vK
    for w in range(8):
        a(f"ds_read_b128 v[{R0+4*w}:{R0+4*w+3}], v{vT+1} offset:{w*SSTR}")
    a(f"ds_read_b128 v[{vS}:{vS+3}], v{vT+3} offset:{LS}")
    a(f"ds_read_b128 v[{vS+4}:{vS+7}], v{vT+3} offset:{LS+16}")
    a(f"ds_read_b128 v[{vS+8}:{vS+11}], v{vT+3} offset:{MX}")
    a(f"ds_read_b128 v[{vS+12}:{vS+15}], v{vT+3} offset:{MX+16}")
    sGrp = sRnd
    a(f"s_lshl_b32 s{sGrp}, s{sKvh}, 3")
    a(f"s_add_u32 s{sGrp}, s{sGrp}, s{sWv}")
    a(f"s_lshl_b32 s{sT}, s{sGrp}, 15")
    a(f"v_add_u32 v{vKa}, s{sT}, v{vT}")
    a(f"s_lshl_b32 s{sT}, s{sGrp}, 10")
    a(f"s_add_u32 s{sT}, s{sT}, {4<<20}")
    a(f"v_lshlrev_b32 v{vKa+1}, 3, v{vT+2}")
    a(f"v_add_u32 v{vKa+1}, s{sT}, v{vKa+1}")
    a(f"s_lshl_b32 s{sT+1}, s{sI}, 10")
    a(f"s_lshl_b32 s{sT+2}, s{sI}, 5")
    a(f"s_lshl_b32 s{sT}, s{sGrp}, 2")
    a(f"v_mov_b32 v{vKa+2}, s{sT}")
    a(f"v_mov_b32 v{vKa+3}, 1")
    a("s_waitcnt lgkmcnt(4)")
    for st in (4, 2, 1):
        for w in range(st):
            for r in range(4):
                a(f"v_add_f32 v{R0+4*w+r}, v{R0+4*w+r}, v{R0+4*(w+st)+r}")
    a(f"buffer_store_dwordx4 v[{R0}:{R0+3}], v{vKa}, s[{sWS}:{sWS+3}], s{sT+1} offen sc1")
    a("s_waitcnt lgkmcnt(0)")
    a(f"v_max3_f32 v{vP}, v{vS+8}, v{vS+9}, v{vS+10}")
    a(f"v_max3_f32 v{vP+2}, v{vS+11}, v{vS+12}, v{vS+13}")
    a(f"v_max3_f32 v{vP}, v{vP}, v{vS+14}, v{vS+15}")
    a(f"v_max_f32 v{vP}, v{vP}, v{vP+2}")
    for st in (4, 2, 1):
        for w in range(st):
            a(f"v_add_f32 v{vS+w}, v{vS+w}, v{vS+w+st}")
    a(f"v_mov_b32 v{vP+1}, v{vS}")
    a("s_mov_b64 exec, 15")
    a(f"buffer_store_dwordx2 v[{vP}:{vP+1}], v{vKa+1}, s[{sWS}:{sWS+3}], s{sT+2} offen sc1")
    a("s_waitcnt vmcnt(0)")
    a("s_mov_b64 exec, 1")
    a(f"buffer_atomic_add v{vKa+3}, v{vKa+2}, s[{sDBG}:{sDBG+3}], 0 offen sc0")
    a("s_waitcnt vmcnt(0)")
    a("s_mov_b64 exec, -1")
    a(f"v_readfirstlane_b32 s{sT}, v{vKa+3}")
    a("s_nop 0")
    a(f"s_add_u32 s{sT}, s{sT}, 1")
    stamp(4)
    a(f"s_cmp_eq_u32 s{sT}, s{sCnt}")
    a("s_cbranch_scc0 L_end")
    FO = 48
    FM = 176
    for i in range(32):
        a(f"v_mov_b32 v{FM+2*i}, 0xf149f2ca")
        a(f"v_mov_b32 v{FM+2*i+1}, 0")
        for r in range(4):
            a(f"v_mov_b32 v{FO+4*i+r}, 0")
    for i in range(32):
        a(f"s_bitcmp1_b32 s{sMaskC}, {i}")
        a(f"s_cbranch_scc0 L_skip{i}")
        a(f"s_movk_i32 s{sT}, {(i>>2)*4096}")
        a(f"buffer_load_dwordx4 v[{FO+4*i}:{FO+4*i+3}], v{vKa}, s[{sWS}:{sWS+3}], s{sT} offen offset:{(i&3)*1024} sc1")
        a(f"buffer_load_dwordx2 v[{FM+2*i}:{FM+2*i+1}], v{vKa+1}, s[{sWS}:{sWS+3}], 0 offen offset:{i*32} sc1")
        a.label(f"L_skip{i}")
    a("s_waitcnt vmcnt(0)")
    a(f"v_max3_f32 v{vT}, v{FM}, v{FM+2}, v{FM+4}")
    for i in range(3, 31, 2):
        a(f"v_max3_f32 v{vT}, v{vT}, v{FM+2*i}, v{FM+2*i+2}")
    a(f"v_max_f32 v{vT}, v{vT}, v{FM+62}")
    for i in range(32):
        a(f"v_sub_f32 v{FM+2*i}, v{FM+2*i}, v{vT}")
    for i in range(32):
        a(f"v_exp_f32 v{FM+2*i}, v{FM+2*i}")
    a("s_nop 0")
    a(f"v_mul_f32 v{vT+1}, v{FM}, v{FM+1}")
    for r in range(4):
        a(f"v_mul_f32 v{vS+r}, v{FM}, v{FO+r}")
    for i in range(1, 32):
        a(f"v_fmac_f32 v{vT+1}, v{FM+2*i}, v{FM+2*i+1}")
        for r in range(4):
            a(f"v_fmac_f32 v{vS+r}, v{FM+2*i}, v{FO+4*i+r}")
    a(f"v_rcp_f32 v{vT+1}, v{vT+1}")
    a("s_nop 0")
    for r in range(4):
        a(f"v_mul_f32 v{vS+r}, v{vS+r}, v{vT+1}")
    a(f"v_cvt_pk_bf16_f32 v{vS}, v{vS}, v{vS+1}")
    a(f"v_cvt_pk_bf16_f32 v{vS+2}, v{vS+2}, v{vS+3}")
    a(f"s_lshl_b32 s{sT}, s{sB}, 13")
    a(f"s_lshl_b32 s{sT+1}, s{sKvh}, 10")
    a(f"s_add_u32 s{sT}, s{sT}, s{sT+1}")
    a(f"s_lshl_b32 s{sT+1}, s{sHalf}, 7")
    a(f"s_add_u32 s{sT}, s{sT}, s{sT+1}")
    a(f"v_lshlrev_b32 v{vT+2}, 8, v{vT+2}")
    a(f"v_lshrrev_b32 v{vT+3}, 5, v{vLane}")
    a(f"v_lshl_add_u32 v{vT+2}, v{vT+3}, 6, v{vT+2}")
    a(f"v_bfe_u32 v{vT+3}, v{vLane}, 2, 3")
    a(f"v_lshl_add_u32 v{vT+2}, v{vT+3}, 1, v{vT+2}")
    a(f"v_add_u32 v{vT+2}, s{sT}, v{vT+2}")
    a(f"buffer_store_short v{vS}, v{vT+2}, s[{sOUT}:{sOUT+3}], 0 offen")
    a(f"buffer_store_short_d16_hi v{vS}, v{vT+2}, s[{sOUT}:{sOUT+3}], 0 offen offset:16")
    a(f"buffer_store_short v{vS+2}, v{vT+2}, s[{sOUT}:{sOUT+3}], 0 offen offset:32")
    a(f"buffer_store_short_d16_hi v{vS+2}, v{vT+2}, s[{sOUT}:{sOUT+3}], 0 offen offset:48")
    if STAMP:
        a("s_waitcnt vmcnt(0)")
        stamp(5)
    a.label("L_end")
    if STAMP:
        a("s_cmp_ge_u32 s2, 256")
        a("s_cbranch_scc1 L_end2")
        a(f"v_mov_b32 v{vX+8}, s100")
        a(f"v_mov_b32 v{vX+9}, s101")
        a(f"s_lshl_b32 s{sStamp+2}, s2, 3")
        a(f"s_add_u32 s{sStamp+2}, s{sStamp+2}, s{sWv}")
        a(f"s_lshl_b32 s{sStamp+2}, s{sStamp+2}, 7")
        a(f"s_add_u32 s{sStamp+2}, s{sStamp+2}, {(16<<20)}")
        a(f"v_mov_b32 v{vX+10}, s{sStamp+2}")
        a("s_mov_b64 exec, 1")
        a(f"buffer_store_dwordx2 v[{vX+8}:{vX+9}], v{vX+10}, s[{sWS}:{sWS+3}], 0 offen")
        stamp(6)
        a.label("L_end2")
    a("s_endpgm")

    head = f"""; Paged (block-table) GQA decode attention, split-KV with shared-prefix de-duplication.
; @launch grid=(256,1,1) block=(512,1,1) lds={LDS_BYTES}
.amdgcn_target "amdgcn-amd-amdhsa--gfx950"
.text
.globl {NAME}_kernel
.p2align 8
.type {NAME}_kernel,@function
"""
    tail = f""".section .rodata,"a"
.p2align 6
.amdhsa_kernel {NAME}_kernel
  .amdhsa_next_free_vgpr {NVGPR}
  .amdhsa_next_free_sgpr 102
  .amdhsa_accum_offset {NVGPR}
  .amdhsa_group_segment_fixed_size 0
  .amdhsa_kernarg_size 64
  .amdhsa_user_sgpr_count 2
  .amdhsa_user_sgpr_kernarg_segment_ptr 1
  .amdhsa_system_sgpr_workgroup_id_x 1
.end_amdhsa_kernel
"""
    return head + a.text() + tail

if __name__ == "__main__":
    opts = {}
    out = sys.argv[1]
    for kv in sys.argv[2:]:
        k, v = kv.split("=", 1)
        if v in ("0", "1"):
            v = bool(int(v))
        opts[k] = v
    open(out, "w").write(gen(opts))
```

```python
import sys

NAME = "standalone__paged_block_table_kv_radixattention__decode"

class Asm:
    def __init__(self):
        self.lines = []
    def __call__(self, s=""):
        for l in s.split("\n"):
            self.lines.append("    " + l.strip() if l.strip() and not l.strip().endswith(":") else l.strip())
    def label(self, n):
        self.lines.append(n + ":")
    def c(self, s):
        self.lines.append("    ; " + s)
    def text(self):
        return "\n".join(self.lines) + "\n"

def gen(opts):
    a = Asm()
    KPOL = opts.get("kpol", "")
    VPOL = opts.get("vpol", "")
    STAMP = opts.get("stamp", False)

    TBL = 0
    PC = 8192
    MX = 8448
    LS = 8960
    OB = 9472
    BSTR = 2112
    SSTR = 4 * BSTR
    LDS_BYTES = OB + 8 * SSTR

    vTid, vLane, vG, vN, vKoff, vVoff, vLim, vM, vL, vMXa = range(10)
    vMask = 10
    vT = 14
    vKa = 20
    vVa = 24
    vS = 28
    vP = 44
    vPv = 52
    vQ = 68
    vAcc = 84
    vK = 116
    vV = 180
    vX = 244
    NVGPR = 256

    sK, sV, sQ, sWS, sOUT, sDBG = 20, 24, 28, 36, 40, 44
    sN = 48
    sNB = 52
    sKvh, sI, sWv, sU = 56, 57, 58, 59
    sS, sSh = 60, 61
    sBase = 62
    sCol0, sColEnd, sBsel, sShared = 67, 68, 69, 70
    sRnd, sR = 71, 72
    sC, sSelLo, sSelHi, s4096 = 73, 74, 75, 76
    sCm = 78
    sT = 94
    sStamp = 32

    KV_BYTES = 1280 * 32768

    def stamp(idx):
        if not STAMP:
            return
        a(f"s_memrealtime s[{sStamp}:{sStamp+1}]")
        a("s_waitcnt lgkmcnt(0)")
        a(f"v_mov_b32 v{vX+8}, s{sStamp}")
        a(f"v_mov_b32 v{vX+9}, s{sStamp+1}")
        a(f"s_lshl_b32 s{sStamp+2}, s2, 3")
        a(f"s_add_u32 s{sStamp+2}, s{sStamp+2}, s{sWv}")
        a(f"s_lshl_b32 s{sStamp+2}, s{sStamp+2}, 7")
        a(f"s_add_u32 s{sStamp+2}, s{sStamp+2}, {(16<<20) + idx*8}")
        a(f"v_mov_b32 v{vX+10}, s{sStamp+2}")
        a("s_mov_b64 s[34:35], exec")
        a("s_mov_b64 exec, 1")
        a(f"buffer_store_dwordx2 v[{vX+8}:{vX+9}], v{vX+10}, s[{sWS}:{sWS+3}], 0 offen")
        a("s_mov_b64 exec, s[34:35]")

    a.label(f"{NAME}_kernel")
    a("s_cmp_ge_u32 s2, 256")
    a("s_cbranch_scc1 L_end")
    if STAMP:
        a("s_memrealtime s[100:101]")
    a("s_load_dwordx16 s[4:19], s[0:1], 0")
    MAP = opts.get("map", "a")
    if MAP == "a":
        a(f"s_and_b32 s{sKvh}, s2, 7")
        a(f"s_lshr_b32 s{sI}, s2, 3")
    elif MAP == "b":
        a(f"s_lshr_b32 s{sKvh}, s2, 5")
        a(f"s_and_b32 s{sI}, s2, 31")
    elif MAP == "c":
        a(f"s_lshr_b32 s{sI}, s2, 3")
        a(f"s_add_u32 s{sKvh}, s2, s{sI}")
        a(f"s_and_b32 s{sKvh}, s{sKvh}, 7")
    elif MAP == "d":
        a(f"s_add_u32 s{sKvh}, s2, 3")
        a(f"s_and_b32 s{sKvh}, s{sKvh}, 7")
        a(f"s_lshr_b32 s{sI}, s2, 3")
    a(f"v_and_b32 v{vLane}, 63, v0")
    a(f"v_lshrrev_b32 v{vT}, 6, v0")
    a(f"v_lshlrev_b32 v{vT+1}, 2, v0")
    a(f"v_readfirstlane_b32 s{sWv}, v{vT}")
    a(f"v_lshrrev_b32 v{vG}, 4, v{vLane}")
    a(f"v_and_b32 v{vN}, 15, v{vLane}")
    a(f"s_lshl_b32 s{sT}, s{sKvh}, 8")
    a(f"v_lshlrev_b32 v{vKoff}, 11, v{vN}")
    a(f"v_lshl_add_u32 v{vKoff}, v{vG}, 4, v{vKoff}")
    a(f"v_add_u32 v{vKoff}, s{sT}, v{vKoff}")
    a(f"v_lshlrev_b32 v{vVoff}, 13, v{vG}")
    a(f"v_lshl_add_u32 v{vVoff}, v{vN}, 4, v{vVoff}")
    a(f"v_add_u32 v{vVoff}, s{sT}, v{vVoff}")
    a(f"s_lshl_b32 s{sU}, s{sI}, 3")
    a(f"s_add_u32 s{sU}, s{sU}, s{sWv}")
    a(f"s_mov_b32 s{sC}, 0x3e0293ee")
    a(f"s_mov_b32 s{sSelLo}, 0x05040100")
    a(f"s_mov_b32 s{sSelHi}, 0x07060302")
    a(f"s_mov_b32 s{s4096}, 4096")
    a("s_waitcnt lgkmcnt(0)")
    if STAMP:
        a("s_memrealtime s[98:99]")
    a("s_add_u32 s10, s10, 4096")
    a("s_addc_u32 s11, s11, 0")
    a(f"global_load_dword v{vKa}, v{vT+1}, s[10:11] offset:-4096")
    a(f"global_load_dword v{vKa+1}, v{vT+1}, s[10:11] offset:-2048")
    a(f"global_load_dword v{vKa+2}, v{vT+1}, s[10:11]")
    a(f"global_load_dword v{vKa+3}, v{vT+1}, s[10:11] offset:2048")
    a(f"s_load_dwordx4 s[{sN}:{sN+3}], s[12:13], 0")
    def srd(d, p, nbytes):
        a(f"s_mov_b32 s{d}, s{p}")
        a(f"s_and_b32 s{d+1}, s{p+1}, 0xffff")
        a(f"s_mov_b32 s{d+2}, {nbytes}")
        a(f"s_mov_b32 s{d+3}, 0x20000")
    srd(sK, 6, KV_BYTES)
    srd(sV, 8, KV_BYTES)
    srd(sQ, 4, 32768)
    srd(sWS, 18, 1 << 28)
    srd(sOUT, 14, 32768)
    srd(sDBG, 16, 256)
    for r in range(4):
        a(f"v_mov_b32 v{vS+r}, 0")
    a(f"s_mul_i32 s{sT}, s{sWv}, {SSTR}")
    a(f"v_lshlrev_b32 v{vT+2}, 4, v{vLane}")
    a(f"v_add_u32 v{vT+2}, s{sT}, v{vT+2}")
    for b in range(4):
        for h in range(2):
            a(f"ds_write_b128 v{vT+2}, v[{vS}:{vS+3}] offset:{OB + b*BSTR + h*1024}")
    a(f"s_lshl_b32 s{sT}, s{sWv}, 2")
    a(f"v_lshlrev_b32 v{vT+3}, 5, v{vN}")
    a(f"v_add_u32 v{vT+3}, s{sT}, v{vT+3}")
    a(f"v_mov_b32 v{vM}, 0xf149f2ca")
    a(f"v_mov_b32 v{vL}, 0")
    a(f"ds_write_b32 v{vT+3}, v{vM} offset:{MX}")
    a(f"ds_write_b32 v{vT+3}, v{vL} offset:{LS}")
    for r in range(32):
        a(f"v_mov_b32 v{vAcc+r}, 0")
    a(f"v_bfe_u32 v{vT+4}, v{vLane}, 2, 2")
    for v in range(4):
        a(f"v_cmp_eq_u32 s[{sCm+2*v}:{sCm+2*v+1}], {v}, v{vT+4}")
    a("s_nop 1")
    for v in range(4):
        a(f"v_cndmask_b32 v{vMask+v}, 0, -1, s[{sCm+2*v}:{sCm+2*v+1}]")
    a("s_waitcnt lgkmcnt(0)")
    a(f"s_mov_b32 s{sT+1}, 0")
    for b in range(4):
        a(f"s_min_i32 s{sT}, s{sN+b}, 0x2000")
        a(f"s_cmp_lt_i32 s{sN+b}, 1")
        a(f"s_cselect_b32 s{sN+b}, 0x2000, s{sT}")
        a(f"s_cselect_b32 s{sT}, {1<<b}, 0")
        a(f"s_or_b32 s{sT+1}, s{sT+1}, s{sT}")
        a(f"s_add_u32 s{sNB+b}, s{sN+b}, 15")
        a(f"s_lshr_b32 s{sNB+b}, s{sNB+b}, 4")
    a(f"s_max_u32 s{sT+2}, s{sNB}, s{sNB+1}")
    a(f"s_max_u32 s{sT+2}, s{sT+2}, s{sNB+2}")
    a(f"s_max_u32 s{sT+2}, s{sT+2}, s{sNB+3}")
    a("s_waitcnt vmcnt(0)")
    if STAMP:
        a(f"v_mov_b32 v{vX+6}, s98")
        a(f"v_mov_b32 v{vX+7}, s99")
    stamp(7)
    for b in range(4):
        a(f"ds_write_b32 v{vT+1}, v{vKa+b} offset:{TBL + b*2048}")
    for b in range(1, 4):
        a(f"v_cmp_ne_u32 s[{sCm+2*b}:{sCm+2*b+1}], v{vKa}, v{vKa+b}")
    a("s_nop 1")
    a(f"s_or_b64 s[{sCm}:{sCm+1}], s[{sCm+2}:{sCm+3}], s[{sCm+4}:{sCm+5}]")
    a(f"s_or_b64 s[{sCm}:{sCm+1}], s[{sCm}:{sCm+1}], s[{sCm+6}:{sCm+7}]")
    a(f"s_ff1_i32_b64 s3, s[{sCm}:{sCm+1}]")
    a(f"s_lshl_b32 s{sT}, s{sWv}, 6")
    a(f"s_add_u32 s{sT}, s{sT}, s3")
    a("s_cmp_lt_i32 s3, 0")
    a(f"s_cselect_b32 s3, 0x200, s{sT}")
    a(f"s_lshl_b32 s{sT}, s{sWv}, 2")
    a(f"v_mov_b32 v{vT+2}, s3")
    a(f"v_mov_b32 v{vT+3}, s{sT}")
    a(f"v_mov_b32 v{vT+4}, 0")
    a(f"ds_write_b32 v{vT+3}, v{vT+2} offset:{PC}")
    a("s_waitcnt lgkmcnt(0)")
    a("s_barrier")
    a(f"ds_read_b128 v[{vKa}:{vKa+3}], v{vT+4} offset:{PC}")
    a(f"ds_read_b128 v[{vVa}:{vVa+3}], v{vT+4} offset:{PC+16}")
    a("s_waitcnt lgkmcnt(0)")
    a(f"v_min3_u32 v{vKa}, v{vKa}, v{vKa+1}, v{vKa+2}")
    a(f"v_min3_u32 v{vVa}, v{vVa}, v{vVa+1}, v{vVa+2}")
    a(f"v_min3_u32 v{vKa}, v{vKa}, v{vKa+3}, v{vVa+3}")
    a(f"v_min_u32 v{vKa}, v{vKa}, v{vVa}")
    a("s_nop 0")
    a(f"v_readfirstlane_b32 s{sS}, v{vKa}")
    a("s_nop 0")
    a(f"s_min_u32 s{sS}, s{sS}, s{sT+2}")
    for b in range(4):
        a(f"s_sub_i32 s{sCm+b}, s{sNB+b}, s{sS}")
        a(f"s_max_i32 s{sCm+b}, s{sCm+b}, 0")
    a(f"s_mov_b32 s{sSh}, 1")
    a.label("L_part")
    a(f"s_add_u32 s{sSh}, s{sSh}, 1")
    a(f"s_bfm_b32 s{sT}, s{sSh}, 0")
    a(f"s_add_u32 s{sBase}, s{sS}, s{sT}")
    a(f"s_lshr_b32 s{sBase}, s{sBase}, s{sSh}")
    for b in range(4):
        a(f"s_add_u32 s3, s{sCm+b}, s{sT}")
        a(f"s_lshr_b32 s3, s3, s{sSh}")
        a(f"s_add_u32 s{sBase+b+1}, s{sBase+b}, s3")
    a(f"s_cmp_gt_u32 s{sBase+4}, 0x100")
    a("s_cbranch_scc1 L_part")
    a(f"s_mov_b32 s{sT}, 0")
    a(f"s_mov_b32 s{sT+3}, 0")
    a(f"s_mov_b32 s{sColEnd}, s{sS}")
    a(f"s_mov_b32 s{sBsel}, 0")
    a(f"s_mov_b32 s{sShared}, 1")
    for b in range(4):
        a(f"s_cmp_ge_u32 s{sU}, s{sBase+b}")
        a(f"s_cselect_b32 s{sT}, s{sBase+b}, s{sT}")
        a(f"s_cselect_b32 s{sColEnd}, s{sNB+b}, s{sColEnd}")
        a(f"s_cselect_b32 s{sBsel}, {b}, s{sBsel}")
        if b == 0:
            a(f"s_cselect_b32 s{sShared}, 0, 1")
            a(f"s_cselect_b32 s{sT+3}, s{sS}, 0")
    a(f"s_sub_u32 s{sCol0}, s{sU}, s{sT}")
    a(f"s_lshl_b32 s{sCol0}, s{sCol0}, s{sSh}")
    a(f"s_add_u32 s{sCol0}, s{sCol0}, s{sT+3}")
    a(f"s_sub_u32 s{sR}, s{sSh}, 2")
    a(f"s_lshl_b32 s{sR}, 1, s{sR}")
    a(f"s_mov_b32 s{sRnd}, 0")
    a(f"v_lshrrev_b32 v{vT}, 2, v{vN}")
    a(f"v_mov_b32 v{vT+1}, s{sBsel}")
    a(f"s_cmp_eq_u32 s{sShared}, 1")
    a(f"s_cselect_b64 vcc, -1, 0")
    a(f"v_cndmask_b32 v{vT}, v{vT+1}, v{vT}, vcc")
    a(f"v_and_b32 v{vT+1}, 3, v{vN}")
    a(f"v_lshl_add_u32 v{vMXa}, v{vT}, 2, v{vT+1}")
    a(f"v_lshlrev_b32 v{vMXa}, 5, v{vMXa}")
    a(f"v_lshlrev_b32 v{vT+2}, 13, v{vT}")
    a(f"v_lshl_add_u32 v{vT+2}, v{vT+1}, 8, v{vT+2}")
    a(f"v_lshl_add_u32 v{vT+2}, v{vG}, 4, v{vT+2}")
    a(f"s_lshl_b32 s{sT}, s{sKvh}, 10")
    a(f"v_add_u32 v{vT+2}, s{sT}, v{vT+2}")
    a(f"v_lshrrev_b32 v{vT+3}, v{vT}, s{sT+1}")
    a(f"v_lshlrev_b32 v{vT+3}, 31, v{vT+3}")
    a(f"v_or_b32 v{vT+2}, v{vT+2}, v{vT+3}")
    for j in range(4):
        a(f"buffer_load_dwordx4 v[{vQ+4*j}:{vQ+4*j+3}], v{vT+2}, s[{sQ}:{sQ+3}], 0 offen offset:{64*j}")
    a(f"v_mov_b32 v{vLim}, s{sN}")
    for b in range(1, 4):
        a(f"v_cmp_eq_u32 vcc, {b}, v{vT}")
        a(f"v_mov_b32 v{vT+3}, s{sN+b}")
        a("s_nop 0")
        a(f"v_cndmask_b32 v{vLim}, v{vLim}, v{vT+3}, vcc")
    a(f"s_lshl_b32 s{sT}, s{sColEnd}, 4")
    a(f"v_min_u32 v{vLim}, s{sT}, v{vLim}")
    a(f"s_lshl_b32 s{sT}, s{sCol0}, 4")
    a(f"v_subrev_u32 v{vLim}, s{sT}, v{vLim}")
    a(f"v_lshlrev_b32 v{vT+3}, 2, v{vG}")
    a(f"v_sub_u32 v{vLim}, v{vLim}, v{vT+3}")

    stamp(8)
    a.label("L_round")
    a(f"s_lshl_b32 s{sT}, s{sBsel}, 9")
    a(f"s_add_u32 s{sT}, s{sT}, s{sCol0}")
    a(f"s_lshl_b32 s{sT}, s{sT}, 2")
    a(f"v_mov_b32 v{vT}, s{sT}")
    a(f"ds_read2_b32 v[{vVa}:{vVa+1}], v{vT} offset0:0 offset1:1")
    a(f"ds_read2_b32 v[{vVa+2}:{vVa+3}], v{vT} offset0:2 offset1:3")
    for k in range(4):
        a(f"s_add_u32 s3, s{sCol0}, {k}")
        a(f"s_cmp_lt_u32 s3, s{sColEnd}")
        a(f"s_cselect_b32 s{sCm+k}, 0, 0x80000000")
    a("s_waitcnt lgkmcnt(0)")
    for k in range(4):
        a(f"v_lshlrev_b32 v{vVa+k}, 15, v{vVa+k}")
        a(f"v_or_b32 v{vVa+k}, s{sCm+k}, v{vVa+k}")
        a(f"v_add_u32 v{vKa+k}, v{vVa+k}, v{vKoff}")
        for j in range(4):
            r = vK + 16 * k + 4 * j
            a(f"buffer_load_dwordx4 v[{r}:{r+3}], v{vKa+k}, s[{sK}:{sK+3}], 0 offen offset:{64*j} {KPOL}")
    for k in range(4):
        a(f"v_add_u32 v{vVa+k}, v{vVa+k}, v{vVoff}")
        for i in range(4):
            r = vV + 16 * k + 4 * i
            so = "0" if i < 2 else f"s{s4096}"
            a(f"buffer_load_dwordx4 v[{r}:{r+3}], v{vVa+k}, s[{sV}:{sV+3}], {so} offen offset:{2048*(i&1)} {VPOL}")
    stamp(1)
    nst = 1 if STAMP else 0
    for k in range(4):
        a(f"s_waitcnt vmcnt({16 + 4*(3-k) + nst})")
        for j in range(4):
            r = vK + 16 * k + 4 * j
            c = "0" if j == 0 else f"v[{vS+4*k}:{vS+4*k+3}]"
            a(f"v_mfma_f32_16x16x32_bf16 v[{vS+4*k}:{vS+4*k+3}], v[{r}:{r+3}], v[{vQ+4*j}:{vQ+4*j+3}], {c}")
    a(f"v_mov_b32 v{vT}, 0xff800000")
    for half in range(2):
        for e in range(8):
            idx = half * 8 + e
            k, rr = idx >> 2, idx & 3
            a(f"v_cmp_lt_i32 s[{sCm+2*e}:{sCm+2*e+1}], {16*k+rr}, v{vLim}")
        if half == 0:
            a("s_nop 1")
        for e in range(8):
            idx = half * 8 + e
            a(f"v_cndmask_b32 v{vS+idx}, v{vT}, v{vS+idx}, s[{sCm+2*e}:{sCm+2*e+1}]")
    a(f"v_max3_f32 v{vT}, v{vS}, v{vS+1}, v{vS+2}")
    a(f"v_max3_f32 v{vT+1}, v{vS+3}, v{vS+4}, v{vS+5}")
    a(f"v_max3_f32 v{vT}, v{vT}, v{vS+6}, v{vS+7}")
    a(f"v_max3_f32 v{vT+1}, v{vT+1}, v{vS+8}, v{vS+9}")
    a(f"v_max3_f32 v{vT}, v{vT}, v{vS+10}, v{vS+11}")
    a(f"v_max3_f32 v{vT+1}, v{vT+1}, v{vS+12}, v{vS+13}")
    a(f"v_max3_f32 v{vT}, v{vT}, v{vS+14}, v{vS+15}")
    a(f"v_max_f32 v{vT}, v{vT}, v{vT+1}")
    a(f"v_mul_f32 v{vT}, s{sC}, v{vT}")
    a(f"v_max_f32 v{vT}, v{vT}, v{vM}")
    a(f"v_mov_b32 v{vT+1}, v{vT}")
    a("s_nop 1")
    a(f"v_permlane32_swap_b32 v{vT}, v{vT+1}")
    a("s_nop 1")
    a(f"v_max_f32 v{vT}, v{vT}, v{vT+1}")
    a(f"v_mov_b32 v{vT+1}, v{vT}")
    a("s_nop 1")
    a(f"v_permlane16_swap_b32 v{vT}, v{vT+1}")
    a("s_nop 1")
    a(f"v_max_f32 v{vT}, v{vT}, v{vT+1}")
    a(f"s_lshl_b32 s{sT}, s{sWv}, 2")
    a(f"v_add_u32 v{vT+1}, s{sT}, v{vMXa}")
    a(f"ds_write_b32 v{vT+1}, v{vT} offset:{MX}")
    a("s_waitcnt lgkmcnt(0)")
    a("s_barrier")
    a(f"ds_read_b128 v[{vPv}:{vPv+3}], v{vMXa} offset:{MX}")
    a(f"ds_read_b128 v[{vPv+4}:{vPv+7}], v{vMXa} offset:{MX+16}")
    a("s_waitcnt lgkmcnt(0)")
    a(f"v_max3_f32 v{vT}, v{vPv}, v{vPv+1}, v{vPv+2}")
    a(f"v_max3_f32 v{vT+1}, v{vPv+3}, v{vPv+4}, v{vPv+5}")
    a(f"v_max3_f32 v{vT}, v{vT}, v{vPv+6}, v{vPv+7}")
    a(f"v_max_f32 v{vT}, v{vT}, v{vT+1}")
    a(f"v_sub_f32 v{vT+1}, v{vM}, v{vT}")
    a(f"v_exp_f32 v{vT+1}, v{vT+1}")
    a(f"v_mov_b32 v{vM}, v{vT}")
    for e in range(16):
        a(f"v_fma_f32 v{vS+e}, v{vS+e}, s{sC}, -v{vM}")
    for e in range(16):
        a(f"v_exp_f32 v{vS+e}, v{vS+e}")
    a(f"v_mul_f32 v{vL}, v{vL}, v{vT+1}")
    for r in range(32):
        a(f"v_mul_f32 v{vAcc+r}, v{vAcc+r}, v{vT+1}")
    for e in range(8):
        a(f"v_cvt_pk_bf16_f32 v{vP+e}, v{vS+2*e}, v{vS+2*e+1}")
    for e in range(0, 16, 2):
        a(f"v_add_f32 v{vS+e}, v{vS+e}, v{vS+e+1}")
    for e in range(0, 16, 4):
        a(f"v_add_f32 v{vS+e}, v{vS+e}, v{vS+e+2}")
    a(f"v_add_f32 v{vS}, v{vS}, v{vS+4}")
    a(f"v_add_f32 v{vS+8}, v{vS+8}, v{vS+12}")
    a(f"v_add_f32 v{vS}, v{vS}, v{vS+8}")
    a(f"v_add_f32 v{vL}, v{vL}, v{vS}")
    stamp(2)
    nst2 = 2 if STAMP else 0

    def pv(shared):
        for t in range(2):
            vt = vK + 32 * t
            if not shared:
                for v in range(4):
                    for p in range(4):
                        a(f"v_and_b32 v{vPv+4*v+p}, v{vP+4*t+p}, v{vMask+v}")
            for p in range(4):
                remaining = 16 - (8 * t + 2 * p + 2)
                a(f"s_waitcnt vmcnt({remaining + nst2})")
                r0 = vV + 32 * t + 8 * p
                r1 = r0 + 4
                for w in range(4):
                    a(f"v_perm_b32 v{vt + 4*(2*w) + p}, v{r1+w}, v{r0+w}, s{sSelLo}")
                    a(f"v_perm_b32 v{vt + 4*(2*w+1) + p}, v{r1+w}, v{r0+w}, s{sSelHi}")
            a("s_nop 0")
            for j in range(8):
                A = f"v[{vt+4*j}:{vt+4*j+3}]"
                if shared:
                    D = f"v[{vAcc+4*j}:{vAcc+4*j+3}]"
                    B = f"v[{vP+4*t}:{vP+4*t+3}]"
                else:
                    D = f"v[{vAcc+4*(j>>2)}:{vAcc+4*(j>>2)+3}]"
                    B = f"v[{vPv+4*(j&3)}:{vPv+4*(j&3)+3}]"
                a(f"v_mfma_f32_16x16x32_bf16 {D}, {A}, {B}, {D}")

    a(f"s_cmp_eq_u32 s{sShared}, 1")
    a("s_cbranch_scc1 L_pv_shared")
    pv(False)
    a("s_branch L_pv_done")
    a.label("L_pv_shared")
    pv(True)
    a.label("L_pv_done")
    a(f"s_add_u32 s{sRnd}, s{sRnd}, 1")
    a(f"s_add_u32 s{sCol0}, s{sCol0}, 4")
    a(f"v_subrev_u32 v{vLim}, 64, v{vLim}")
    a(f"s_cmp_lt_u32 s{sRnd}, s{sR}")
    a("s_nop 7")
    a("s_cbranch_scc1 L_round")
    stamp(3)

    a(f"v_mov_b32 v{vT+1}, v{vL}")
    a("s_nop 1")
    a(f"v_permlane32_swap_b32 v{vL}, v{vT+1}")
    a("s_nop 1")
    a(f"v_add_f32 v{vL}, v{vL}, v{vT+1}")
    a(f"v_mov_b32 v{vT+1}, v{vL}")
    a("s_nop 1")
    a(f"v_permlane16_swap_b32 v{vL}, v{vT+1}")
    a("s_nop 1")
    a(f"v_add_f32 v{vL}, v{vL}, v{vT+1}")
    a(f"s_lshl_b32 s{sT}, s{sWv}, 2")
    a(f"v_add_u32 v{vT+1}, s{sT}, v{vMXa}")
    a(f"ds_write_b32 v{vT+1}, v{vL} offset:{LS}")
    a(f"s_mul_i32 s{sT}, s{sWv}, {SSTR}")
    a(f"v_lshlrev_b32 v{vT+2}, 9, v{vG}")
    a(f"v_add_u32 v{vT+2}, s{sT}, v{vT+2}")
    a(f"s_cmp_eq_u32 s{sShared}, 1")
    a("s_cbranch_scc1 L_ow_shared")
    a(f"s_mul_i32 s{sT}, s{sBsel}, {BSTR}")
    a(f"v_lshl_add_u32 v{vT+2}, v{vN}, 4, v{vT+2}")
    a(f"v_add_u32 v{vT+2}, s{sT}, v{vT+2}")
    for jj in range(2):
        a(f"ds_write_b128 v{vT+2}, v[{vAcc+4*jj}:{vAcc+4*jj+3}] offset:{OB + jj*256}")
    a("s_branch L_ow_done")
    a.label("L_ow_shared")
    a(f"v_lshrrev_b32 v{vT+3}, 2, v{vN}")
    a(f"v_mul_u32_u24 v{vT+3}, {BSTR}, v{vT+3}")
    a(f"v_and_b32 v{vT+4}, 3, v{vN}")
    a(f"v_lshlrev_b32 v{vT+4}, 4, v{vT+4}")
    a(f"v_add3_u32 v{vT+2}, v{vT+2}, v{vT+3}, v{vT+4}")
    for j in range(8):
        a(f"ds_write_b128 v{vT+2}, v[{vAcc+4*j}:{vAcc+4*j+3}] offset:{OB + j*64}")
    a.label("L_ow_done")
    sB, sHalf, sMaskC, sCnt = sBsel, sShared, sCol0, sColEnd
    a(f"s_lshr_b32 s{sB}, s{sWv}, 1")
    a(f"s_and_b32 s{sHalf}, s{sWv}, 1")
    a(f"s_add_u32 s{sT}, s{sBase}, 7")
    a(f"s_lshr_b32 s{sT}, s{sT}, 3")
    a(f"s_bfm_b64 s[{sCm}:{sCm+1}], s{sT}, 0")
    a(f"s_mov_b32 s{sT+2}, s{sBase}")
    a(f"s_mov_b32 s{sT+3}, s{sBase+1}")
    for b in range(1, 4):
        a(f"s_cmp_eq_u32 s{sB}, {b}")
        a(f"s_cselect_b32 s{sT+2}, s{sBase+b}, s{sT+2}")
        a(f"s_cselect_b32 s{sT+3}, s{sBase+b+1}, s{sT+3}")
    a(f"s_cmp_eq_u32 s{sT+2}, s{sT+3}")
    a(f"s_cselect_b32 s{sT+4}, 0, -1")
    a(f"s_lshr_b32 s{sT+2}, s{sT+2}, 3")
    a(f"s_add_u32 s{sT+3}, s{sT+3}, 7")
    a(f"s_lshr_b32 s{sT+3}, s{sT+3}, 3")
    a(f"s_sub_u32 s{sT+3}, s{sT+3}, s{sT+2}")
    a(f"s_bfm_b64 s[{sCm+2}:{sCm+3}], s{sT+3}, s{sT+2}")
    a(f"s_and_b32 s{sCm+2}, s{sCm+2}, s{sT+4}")
    a(f"s_or_b32 s{sMaskC}, s{sCm}, s{sCm+2}")
    a(f"s_bcnt1_i32_b32 s{sCnt}, s{sMaskC}")
    a(f"s_mul_i32 s{sT}, s{sB}, {BSTR}")
    a(f"s_lshl_b32 s{sT+1}, s{sHalf}, 10")
    a(f"s_add_u32 s{sT}, s{sT}, s{sT+1}")
    a(f"s_add_u32 s{sT}, s{sT}, {OB}")
    a(f"v_lshlrev_b32 v{vT}, 4, v{vLane}")
    a(f"v_add_u32 v{vT+1}, s{sT}, v{vT}")
    a(f"v_and_b32 v{vT+2}, 3, v{vLane}")
    a(f"s_lshl_b32 s{sT}, s{sB}, 7")
    a(f"v_lshlrev_b32 v{vT+3}, 5, v{vT+2}")
    a(f"v_add_u32 v{vT+3}, s{sT}, v{vT+3}")
    a("s_waitcnt lgkmcnt(0)")
    a("s_barrier")
    a(f"s_bitcmp1_b32 s{sMaskC}, s{sI}")
    a("s_cbranch_scc0 L_end")
    R0 = vK
    for w in range(8):
        a(f"ds_read_b128 v[{R0+4*w}:{R0+4*w+3}], v{vT+1} offset:{w*SSTR}")
    a(f"ds_read_b128 v[{vS}:{vS+3}], v{vT+3} offset:{LS}")
    a(f"ds_read_b128 v[{vS+4}:{vS+7}], v{vT+3} offset:{LS+16}")
    a(f"ds_read_b128 v[{vS+8}:{vS+11}], v{vT+3} offset:{MX}")
    a(f"ds_read_b128 v[{vS+12}:{vS+15}], v{vT+3} offset:{MX+16}")
    sGrp = sRnd
    a(f"s_lshl_b32 s{sGrp}, s{sKvh}, 3")
    a(f"s_add_u32 s{sGrp}, s{sGrp}, s{sWv}")
    a(f"s_lshl_b32 s{sT}, s{sGrp}, 15")
    a(f"v_add_u32 v{vKa}, s{sT}, v{vT}")
    a(f"s_lshl_b32 s{sT}, s{sGrp}, 10")
    a(f"s_add_u32 s{sT}, s{sT}, {4<<20}")
    a(f"v_lshlrev_b32 v{vKa+1}, 3, v{vT+2}")
    a(f"v_add_u32 v{vKa+1}, s{sT}, v{vKa+1}")
    a(f"s_lshl_b32 s{sT+1}, s{sI}, 10")
    a(f"s_lshl_b32 s{sT+2}, s{sI}, 5")
    a(f"s_lshl_b32 s{sT}, s{sGrp}, 2")
    a(f"v_mov_b32 v{vKa+2}, s{sT}")
    a(f"v_mov_b32 v{vKa+3}, 1")
    a("s_waitcnt lgkmcnt(4)")
    for st in (4, 2, 1):
        for w in range(st):
            for r in range(4):
                a(f"v_add_f32 v{R0+4*w+r}, v{R0+4*w+r}, v{R0+4*(w+st)+r}")
    a(f"buffer_store_dwordx4 v[{R0}:{R0+3}], v{vKa}, s[{sWS}:{sWS+3}], s{sT+1} offen sc1")
    a("s_waitcnt lgkmcnt(0)")
    a(f"v_max3_f32 v{vP}, v{vS+8}, v{vS+9}, v{vS+10}")
    a(f"v_max3_f32 v{vP+2}, v{vS+11}, v{vS+12}, v{vS+13}")
    a(f"v_max3_f32 v{vP}, v{vP}, v{vS+14}, v{vS+15}")
    a(f"v_max_f32 v{vP}, v{vP}, v{vP+2}")
    for st in (4, 2, 1):
        for w in range(st):
            a(f"v_add_f32 v{vS+w}, v{vS+w}, v{vS+w+st}")
    a(f"v_mov_b32 v{vP+1}, v{vS}")
    a("s_mov_b64 exec, 15")
    a(f"buffer_store_dwordx2 v[{vP}:{vP+1}], v{vKa+1}, s[{sWS}:{sWS+3}], s{sT+2} offen sc1")
    a("s_waitcnt vmcnt(0)")
    a("s_mov_b64 exec, 1")
    a(f"buffer_atomic_add v{vKa+3}, v{vKa+2}, s[{sDBG}:{sDBG+3}], 0 offen sc0")
    a("s_waitcnt vmcnt(0)")
    a("s_mov_b64 exec, -1")
    a(f"v_readfirstlane_b32 s{sT}, v{vKa+3}")
    a("s_nop 0")
    a(f"s_add_u32 s{sT}, s{sT}, 1")
    stamp(4)
    a(f"s_cmp_eq_u32 s{sT}, s{sCnt}")
    a("s_cbranch_scc0 L_end")
    FO = 48
    FM = 176
    for i in range(32):
        a(f"v_mov_b32 v{FM+2*i}, 0xf149f2ca")
        a(f"v_mov_b32 v{FM+2*i+1}, 0")
        for r in range(4):
            a(f"v_mov_b32 v{FO+4*i+r}, 0")
    for i in range(32):
        a(f"s_bitcmp1_b32 s{sMaskC}, {i}")
        a(f"s_cbranch_scc0 L_skip{i}")
        a(f"s_movk_i32 s{sT}, {(i>>2)*4096}")
        a(f"buffer_load_dwordx4 v[{FO+4*i}:{FO+4*i+3}], v{vKa}, s[{sWS}:{sWS+3}], s{sT} offen offset:{(i&3)*1024} sc1")
        a(f"buffer_load_dwordx2 v[{FM+2*i}:{FM+2*i+1}], v{vKa+1}, s[{sWS}:{sWS+3}], 0 offen offset:{i*32} sc1")
        a.label(f"L_skip{i}")
    a("s_waitcnt vmcnt(0)")
    a(f"v_max3_f32 v{vT}, v{FM}, v{FM+2}, v{FM+4}")
    for i in range(3, 31, 2):
        a(f"v_max3_f32 v{vT}, v{vT}, v{FM+2*i}, v{FM+2*i+2}")
    a(f"v_max_f32 v{vT}, v{vT}, v{FM+62}")
    for i in range(32):
        a(f"v_sub_f32 v{FM+2*i}, v{FM+2*i}, v{vT}")
    for i in range(32):
        a(f"v_exp_f32 v{FM+2*i}, v{FM+2*i}")
    a("s_nop 0")
    a(f"v_mul_f32 v{vT+1}, v{FM}, v{FM+1}")
    for r in range(4):
        a(f"v_mul_f32 v{vS+r}, v{FM}, v{FO+r}")
    for i in range(1, 32):
        a(f"v_fmac_f32 v{vT+1}, v{FM+2*i}, v{FM+2*i+1}")
        for r in range(4):
            a(f"v_fmac_f32 v{vS+r}, v{FM+2*i}, v{FO+4*i+r}")
    a(f"v_rcp_f32 v{vT+1}, v{vT+1}")
    a("s_nop 0")
    for r in range(4):
        a(f"v_mul_f32 v{vS+r}, v{vS+r}, v{vT+1}")
    a(f"v_cvt_pk_bf16_f32 v{vS}, v{vS}, v{vS+1}")
    a(f"v_cvt_pk_bf16_f32 v{vS+2}, v{vS+2}, v{vS+3}")
    a(f"s_lshl_b32 s{sT}, s{sB}, 13")
    a(f"s_lshl_b32 s{sT+1}, s{sKvh}, 10")
    a(f"s_add_u32 s{sT}, s{sT}, s{sT+1}")
    a(f"s_lshl_b32 s{sT+1}, s{sHalf}, 7")
    a(f"s_add_u32 s{sT}, s{sT}, s{sT+1}")
    a(f"v_lshlrev_b32 v{vT+2}, 8, v{vT+2}")
    a(f"v_lshrrev_b32 v{vT+3}, 5, v{vLane}")
    a(f"v_lshl_add_u32 v{vT+2}, v{vT+3}, 6, v{vT+2}")
    a(f"v_bfe_u32 v{vT+3}, v{vLane}, 2, 3")
    a(f"v_lshl_add_u32 v{vT+2}, v{vT+3}, 1, v{vT+2}")
    a(f"v_add_u32 v{vT+2}, s{sT}, v{vT+2}")
    a(f"buffer_store_short v{vS}, v{vT+2}, s[{sOUT}:{sOUT+3}], 0 offen")
    a(f"buffer_store_short_d16_hi v{vS}, v{vT+2}, s[{sOUT}:{sOUT+3}], 0 offen offset:16")
    a(f"buffer_store_short v{vS+2}, v{vT+2}, s[{sOUT}:{sOUT+3}], 0 offen offset:32")
    a(f"buffer_store_short_d16_hi v{vS+2}, v{vT+2}, s[{sOUT}:{sOUT+3}], 0 offen offset:48")
    if STAMP:
        a("s_waitcnt vmcnt(0)")
        stamp(5)
    a.label("L_end")
    if STAMP:
        a("s_cmp_ge_u32 s2, 256")
        a("s_cbranch_scc1 L_end2")
        a(f"v_mov_b32 v{vX+8}, s100")
        a(f"v_mov_b32 v{vX+9}, s101")
        a(f"s_lshl_b32 s{sStamp+2}, s2, 3")
        a(f"s_add_u32 s{sStamp+2}, s{sStamp+2}, s{sWv}")
        a(f"s_lshl_b32 s{sStamp+2}, s{sStamp+2}, 7")
        a(f"s_add_u32 s{sStamp+2}, s{sStamp+2}, {(16<<20)}")
        a(f"v_mov_b32 v{vX+10}, s{sStamp+2}")
        a("s_mov_b64 exec, 1")
        a(f"buffer_store_dwordx2 v[{vX+8}:{vX+9}], v{vX+10}, s[{sWS}:{sWS+3}], 0 offen")
        a(f"buffer_store_dwordx2 v[{vX+6}:{vX+7}], v{vX+10}, s[{sWS}:{sWS+3}], 0 offen offset:72")
        stamp(6)
        a.label("L_end2")
    a("s_endpgm")

    head = f"""; Paged (block-table) GQA decode attention, split-KV with shared-prefix de-duplication.
; @launch grid=(256,1,1) block=(512,1,1) lds={LDS_BYTES}
.amdgcn_target "amdgcn-amd-amdhsa--gfx950"
.text
.globl {NAME}_kernel
.p2align 8
.type {NAME}_kernel,@function
"""
    tail = f""".section .rodata,"a"
.p2align 6
.amdhsa_kernel {NAME}_kernel
  .amdhsa_next_free_vgpr {NVGPR}
  .amdhsa_next_free_sgpr 102
  .amdhsa_accum_offset {NVGPR}
  .amdhsa_group_segment_fixed_size 0
  .amdhsa_kernarg_size 64
  .amdhsa_user_sgpr_count 2
  .amdhsa_user_sgpr_kernarg_segment_ptr 1
  .amdhsa_system_sgpr_workgroup_id_x 1
.end_amdhsa_kernel
"""
    return head + a.text() + tail

if __name__ == "__main__":
    opts = {}
    out = sys.argv[1]
    for kv in sys.argv[2:]:
        k, v = kv.split("=", 1)
        if v in ("0", "1"):
            v = bool(int(v))
        opts[k] = v
    open(out, "w").write(gen(opts))
```

```python
import sys

NAME = "standalone__paged_block_table_kv_radixattention__decode"

class Asm:
    def __init__(self):
        self.lines = []
    def __call__(self, s=""):
        for l in s.split("\n"):
            l = l.strip()
            self.lines.append(l if (not l or l.endswith(":")) else "    " + l)
    def label(self, n):
        self.lines.append(n + ":")
    def c(self, s):
        self.lines.append("    ; " + s)
    def text(self):
        return "\n".join(self.lines) + "\n"

KV_BYTES = 1280 * 32768
WS_M = 2 << 20
WS_L = WS_M + 16384
NEG = "0xf149f2ca"

def head_of_wg(a, dst, perm):
    if perm == "01234567":
        a(f"s_and_b32 s{dst}, s2, 7")
    else:
        val = int("".join(reversed(perm)), 16)
        a(f"s_lshl_b32 s{dst}, s2, 2")
        a(f"s_lshr_b32 s{dst}, {hex(val)}, s{dst}")
        a(f"s_and_b32 s{dst}, s{dst}, 7")

def gen(opts):
    POL = opts.get("pol", "nt").replace("+", " ").replace("def", "")
    KPOL = opts.get("kpol", POL).replace("+", " ").replace("def", "")
    VPOL = opts.get("vpol", POL).replace("+", " ").replace("def", "")
    SPOL = opts.get("spol", "def").replace("+", " ").replace("def", "")
    LPOL = opts.get("lpol", "def").replace("+", " ").replace("def", "")
    OPOL = opts.get("opol", "def").replace("+", " ").replace("def", "")
    PERM = opts.get("perm", "10543276")
    PERMB = opts.get("permb", PERM)
    STAMP = opts.get("stamp", "0") == "1"

    a = Asm()
    KR = 0
    INV = 131072
    MX = INV + 1024
    LS = MX + 512
    LDS_BYTES = LS + 512
    BSTR = 2112

    vLane, vG, vN, vVo0, vVo1, vM, vL, vC = 1, 2, 3, 4, 5, 6, 7, 8
    vB4 = 9
    vKs = 10
    vKr = 14
    vT = 18
    vS = 28
    vBias = 44
    vP = 60
    vQ = 68
    vAcc = 84
    vK = 116
    vV = 180
    vX = 244
    NVGPR = 256 if STAMP else 244

    sK, sV, sQ, sWS = 20, 24, 28, 32
    sN, sNB, sNF = 36, 40, 44
    sH, sI, sW, sWb = 48, 49, 50, 51
    sP = 52
    sR = 56
    sLc = 60
    sU = 64
    sRnd = 65
    sSelLo, sSelHi = 66, 67
    sSpecBad = 68
    sRm = 70
    sCm = 78
    sT = 94
    sSt = 98

    def stamp(idx, wave_sgpr=None):
        if not STAMP:
            return
        a(f"s_memrealtime s[{sSt}:{sSt+1}]")
        a("s_waitcnt lgkmcnt(0)")
        a(f"v_mov_b32 v{vX+8}, s{sSt}")
        a(f"v_mov_b32 v{vX+9}, s{sSt+1}")
        a(f"s_lshl_b32 s{sSt}, s2, 3")
        a(f"s_add_u32 s{sSt}, s{sSt}, s{sW}")
        a(f"s_lshl_b32 s{sSt}, s{sSt}, 7")
        a(f"s_add_u32 s{sSt}, s{sSt}, {(16<<20) + idx*8}")
        a(f"v_mov_b32 v{vX+10}, s{sSt}")
        a(f"s_mov_b64 s[{sSt}:{sSt+1}], exec")
        a("s_mov_b64 exec, 1")
        a(f"buffer_store_dwordx2 v[{vX+8}:{vX+9}], v{vX+10}, s[{sWS}:{sWS+3}], 0 offen")
        a(f"s_mov_b64 exec, s[{sSt}:{sSt+1}]")

    nstamp = [0]
    def tick(idx):
        if not STAMP:
            return
        a(f"s_memrealtime s[{sSt}:{sSt+1}]")
        a("s_waitcnt lgkmcnt(0)")
        a(f"v_writelane_b32 v{vX}, s{sSt}, {idx}")
        a(f"v_writelane_b32 v{vX+1}, s{sSt+1}, {idx}")
    def flush_ticks(wsrd, wave_expr_sgpr):
        if not STAMP:
            return
        a("s_mov_b64 exec, 0xffff")
        a(f"s_lshl_b32 s{sSt}, s2, 3")
        if wave_expr_sgpr is not None:
            a(f"s_add_u32 s{sSt}, s{sSt}, s{wave_expr_sgpr}")
        a(f"s_lshl_b32 s{sSt}, s{sSt}, 7")
        a(f"s_add_u32 s{sSt}, s{sSt}, {16<<20}")
        a(f"v_mbcnt_lo_u32_b32 v{vX+2}, -1, 0")
        a(f"v_lshlrev_b32 v{vX+2}, 3, v{vX+2}")
        a(f"v_add_u32 v{vX+2}, s{sSt}, v{vX+2}")
        a(f"v_cmp_ne_u32 vcc, 0, v{vX}")
        a("s_and_b64 exec, exec, vcc")
        a(f"buffer_store_dwordx2 v[{vX}:{vX+1}], v{vX+2}, s[{wsrd}:{wsrd+3}], 0 offen")

    def srd(d, p, nbytes):
        a(f"s_mov_b32 s{d}, s{p}")
        a(f"s_and_b32 s{d+1}, s{p+1}, 0xffff")
        a(f"s_mov_b32 s{d+2}, {nbytes}")
        a(f"s_mov_b32 s{d+3}, 0x20000")

    def load_k(k):
        a(f"s_add_u32 m0, s{sWb}, {k*4096}")
        a(f"s_mov_b32 s{sK+2}, s{sR+k}")
        for q in range(4):
            a(f"buffer_load_dwordx4 v{vKs+q}, s[{sK}:{sK+3}], s{sP+k} offen offset:{q*1024} {KPOL} lds")
    def load_v(k):
        a(f"s_mov_b32 s{sV+2}, s{sR+k}")
        for i in range(4):
            r = vV + 16 * k + 4 * i
            a(f"buffer_load_dwordx4 v[{r}:{r+3}], v{vVo0 + (i>>1)}, s[{sV}:{sV+3}], s{sP+k} offen offset:{2048*(i&1)} {VPOL}")
    def pop(k):
        a(f"s_ff1_i32_b32 s{sT}, s{sU}")
        a(f"s_bitset0_b32 s{sU}, s{sT}")
        a(f"s_add_u32 s{sT+1}, s{sT}, 8")
        a(f"s_and_b32 s{sT+2}, s{sT+1}, 0x38")
        a(f"s_sub_u32 s{sT+2}, s{sI}, s{sT+2}")
        a(f"s_and_b32 s{sT+2}, s{sT+2}, 31")
        a(f"s_lshl_b32 s{sP+k}, s{sT+1}, 5")
        a(f"s_add_u32 s{sP+k}, s{sP+k}, s{sT+2}")
        a(f"s_lshl_b32 s{sP+k}, s{sP+k}, 15")
        a(f"s_lshl_b32 s{sLc+k}, s{sT+1}, 4")
        a(f"s_cmp_lt_i32 s{sT}, 0")
        a(f"s_cselect_b32 s{sR+k}, 0, {KV_BYTES}")
        a(f"s_cselect_b32 s{sLc+k}, {63*16}, s{sLc+k}")

    a.label(f"{NAME}_kernel")
    a("s_cmp_ge_u32 s2, 256")
    a("s_cbranch_scc1 L_end")
    a("s_load_dwordx16 s[4:19], s[0:1], 0")
    if STAMP:
        a(f"v_mov_b32 v{vX}, 0")
        a(f"v_mov_b32 v{vX+1}, 0")
        a(f"s_memrealtime s[{sSt+2}:{sSt+3}]")
    a(f"v_lshrrev_b32 v{vT}, 6, v0")
    a(f"v_and_b32 v{vLane}, 63, v0")
    a(f"v_readfirstlane_b32 s{sW}, v{vT}")
    head_of_wg(a, sH, PERM)
    a(f"s_lshr_b32 s{sI}, s2, 3")
    a(f"v_lshrrev_b32 v{vG}, 4, v{vLane}")
    a(f"v_and_b32 v{vN}, 15, v{vLane}")
    a(f"v_lshlrev_b32 v{vT+1}, 2, v0")
    a(f"v_lshlrev_b32 v{vT+2}, 4, v{vLane}")
    a(f"v_add_u32 v{vT+2}, {INV}, v{vT+2}")
    for r in range(4):
        a(f"v_mov_b32 v{vS+r}, 0")
    a(f"ds_write_b128 v{vT+2}, v[{vS}:{vS+3}]")
    a(f"s_lshl_b32 s{sT}, s{sH}, 8")
    a(f"s_lshl_b32 s{sWb}, s{sW}, 14")
    a(f"v_xor_b32 v{vT+3}, v{vN}, v{vG}")
    a(f"v_lshlrev_b32 v{vT+3}, 4, v{vT+3}")
    a(f"v_lshlrev_b32 v{vT+4}, 11, v{vG}")
    a(f"v_add_u32 v{vT+4}, s{sT}, v{vT+4}")
    for q in range(4):
        if q == 0:
            a(f"v_add_u32 v{vKs}, v{vT+3}, v{vT+4}")
        else:
            a(f"v_xor_b32 v{vKs+q}, {64*q}, v{vT+3}")
            a(f"v_add_u32 v{vT+4}, {8192-1024}, v{vT+4}")
            a(f"v_add_u32 v{vKs+q}, v{vKs+q}, v{vT+4}")
    a(f"v_lshlrev_b32 v{vVo0}, 13, v{vG}")
    a(f"v_lshl_add_u32 v{vVo0}, v{vN}, 4, v{vVo0}")
    a(f"v_add_u32 v{vVo0}, s{sT}, v{vVo0}")
    a(f"v_add_u32 v{vVo1}, 4096, v{vVo0}")
    a(f"v_lshrrev_b32 v{vT+5}, 2, v{vN}")
    a(f"v_and_b32 v{vT+6}, 3, v{vN}")
    a(f"v_lshlrev_b32 v{vT+6}, 8, v{vT+6}")
    a(f"v_lshl_add_u32 v{vT+6}, v{vT+5}, 13, v{vT+6}")
    a(f"v_lshl_add_u32 v{vT+6}, v{vG}, 4, v{vT+6}")
    a(f"s_lshl_b32 s{sT+1}, s{sH}, 10")
    a(f"s_lshl_b32 s{sP}, s{sW}, 5")
    a(f"s_add_u32 s{sP}, s{sP}, s{sI}")
    a(f"s_lshl_b32 s{sP}, s{sP}, 15")
    a(f"s_lshl_b32 s{sLc}, s{sW}, 4")
    a(f"s_mov_b32 s{sR}, {KV_BYTES}")
    a(f"s_mov_b32 s{sK+3}, 0x20000")
    a(f"s_mov_b32 s{sV+3}, 0x20000")
    a(f"s_mov_b32 s{sQ+2}, 32768")
    a(f"s_mov_b32 s{sQ+3}, 0x20000")
    a("s_waitcnt lgkmcnt(0)")
    a("s_add_u32 s10, s10, 4096")
    a("s_addc_u32 s11, s11, 0")
    for b in range(4):
        a(f"global_load_dword v{vBias+b}, v{vT+1}, s[10:11] offset:{b*2048-4096}")
    a(f"s_load_dwordx4 s[{sN}:{sN+3}], s[12:13], 0")
    a(f"s_mov_b32 s{sK}, s6")
    a(f"s_and_b32 s{sK+1}, s7, 0xffff")
    a(f"s_mov_b32 s{sV}, s8")
    a(f"s_and_b32 s{sV+1}, s9, 0xffff")
    a("s_barrier")
    load_k(0)
    a(f"s_mov_b32 s{sQ}, s4")
    a(f"s_and_b32 s{sQ+1}, s5, 0xffff")
    for j in range(4):
        a(f"buffer_load_dwordx4 v[{vQ+4*j}:{vQ+4*j+3}], v{vT+6}, s[{sQ}:{sQ+3}], s{sT+1} offen offset:{64*j}")
    load_v(0)
    if STAMP:
        a(f"v_writelane_b32 v{vX}, s{sSt+2}, 0")
        a(f"v_writelane_b32 v{vX+1}, s{sSt+3}, 0")
    tick(1)
    srd(sWS, 18, 1 << 28)
    a(f"s_mov_b32 s{sSelLo}, 0x05040100")
    a(f"s_mov_b32 s{sSelHi}, 0x07060302")
    a(f"s_mov_b32 s{sRnd}, 0")
    a(f"v_lshlrev_b32 v{vT+4}, 8, v{vN}")
    a(f"v_add_u32 v{vT+4}, s{sWb}, v{vT+4}")
    for j in range(4):
        if j == 0:
            a(f"v_add_u32 v{vKr}, v{vT+3}, v{vT+4}")
        else:
            a(f"v_xor_b32 v{vKr+j}, {64*j}, v{vT+3}")
            a(f"v_add_u32 v{vKr+j}, v{vKr+j}, v{vT+4}")
    a(f"v_lshlrev_b32 v{vB4}, 2, v{vT+5}")
    a(f"v_add_u32 v{vB4}, {INV}, v{vB4}")
    a(f"v_mov_b32 v{vM}, {NEG}")
    a(f"v_mov_b32 v{vL}, 0")
    a("s_waitcnt lgkmcnt(0)")
    a(f"v_mov_b32 v{vC}, 0x3e0293ee")
    for b in range(4):
        a(f"s_min_i32 s{sT}, s{sN+b}, 0x2000")
        a(f"s_cmp_lt_i32 s{sN+b}, 1")
        a(f"s_cselect_b32 s{sN+b}, 0x2000, s{sT}")
        a(f"s_cselect_b32 s{sT}, {hex(0x000f000f << (4*b))}, 0")
        if b == 0:
            a(f"s_mov_b32 s{sCm}, s{sT}")
        else:
            a(f"s_or_b32 s{sCm}, s{sCm}, s{sT}")
        a(f"s_add_u32 s{sNB+b}, s{sN+b}, 15")
        a(f"s_lshr_b32 s{sNB+b}, s{sNB+b}, 4")
        a(f"s_lshr_b32 s{sNF+b}, s{sN+b}, 4")
    a(f"s_mov_b32 s{sCm+1}, s{sCm}")
    a(f"v_cndmask_b32 v{vC}, v{vC}, 0, s[{sCm}:{sCm+1}]")
    a(f"s_and_b32 s{sT}, s{sN}, 15")
    for b in range(1, 4):
        a(f"s_and_b32 s{sT+1}, s{sN+b}, 15")
        a(f"s_lshl_b32 s{sT+1}, s{sT+1}, {4*b}")
        a(f"s_or_b32 s{sT}, s{sT}, s{sT+1}")
    a(f"v_and_b32 v{vT+4}, 12, v{vN}")
    a(f"v_lshrrev_b32 v{vT+4}, v{vT+4}, s{sT}")
    a(f"v_and_b32 v{vT+4}, 15, v{vT+4}")
    a(f"v_lshlrev_b32 v{vT+5}, 2, v{vG}")
    a(f"v_sub_u32 v{vT+4}, v{vT+4}, v{vT+5}")
    for r in range(4):
        a(f"v_cmp_lt_i32 s[{sRm+2*r}:{sRm+2*r+1}], {r}, v{vT+4}")
    a(f"v_mov_b32 v{vT+7}, 0x10000")
    a(f"s_movk_i32 s{sT+2}, 1280")
    a("s_waitcnt vmcnt(12)")
    tick(2)
    for b in range(4):
        p = vBias + b
        a(f"v_lshrrev_b32 v{vT+4}, 5, v{p}")
        a(f"v_and_b32 v{vT+5}, 0x38, v{vT+4}")
        a(f"v_add_u32 v{vT+5}, v{vT+5}, v{p}")
        a(f"v_and_b32 v{vT+5}, 31, v{vT+5}")
        a(f"v_cmp_gt_u32 vcc, s{sNF+b}, v0")
        a(f"v_cmp_eq_u32 s[{sCm}:{sCm+1}], s{sI}, v{vT+5}")
        a(f"v_cmp_gt_u32 s[{sCm+2}:{sCm+3}], s{sNB+b}, v0")
        a(f"v_cmp_gt_u32 s[{sCm+4}:{sCm+5}], s{sT+2}, v{p}")
        a(f"v_cndmask_b32 v{vT+5}, v{vT+7}, 1, vcc")
        a(f"v_lshlrev_b32 v{vT+4}, 4, v{vT+4}")
        a(f"s_and_b64 s[{sCm}:{sCm+1}], s[{sCm}:{sCm+1}], s[{sCm+2}:{sCm+3}]")
        a(f"v_add_u32 v{vT+4}, {INV + 4*b}, v{vT+4}")
        a(f"s_and_b64 exec, s[{sCm}:{sCm+1}], s[{sCm+4}:{sCm+5}]")
        a(f"ds_add_u32 v{vT+4}, v{vT+5}")
        a("s_mov_b64 exec, -1")
    a("s_waitcnt lgkmcnt(0)")
    a("s_barrier")
    a(f"ds_read_b128 v[{vS}:{vS+3}], v{vT+2}")
    a("s_waitcnt lgkmcnt(0)")
    a(f"v_or3_b32 v{vS}, v{vS}, v{vS+1}, v{vS+2}")
    a(f"v_or_b32 v{vS}, v{vS}, v{vS+3}")
    a(f"v_cmp_ne_u32 vcc, 0, v{vS}")
    a("s_nop 0")
    a(f"s_bitcmp0_b32 vcc_lo, s{sW}")
    a(f"s_cselect_b32 s{sSpecBad}, 1, 0")
    a(f"s_lshr_b64 s[{sCm}:{sCm+1}], vcc, 8")
    a(f"v_mbcnt_lo_u32_b32 v{vT+4}, s{sCm}, 0")
    a(f"v_and_b32 v{vT+4}, 7, v{vT+4}")
    a(f"v_cmp_eq_u32 vcc, s{sW}, v{vT+4}")
    a("s_nop 0")
    a(f"s_and_b32 s{sU}, vcc_lo, s{sCm}")
    tick(3)

    a.label("L_round")
    for k in range(1, 4):
        pop(k)
        load_k(k)
    for k in range(1, 4):
        load_v(k)
    tick(4)
    for k in range(4):
        a(f"v_add_u32 v{vT+k}, s{sLc+k}, v{vB4}")
        a(f"ds_read_b32 v{vT+k}, v{vT+k}")
    a(f"s_cmp_lg_u32 s{sRnd}, 0")
    a("s_cbranch_scc1 L_noinit")
    for r in range(32):
        a(f"v_mov_b32 v{vAcc+r}, 0")
    a.label("L_noinit")
    a("s_waitcnt lgkmcnt(0)")
    for k in range(4):
        a(f"v_and_b32 v{vT+4}, 0xffff, v{vT+k}")
        a(f"v_lshrrev_b32 v{vT+5}, 16, v{vT+k}")
        a(f"v_add_u32 v{vT+5}, v{vT+5}, v{vT+4}")
        a(f"v_cvt_f32_u32 v{vT+4}, v{vT+4}")
        a(f"v_cvt_f32_u32 v{vT+5}, v{vT+5}")
        a(f"v_log_f32 v{vT+4}, v{vT+4}")
        a(f"v_log_f32 v{vT+5}, v{vT+5}")
        a("s_nop 0")
        for r in range(4):
            a(f"v_cndmask_b32 v{vBias+4*k+r}, v{vT+4}, v{vT+5}, s[{sRm+2*r}:{sRm+2*r+1}]")
    for k in range(4):
        a(f"s_waitcnt vmcnt({24 - 4*k})")
        for j in range(4):
            r = vK + 16 * k + 4 * j
            a(f"ds_read_b128 v[{r}:{r+3}], v{vKr+j} offset:{k*4096}")
        if k > 0:
            kk = k - 1
            a("s_waitcnt lgkmcnt(4)")
            for j in range(4):
                r = vK + 16 * kk + 4 * j
                c = "0" if j == 0 else f"v[{vS+4*kk}:{vS+4*kk+3}]"
                a(f"v_mfma_f32_16x16x32_bf16 v[{vS+4*kk}:{vS+4*kk+3}], v[{r}:{r+3}], v[{vQ+4*j}:{vQ+4*j+3}], {c}")
    for j in range(4):
        r = vK + 48 + 4 * j
        c = "0" if j == 0 else f"v[{vS+12}:{vS+15}]"
        a(f"s_waitcnt lgkmcnt({3-j})")
        a(f"v_mfma_f32_16x16x32_bf16 v[{vS+12}:{vS+15}], v[{r}:{r+3}], v[{vQ+4*j}:{vQ+4*j+3}], {c}")
    a(f"s_cmp_eq_u32 s{sSpecBad}, 0")
    a("s_cbranch_scc1 L_specok")
    for r in range(4):
        a(f"v_mov_b32 v{vS+r}, 0")
    for r in range(16):
        a(f"v_mov_b32 v{vV+r}, 0")
    a(f"s_mov_b32 s{sSpecBad}, 0")
    a.label("L_specok")
    for e in range(16):
        a(f"v_fma_f32 v{vS+e}, v{vS+e}, v{vC}, v{vBias+e}")
    a(f"v_max3_f32 v{vT}, v{vS}, v{vS+1}, v{vS+2}")
    a(f"v_max3_f32 v{vT+1}, v{vS+3}, v{vS+4}, v{vS+5}")
    a(f"v_max3_f32 v{vT}, v{vT}, v{vS+6}, v{vS+7}")
    a(f"v_max3_f32 v{vT+1}, v{vT+1}, v{vS+8}, v{vS+9}")
    a(f"v_max3_f32 v{vT}, v{vT}, v{vS+10}, v{vS+11}")
    a(f"v_max3_f32 v{vT+1}, v{vT+1}, v{vS+12}, v{vS+13}")
    a(f"v_max3_f32 v{vT}, v{vT}, v{vS+14}, v{vS+15}")
    a(f"v_max3_f32 v{vT}, v{vT}, v{vT+1}, v{vM}")
    a(f"v_mov_b32 v{vT+1}, v{vT}")
    a("s_nop 1")
    a(f"v_permlane32_swap_b32 v{vT}, v{vT+1}")
    a("s_nop 0")
    a(f"v_max_f32 v{vT}, v{vT}, v{vT+1}")
    a(f"v_mov_b32 v{vT+1}, v{vT}")
    a("s_nop 1")
    a(f"v_permlane16_swap_b32 v{vT}, v{vT+1}")
    a("s_nop 0")
    a(f"v_max_f32 v{vT}, v{vT}, v{vT+1}")
    a(f"s_cmp_eq_u32 s{sRnd}, 0")
    a("s_cbranch_scc1 L_norescale")
    a(f"v_sub_f32 v{vT+1}, v{vM}, v{vT}")
    a(f"v_exp_f32 v{vT+1}, v{vT+1}")
    a("s_nop 0")
    a(f"v_mul_f32 v{vL}, v{vL}, v{vT+1}")
    for r in range(32):
        a(f"v_mul_f32 v{vAcc+r}, v{vAcc+r}, v{vT+1}")
    a.label("L_norescale")
    a(f"v_mov_b32 v{vM}, v{vT}")
    for e in range(16):
        a(f"v_sub_f32 v{vS+e}, v{vS+e}, v{vT}")
    for e in range(16):
        a(f"v_exp_f32 v{vS+e}, v{vS+e}")
    for e in range(8):
        a(f"v_cvt_pk_bf16_f32 v{vP+e}, v{vS+2*e}, v{vS+2*e+1}")
    for e in range(0, 16, 2):
        a(f"v_add_f32 v{vS+e}, v{vS+e}, v{vS+e+1}")
    for e in range(0, 16, 4):
        a(f"v_add_f32 v{vS+e}, v{vS+e}, v{vS+e+2}")
    a(f"v_add_f32 v{vS}, v{vS}, v{vS+4}")
    a(f"v_add_f32 v{vS+8}, v{vS+8}, v{vS+12}")
    a(f"v_add_f32 v{vS}, v{vS}, v{vS+8}")
    a(f"v_add_f32 v{vL}, v{vL}, v{vS}")
    a(f"v_mov_b32 v{vT}, v{vL}")
    a(f"v_mov_b32 v{vT+1}, v{vL}")
    a(f"s_lshl_b32 s{sT}, s{sW}, 2")
    a(f"v_lshlrev_b32 v{vT+2}, 5, v{vN}")
    a(f"v_permlane32_swap_b32 v{vT}, v{vT+1}")
    a(f"s_add_u32 s{sT}, s{sT}, {MX}")
    a(f"v_add_f32 v{vT}, v{vT}, v{vT+1}")
    a(f"v_mov_b32 v{vT+1}, v{vT}")
    a(f"v_add_u32 v{vT+2}, s{sT}, v{vT+2}")
    a("s_nop 0")
    a(f"v_permlane16_swap_b32 v{vT}, v{vT+1}")
    a(f"ds_write_b32 v{vT+2}, v{vM}")
    a(f"v_add_f32 v{vT}, v{vT}, v{vT+1}")
    a(f"ds_write_b32 v{vT+2}, v{vT} offset:512")
    vOw, vOr, vMr, vWo, vWm = vT + 3, vT + 4, vT + 5, vT + 6, vT + 7
    a(f"v_lshrrev_b32 v{vOw}, 2, v{vN}")
    a(f"v_mul_u32_u24 v{vOw}, {BSTR}, v{vOw}")
    a(f"v_lshl_add_u32 v{vOw}, v{vG}, 9, v{vOw}")
    a(f"v_and_b32 v{vT+8}, 3, v{vN}")
    a(f"v_lshl_add_u32 v{vOw}, v{vT+8}, 4, v{vOw}")
    a(f"v_add_u32 v{vOw}, s{sWb}, v{vOw}")
    a(f"s_lshr_b32 s{sT}, s{sW}, 1")
    a(f"s_mul_i32 s{sT+1}, s{sT}, {BSTR}")
    a(f"s_and_b32 s{sT+2}, s{sW}, 1")
    a(f"s_lshl_b32 s{sT+2}, s{sT+2}, 10")
    a(f"s_add_u32 s{sT+1}, s{sT+1}, s{sT+2}")
    a(f"v_lshlrev_b32 v{vOr}, 4, v{vLane}")
    a(f"v_add_u32 v{vOr}, s{sT+1}, v{vOr}")
    a(f"s_lshl_b32 s{sT+1}, s{sT}, 7")
    a(f"s_add_u32 s{sT+1}, s{sT+1}, {MX}")
    a(f"v_lshlrev_b32 v{vMr}, 5, v{vT+8}")
    a(f"v_add_u32 v{vMr}, s{sT+1}, v{vMr}")
    a(f"s_lshl_b32 s{sT+1}, s{sH}, 3")
    a(f"s_add_u32 s{sT+1}, s{sT+1}, s{sW}")
    a(f"s_lshl_b32 s{sT+1}, s{sT+1}, 15")
    a(f"s_lshl_b32 s{sT+2}, s{sI}, 8")
    a(f"s_add_u32 s{sT+1}, s{sT+1}, s{sT+2}")
    a(f"v_lshlrev_b32 v{vWo}, 13, v{vG}")
    a(f"v_lshl_add_u32 v{vWo}, v{vN}, 4, v{vWo}")
    a(f"v_add_u32 v{vWo}, s{sT+1}, v{vWo}")
    a(f"s_lshl_b32 s{sT+1}, s{sH}, 2")
    a(f"s_add_u32 s{sT+1}, s{sT+1}, s{sT}")
    a(f"s_lshl_b32 s{sT+1}, s{sT+1}, 9")
    a(f"s_lshl_b32 s{sT+2}, s{sI}, 2")
    a(f"s_add_u32 s{sT+1}, s{sT+1}, s{sT+2}")
    a(f"s_and_b32 s{sT+2}, s{sW}, 1")
    a(f"s_lshl_b32 s{sT+2}, s{sT+2}, 14")
    a(f"s_add_u32 s{sT+1}, s{sT+1}, s{sT+2}")
    a(f"s_add_u32 s{sT+1}, s{sT+1}, {WS_M}")
    a(f"v_lshlrev_b32 v{vWm}, 7, v{vT+8}")
    a(f"v_add_u32 v{vWm}, s{sT+1}, v{vWm}")
    tick(5)
    for t in range(2):
        vt = vK + 32 * t
        for p in range(4):
            i_last = 8 * t + 2 * p + 1
            rem = 15 - i_last
            if rem < 12:
                a(f"s_waitcnt vmcnt({rem})")
            r0 = vV + 32 * t + 8 * p
            r1 = r0 + 4
            for w in range(4):
                a(f"v_perm_b32 v{vt + 4*(2*w) + p}, v{r1+w}, v{r0+w}, s{sSelLo}")
                a(f"v_perm_b32 v{vt + 4*(2*w+1) + p}, v{r1+w}, v{r0+w}, s{sSelHi}")
        for j in range(8):
            D = f"v[{vAcc+4*j}:{vAcc+4*j+3}]"
            a(f"v_mfma_f32_16x16x32_bf16 {D}, v[{vt+4*j}:{vt+4*j+3}], v[{vP+4*t}:{vP+4*t+3}], {D}")
    a(f"s_cmp_eq_u32 s{sU}, 0")
    a("s_cbranch_scc1 L_done")
    pop(0)
    load_k(0)
    load_v(0)
    a(f"s_mov_b32 s{sRnd}, 1")
    a("s_branch L_round")
    a.label("L_done")
    tick(6)
    for j in range(8):
        if j == 6:
            a("s_nop 0")
        a(f"ds_write_b128 v{vOw}, v[{vAcc+4*j}:{vAcc+4*j+3}] offset:{j*64}")
    a(f"v_add_u32 v{vT}, 0x10000, v{vOr}")
    a("s_waitcnt lgkmcnt(0)")
    a("s_barrier")
    tick(7)
    R0 = vK
    a(f"ds_read_b128 v[{vS}:{vS+3}], v{vMr}")
    a(f"ds_read_b128 v[{vS+4}:{vS+7}], v{vMr} offset:16")
    for w in range(8):
        a(f"ds_read_b128 v[{R0+4*w}:{R0+4*w+3}], v{vOr if w < 4 else vT} offset:{(w&3)*16384}")
    a(f"ds_read_b128 v[{vS+8}:{vS+11}], v{vMr} offset:512")
    a(f"ds_read_b128 v[{vS+12}:{vS+15}], v{vMr} offset:528")
    a("s_waitcnt lgkmcnt(10)")
    a(f"v_max3_f32 v{vM}, v{vS}, v{vS+1}, v{vS+2}")
    a(f"v_max3_f32 v{vT+1}, v{vS+3}, v{vS+4}, v{vS+5}")
    a(f"v_max3_f32 v{vM}, v{vM}, v{vS+6}, v{vS+7}")
    a(f"v_max_f32 v{vM}, v{vM}, v{vT+1}")
    for w in range(8):
        a(f"v_sub_f32 v{vS+w}, v{vS+w}, v{vM}")
    for w in range(8):
        a(f"v_exp_f32 v{vS+w}, v{vS+w}")
    a("s_waitcnt lgkmcnt(2)")
    for r in range(4):
        a(f"v_mul_f32 v{R0+r}, v{R0+r}, v{vS}")
    for w in range(1, 8):
        for r in range(4):
            a(f"v_fmac_f32 v{R0+r}, v{R0+4*w+r}, v{vS+w}")
    a(f"buffer_store_dwordx4 v[{R0}:{R0+3}], v{vWo}, s[{sWS}:{sWS+3}], 0 offen {SPOL}")
    a("s_waitcnt lgkmcnt(0)")
    a(f"v_mul_f32 v{vL}, v{vS+8}, v{vS}")
    for w in range(1, 8):
        a(f"v_fmac_f32 v{vL}, v{vS+8+w}, v{vS+w}")
    a(f"s_bitcmp1_b32 s{sW}, 0")
    a("s_cselect_b64 vcc, -1, 0")
    a(f"v_cndmask_b32 v{vM}, v{vM}, v{vL}, vcc")
    a("s_mov_b64 exec, 15")
    a(f"buffer_store_dword v{vM}, v{vWm}, s[{sWS}:{sWS+3}], 0 offen {SPOL}")
    if STAMP:
        a("s_mov_b64 exec, -1")
        tick(8)
        a("s_waitcnt vmcnt(0)")
        tick(9)
        flush_ticks(sWS, sW)
    a.label("L_end")
    a("s_endpgm")

    a("")
    a(".p2align 8")
    a(".globl combine_kernel")
    a(".type combine_kernel,@function")
    a.label("combine_kernel")
    a("s_cmp_ge_u32 s2, 256")
    a("s_cbranch_scc1 L_endb")
    a("s_load_dwordx2 s[4:5], s[0:1], 56")
    a("s_load_dwordx2 s[6:7], s[0:1], 40")
    if STAMP:
        a(f"v_mov_b32 v{vX}, 0")
        a(f"v_mov_b32 v{vX+1}, 0")
        a(f"s_memrealtime s[{sSt+2}:{sSt+3}]")
    head_of_wg(a, 16, PERMB)
    a("s_lshr_b32 s17, s2, 3")
    a("v_lshrrev_b32 v1, 4, v0")
    a("v_and_b32 v2, 15, v0")
    a("v_and_b32 v3, 3, v0")
    a("s_lshl_b32 s18, s16, 5")
    a("s_add_u32 s18, s18, s17")
    a("s_lshl_b32 s18, s18, 13")
    a("v_lshlrev_b32 v4, 11, v1")
    a("v_lshl_add_u32 v4, v2, 4, v4")
    a("v_add_u32 v4, s18, v4")
    a("s_lshr_b32 s19, s17, 3")
    a("s_lshl_b32 s18, s16, 2")
    a("s_add_u32 s18, s18, s19")
    a("s_lshl_b32 s18, s18, 9")
    a(f"s_add_u32 s18, s18, {WS_M}")
    a("v_lshlrev_b32 v5, 7, v3")
    a("v_lshl_add_u32 v5, v1, 5, v5")
    a("v_add_u32 v5, s18, v5")
    a("v_add_u32 v6, 16384, v5")
    a("s_waitcnt lgkmcnt(0)")
    a(f"global_load_dwordx4 v[8:11], v5, s[4:5] {LPOL}")
    a(f"global_load_dwordx4 v[12:15], v5, s[4:5] offset:16 {LPOL}")
    a(f"global_load_dwordx4 v[16:19], v6, s[4:5] {LPOL}")
    a(f"global_load_dwordx4 v[20:23], v6, s[4:5] offset:16 {LPOL}")
    for k in range(8):
        a(f"global_load_dwordx4 v[{24+4*k}:{27+4*k}], v4, s[4:5] offset:{k*256} {LPOL}")
    a("s_lshl_b32 s18, s19, 13")
    a("s_lshl_b32 s19, s16, 10")
    a("s_add_u32 s18, s18, s19")
    a("s_bfe_u32 s19, s17, 0x20001")
    a("s_lshl_b32 s19, s19, 6")
    a("s_add_u32 s18, s18, s19")
    a("s_and_b32 s19, s17, 1")
    a("s_lshl_b32 s19, s19, 3")
    a("s_add_u32 s18, s18, s19")
    a("v_lshlrev_b32 v3, 8, v3")
    a("v_lshrrev_b32 v2, 2, v2")
    a("v_lshl_add_u32 v3, v2, 1, v3")
    a("v_and_b32 v2, 1, v1")
    a("v_lshl_add_u32 v3, v2, 5, v3")
    a("v_lshrrev_b32 v2, 1, v1")
    a("v_lshl_add_u32 v3, v2, 4, v3")
    a("v_add_u32 v3, s18, v3")
    if STAMP:
        a(f"v_writelane_b32 v{vX}, s{sSt+2}, 10")
        a(f"v_writelane_b32 v{vX+1}, s{sSt+3}, 10")
        tick(11)
    a("s_waitcnt vmcnt(10)")
    a("v_max3_f32 v1, v8, v9, v10")
    a("v_max3_f32 v2, v11, v12, v13")
    a("v_max3_f32 v1, v1, v14, v15")
    a("v_max_f32 v1, v1, v2")
    a("v_mov_b32 v2, v1")
    a("s_nop 1")
    a("v_permlane32_swap_b32 v1, v2")
    a("s_nop 0")
    a("v_max_f32 v1, v1, v2")
    a("v_mov_b32 v2, v1")
    a("s_nop 1")
    a("v_permlane16_swap_b32 v1, v2")
    a("s_nop 0")
    a("v_max_f32 v1, v1, v2")
    for k in range(8):
        a(f"v_sub_f32 v{8+k}, v{8+k}, v1")
    for k in range(8):
        a(f"v_exp_f32 v{8+k}, v{8+k}")
    a("s_waitcnt vmcnt(8)")
    a("v_mul_f32 v1, v8, v16")
    for k in range(1, 8):
        a(f"v_fmac_f32 v1, v{8+k}, v{16+k}")
    a("v_mov_b32 v2, v1")
    a("s_nop 1")
    a("v_permlane32_swap_b32 v1, v2")
    a("s_nop 0")
    a("v_add_f32 v1, v1, v2")
    a("v_mov_b32 v2, v1")
    a("s_nop 1")
    a("v_permlane16_swap_b32 v1, v2")
    a("s_nop 0")
    a("v_add_f32 v1, v1, v2")
    a("v_rcp_f32 v1, v1")
    for k in range(8):
        a(f"s_waitcnt vmcnt({7-k})")
        for r in range(4):
            if k == 0:
                a(f"v_mul_f32 v{24+r}, v{24+r}, v8")
            else:
                a(f"v_fmac_f32 v{24+r}, v{24+4*k+r}, v{8+k}")
    a("s_nop 0")
    a("v_permlane32_swap_b32 v24, v25")
    a("v_permlane32_swap_b32 v26, v27")
    a("s_nop 0")
    a("v_add_f32 v24, v24, v25")
    a("v_add_f32 v26, v26, v27")
    a("s_nop 1")
    a("v_permlane16_swap_b32 v24, v26")
    a("s_nop 0")
    a("v_add_f32 v24, v24, v26")
    a("v_mul_f32 v24, v24, v1")
    a("v_cvt_pk_bf16_f32 v24, v24, v24")
    a(f"global_store_short v3, v24, s[6:7] {OPOL}")
    if STAMP:
        tick(12)
        a("s_waitcnt vmcnt(0)")
        tick(13)
        srd(sWS, 4, 1 << 28)
        flush_ticks(sWS, None)
    a.label("L_endb")
    a("s_endpgm")

    head = f"""; Paged (block-table) GQA decode attention.
; @launch kernel={NAME}_kernel grid=(256,1,1) block=(512,1,1) lds={LDS_BYTES}
; @launch kernel=combine_kernel grid=(256,1,1) block=(64,1,1) lds=0
.amdgcn_target "amdgcn-amd-amdhsa--gfx950"
.text
.globl {NAME}_kernel
.p2align 8
.type {NAME}_kernel,@function
"""
    def kd(name, nv, ns):
        return f""".p2align 6
.amdhsa_kernel {name}
  .amdhsa_next_free_vgpr {nv}
  .amdhsa_next_free_sgpr {ns}
  .amdhsa_accum_offset {(nv+3)//4*4}
  .amdhsa_group_segment_fixed_size 0
  .amdhsa_kernarg_size 64
  .amdhsa_user_sgpr_count 2
  .amdhsa_user_sgpr_kernarg_segment_ptr 1
  .amdhsa_system_sgpr_workgroup_id_x 1
.end_amdhsa_kernel
"""
    tail = '.section .rodata,"a"\n' + kd(NAME + "_kernel", NVGPR, 102) + kd("combine_kernel", 256 if STAMP else 56, 102 if STAMP else 24)
    return head + a.text() + tail

if __name__ == "__main__":
    opts = dict(kv.split("=", 1) for kv in sys.argv[2:])
    open(sys.argv[1], "w").write(gen(opts))
```

```python
import sys, re
def add(src, col, cmask, mode="max", zero=False):
    s = open(src).read()
    s = s.replace("; @launch grid=", "; @launch kernel=standalone__paged_block_table_kv_radixattention__decode_kernel grid=")
    lines = s.split("\n")
    idx = max(i for i, l in enumerate(lines) if "@launch" in l)
    lines.insert(idx + 1, "; @launch kernel=readout_kernel grid=(1,1,1) block=(64,1,1) lds=0")
    s = "\n".join(lines)
    L = []
    a = L.append
    a(".p2align 8\n.globl readout_kernel\n.type readout_kernel,@function\nreadout_kernel:")
    a("s_cmp_ge_u32 s2, 1\ns_cbranch_scc1 L_endr")
    a("s_memrealtime s[20:21]")
    a("s_load_dwordx2 s[4:5], s[0:1], 56")
    a("v_lshlrev_b32 v1, 7, v0")
    a(f"v_add_u32 v1, {16<<20}, v1")
    a("s_waitcnt lgkmcnt(0)")
    for k in range(32):
        a(f"global_load_dword v{8+k}, v1, s[4:5]")
        a(f"global_load_dword v{40+k}, v1, s[4:5] offset:{col*8}")
        a("v_add_u32 v1, 8192, v1")
    a("s_waitcnt vmcnt(0)")
    for k in range(64):
        a(f"v_sub_u32 v{8+k}, s20, v{8+k}")
    a("v_mov_b32 v2, v8")
    for k in range(1, 32):
        a(f"v_max_u32 v2, v2, v{8+k}")
    a("s_mov_b32 s6, 100000")
    if mode == "max":
        a("v_mov_b32 v3, v40")
        for k in range(1, 32):
            a(f"v_min_u32 v3, v3, v{40+k}")
        bad = "-1"
    else:
        a("v_mov_b32 v3, 0")
        for k in range(32):
            a(f"v_cmp_gt_u32 vcc, s6, v{40+k}\ns_nop 1\nv_cndmask_b32 v{40+k}, 0, v{40+k}, vcc\nv_max_u32 v3, v3, v{40+k}")
        bad = "0"
    a("v_bfe_u32 v4, v0, 3, 3")
    a(f"v_lshrrev_b32 v4, v4, {cmask}" if cmask <= 64 else f"s_mov_b32 s7, {cmask}\nv_lshrrev_b32 v4, v4, s7")
    a("v_and_b32 v4, 1, v4")
    a("v_cmp_eq_u32 vcc, 1, v4\ns_nop 1")
    a(f"v_cndmask_b32 v3, {bad}, v3, vcc")
    a("s_mov_b32 s8, 0")
    a(f"s_mov_b32 s9, {bad}")
    for l in range(64):
        a(f"v_readlane_b32 s10, v2, {l}\nv_readlane_b32 s11, v3, {l}\ns_max_u32 s8, s8, s10")
        a(("s_min_u32" if mode == "max" else "s_max_u32") + " s9, s9, s11")
    a("s_sub_u32 s20, s20, s8")
    a("s_sub_u32 s8, s8, s9")
    if zero:
        a("s_mov_b32 s8, 0")
    a("s_min_u32 s8, s8, 5000")
    a("s_lshl_b32 s8, s8, 3")
    a("s_add_u32 s20, s20, s8")
    a("s_add_u32 s20, s20, 4000")
    a("L_spinr:\ns_memrealtime s[22:23]\ns_waitcnt lgkmcnt(0)\ns_sub_u32 s22, s22, s20\ns_cmp_lt_i32 s22, 0\ns_cbranch_scc1 L_spinr")
    a("L_endr:\ns_endpgm")
    s = s.replace('.section .rodata,"a"\n', "\n".join(L) + '\n.section .rodata,"a"\n', 1)
    s += """.p2align 6
.amdhsa_kernel readout_kernel
  .amdhsa_next_free_vgpr 80
  .amdhsa_next_free_sgpr 32
  .amdhsa_accum_offset 80
  .amdhsa_group_segment_fixed_size 0
  .amdhsa_kernarg_size 64
  .amdhsa_user_sgpr_count 2
  .amdhsa_user_sgpr_kernarg_segment_ptr 1
  .amdhsa_system_sgpr_workgroup_id_x 1
.end_amdhsa_kernel
"""
    return s
if __name__ == "__main__":
    src, dst, col = sys.argv[1], sys.argv[2], sys.argv[3]
    cmask = int(sys.argv[4], 0) if len(sys.argv) > 4 else 255
    mode = sys.argv[5] if len(sys.argv) > 5 else "max"
    open(dst, "w").write(add(src, 0 if col == "z" else int(col), cmask, mode, col == "z"))
```

```python
import sys
from gen2 import Asm, head_of_wg, NAME

KV_BYTES = 1280 * 32768
WS_ML = 2 << 20
WS_EP = WS_ML + 65536
NEG = "0xf149f2ca"

def gen(opts):
    def pol(k, d):
        return opts.get(k, d).replace("+", " ").replace("def", "")
    POL = opts.get("pol", "nt")
    KPOL, VPOL = pol("kpol", POL), pol("vpol", POL)
    SPOL, LPOL, OPOL = pol("spol", "sc1"), pol("lpol", "sc1"), pol("opol", "def")
    PERM = opts.get("perm", "10543276")
    STAMP = opts.get("stamp", "0") == "1"
    DEFER = opts.get("defer", "1") == "1"
    PRIO = opts.get("prio", "0") == "1"
    FORCE = opts.get("force", "")

    a = Asm()
    INV = 131072
    MX = INV + 1024
    LS = MX + 512
    LDS_BYTES = LS + 512
    RS = 528

    vLane, vG, vN, vVo0, vVo1, vM, vL, vC = 1, 2, 3, 4, 5, 6, 7, 8
    vB4 = 9
    vKs = 10
    vKr = 14
    vT = 18
    vS = 28
    vBias = 44
    vP = 60
    vQ = 68
    vAcc = 84
    vK = 116
    vV = 180
    vOw, vOr, vWo, vMw, vTag, vLx = 244, 245, 246, 247, 248, 249
    vX = 252
    NVGPR = 256

    sK, sV, sQ, sWS = 20, 24, 28, 32
    sN, sNB, sNF = 36, 40, 44
    sH, sI, sW, sWb = 48, 49, 50, 51
    sP, sR, sLc = 52, 56, 60
    sU, sRnd, sSelLo, sSelHi, sSpecBad, sEp = 64, 65, 66, 67, 68, 69
    sRm = 70
    sCm = 78
    sT = 94
    sSt = 98
    sLo, sHi, sSpin, sT0, sT3, sG = 36, 37, 38, 39, 40, 41

    def tick(idx):
        if not STAMP:
            return
        a(f"s_memrealtime s[{sSt}:{sSt+1}]")
        a("s_waitcnt lgkmcnt(0)")
        a(f"v_writelane_b32 v{vX}, s{sSt}, {idx}")
        a(f"v_writelane_b32 v{vX+1}, s{sSt+1}, {idx}")
    def flush_ticks():
        if not STAMP:
            return
        a("s_mov_b64 exec, 0xffff")
        a(f"s_lshl_b32 s{sSt}, s2, 3")
        a(f"s_add_u32 s{sSt}, s{sSt}, s{sW}")
        a(f"s_lshl_b32 s{sSt}, s{sSt}, 7")
        a(f"s_add_u32 s{sSt}, s{sSt}, {16<<20}")
        a(f"v_mbcnt_lo_u32_b32 v{vX+2}, -1, 0")
        a(f"v_lshlrev_b32 v{vX+2}, 3, v{vX+2}")
        a(f"v_add_u32 v{vX+2}, s{sSt}, v{vX+2}")
        a(f"v_cmp_ne_u32 vcc, 0, v{vX}")
        a("s_and_b64 exec, exec, vcc")
        a(f"buffer_store_dwordx2 v[{vX}:{vX+1}], v{vX+2}, s[{sWS}:{sWS+3}], 0 offen")

    def srd(d, p, nbytes):
        a(f"s_mov_b32 s{d}, s{p}")
        a(f"s_and_b32 s{d+1}, s{p+1}, 0xffff")
        a(f"s_mov_b32 s{d+2}, {nbytes}")
        a(f"s_mov_b32 s{d+3}, 0x20000")
    def load_k(k):
        a(f"s_add_u32 m0, s{sWb}, {k*4096}")
        a(f"s_mov_b32 s{sK+2}, s{sR+k}")
        for q in range(4):
            a(f"buffer_load_dwordx4 v{vKs+q}, s[{sK}:{sK+3}], s{sP+k} offen offset:{q*1024} {KPOL} lds")
    def load_v(k):
        a(f"s_mov_b32 s{sV+2}, s{sR+k}")
        for i in range(4):
            r = vV + 16 * k + 4 * i
            a(f"buffer_load_dwordx4 v[{r}:{r+3}], v{vVo0 + (i>>1)}, s[{sV}:{sV+3}], s{sP+k} offen offset:{2048*(i&1)} {VPOL}")
    def load_q():
        for j in range(4):
            a(f"buffer_load_dwordx4 v[{vQ+4*j}:{vQ+4*j+3}], v{vT+6}, s[{sQ}:{sQ+3}], 0 offen offset:{64*j}")
    def pop(k):
        a(f"s_ff1_i32_b32 s{sT}, s{sU}")
        a(f"s_bitset0_b32 s{sU}, s{sT}")
        a(f"s_add_u32 s{sT+1}, s{sT}, 8")
        a(f"s_and_b32 s{sT+2}, s{sT+1}, 0x38")
        a(f"s_sub_u32 s{sT+2}, s{sI}, s{sT+2}")
        a(f"s_and_b32 s{sT+2}, s{sT+2}, 31")
        a(f"s_lshl_b32 s{sP+k}, s{sT+1}, 5")
        a(f"s_add_u32 s{sP+k}, s{sP+k}, s{sT+2}")
        a(f"s_lshl_b32 s{sP+k}, s{sP+k}, 15")
        a(f"s_lshl_b32 s{sLc+k}, s{sT+1}, 4")
        a(f"s_cmp_lt_i32 s{sT}, 0")
        a(f"s_cselect_b32 s{sR+k}, 0, {KV_BYTES}")
        a(f"s_cselect_b32 s{sLc+k}, {63*16}, s{sLc+k}")

    a.label(f"{NAME}_kernel")
    a("s_cmp_ge_u32 s2, 256")
    a("s_cbranch_scc1 L_end")
    a("s_load_dwordx16 s[4:19], s[0:1], 0")
    if STAMP:
        a(f"v_mov_b32 v{vX}, 0")
        a(f"v_mov_b32 v{vX+1}, 0")
        a(f"s_memrealtime s[{sSt+2}:{sSt+3}]")
    a(f"v_lshrrev_b32 v{vT}, 6, v0")
    a(f"v_and_b32 v{vLane}, 63, v0")
    a(f"v_readfirstlane_b32 s{sW}, v{vT}")
    head_of_wg(a, sH, PERM)
    a(f"s_lshr_b32 s{sI}, s2, 3")
    if FORCE == "late":
        a(f"s_cmp_lg_u32 s{sI}, 5")
        a("s_cbranch_scc1 L_notlate")
        a("s_movk_i32 s3, 200")
        a.label("L_latespin")
        a("s_sleep 8")
        a("s_sub_u32 s3, s3, 1")
        a("s_cmp_lg_u32 s3, 0")
        a("s_cbranch_scc1 L_latespin")
        a.label("L_notlate")
    a(f"v_lshrrev_b32 v{vG}, 4, v{vLane}")
    a(f"v_and_b32 v{vN}, 15, v{vLane}")
    a(f"v_lshlrev_b32 v{vT+1}, 2, v0")
    a(f"v_lshlrev_b32 v{vT+2}, 4, v{vLane}")
    a(f"v_add_u32 v{vT+2}, {INV}, v{vT+2}")
    for r in range(4):
        a(f"v_mov_b32 v{vS+r}, 0")
    a(f"ds_write_b128 v{vT+2}, v[{vS}:{vS+3}]")
    a(f"s_lshl_b32 s{sT}, s{sH}, 8")
    a(f"s_lshl_b32 s{sWb}, s{sW}, 14")
    a(f"v_xor_b32 v{vT+3}, v{vN}, v{vG}")
    a(f"v_lshlrev_b32 v{vT+3}, 4, v{vT+3}")
    a(f"v_lshlrev_b32 v{vT+4}, 11, v{vG}")
    a(f"v_add_u32 v{vT+4}, s{sT}, v{vT+4}")
    for q in range(4):
        if q == 0:
            a(f"v_add_u32 v{vKs}, v{vT+3}, v{vT+4}")
        else:
            a(f"v_xor_b32 v{vKs+q}, {64*q}, v{vT+3}")
            a(f"v_add_u32 v{vT+4}, {8192-1024}, v{vT+4}")
            a(f"v_add_u32 v{vKs+q}, v{vKs+q}, v{vT+4}")
    a(f"v_lshlrev_b32 v{vWo}, 13, v{vG}")
    a(f"v_lshl_add_u32 v{vWo}, v{vN}, 4, v{vWo}")
    a(f"v_add_u32 v{vVo0}, s{sT}, v{vWo}")
    a(f"v_add_u32 v{vVo1}, 4096, v{vVo0}")
    a(f"v_lshrrev_b32 v{vT+5}, 2, v{vN}")
    a(f"v_and_b32 v{vT+6}, 3, v{vN}")
    a(f"v_lshlrev_b32 v{vT+6}, 8, v{vT+6}")
    a(f"v_lshl_add_u32 v{vT+6}, v{vT+5}, 13, v{vT+6}")
    a(f"v_lshl_add_u32 v{vT+6}, v{vG}, 4, v{vT+6}")
    a(f"s_lshl_b32 s{sT+1}, s{sH}, 10")
    a(f"v_add_u32 v{vT+6}, s{sT+1}, v{vT+6}")
    a(f"s_lshl_b32 s{sP}, s{sW}, 5")
    a(f"s_add_u32 s{sP}, s{sP}, s{sI}")
    a(f"s_lshl_b32 s{sP}, s{sP}, 15")
    a(f"s_lshl_b32 s{sLc}, s{sW}, 4")
    a(f"s_mov_b32 s{sR}, {KV_BYTES}")
    a(f"s_mov_b32 s{sK+3}, 0x20000")
    a(f"s_mov_b32 s{sV+3}, 0x20000")
    a(f"s_mov_b32 s{sQ+2}, 32768")
    a(f"s_mov_b32 s{sQ+3}, 0x20000")
    a(f"s_lshl_b32 s{sT+3}, s{sH}, 7")
    a(f"s_add_u32 s{sT+3}, s{sT+3}, {WS_EP}")
    a("s_waitcnt lgkmcnt(0)")
    a("s_add_u32 s10, s10, 4096")
    a("s_addc_u32 s11, s11, 0")
    for b in range(4):
        a(f"global_load_dword v{vBias+b}, v{vT+1}, s[10:11] offset:{b*2048-4096}")
    a(f"s_load_dwordx4 s[{sN}:{sN+3}], s[12:13], 0")
    a(f"s_load_dword s{sEp}, s[18:19], s{sT+3}")
    a(f"s_mov_b32 s{sK}, s6")
    a(f"s_and_b32 s{sK+1}, s7, 0xffff")
    a(f"s_mov_b32 s{sV}, s8")
    a(f"s_and_b32 s{sV+1}, s9, 0xffff")
    a(f"s_mov_b32 s{sQ}, s4")
    a(f"s_and_b32 s{sQ+1}, s5, 0xffff")
    if DEFER:
        a(f"s_cmp_ge_u32 s{sW}, 4")
    a("s_barrier")
    if DEFER:
        a("s_cbranch_scc1 L_nospec")
    if PRIO:
        a("s_setprio 1")
    load_k(0)
    load_q()
    load_v(0)
    a.label("L_nospec")
    if STAMP:
        a(f"v_writelane_b32 v{vX}, s{sSt+2}, 0")
        a(f"v_writelane_b32 v{vX+1}, s{sSt+3}, 0")
    tick(1)
    srd(sWS, 18, 1 << 28)
    a(f"s_mov_b32 s{sSelLo}, 0x05040100")
    a(f"s_mov_b32 s{sSelHi}, 0x07060302")
    a(f"s_lshr_b32 s{sRnd}, s{sW}, 2")
    a(f"v_lshlrev_b32 v{vT+4}, 8, v{vN}")
    a(f"v_add_u32 v{vT+4}, s{sWb}, v{vT+4}")
    for j in range(4):
        if j == 0:
            a(f"v_add_u32 v{vKr}, v{vT+3}, v{vT+4}")
        else:
            a(f"v_xor_b32 v{vKr+j}, {64*j}, v{vT+3}")
            a(f"v_add_u32 v{vKr+j}, v{vKr+j}, v{vT+4}")
    a(f"v_lshlrev_b32 v{vB4}, 2, v{vT+5}")
    a(f"v_add_u32 v{vB4}, {INV}, v{vB4}")
    a(f"v_mov_b32 v{vM}, {NEG}")
    a(f"v_mov_b32 v{vL}, 0")
    a(f"v_mov_b32 v{vLx}, 0")
    a(f"v_mov_b32 v{vT+8}, 0")
    a(f"v_mul_u32_u24 v{vOw}, {RS}, v{vN}")
    a(f"v_lshl_add_u32 v{vOw}, v{vG}, 7, v{vOw}")
    a(f"v_add_u32 v{vOw}, s{sWb}, v{vOw}")
    a(f"s_mul_i32 s{sT}, s{sW}, {2*RS}")
    a(f"s_add_u32 s{sT}, s{sT}, 0x10000")
    a(f"v_lshrrev_b32 v{vOr}, 5, v{vLane}")
    a(f"v_add_u32 v{vOr}, v{vOr}, v{vLane}")
    a(f"v_lshlrev_b32 v{vOr}, 4, v{vOr}")
    a(f"v_add_u32 v{vOr}, s{sT}, v{vOr}")
    a(f"s_lshl_b32 s{sT}, s{sH}, 3")
    a(f"s_add_u32 s{sT}, s{sT}, s{sW}")
    a(f"s_lshl_b32 s{sT}, s{sT}, 15")
    a(f"s_lshl_b32 s{sT+1}, s{sI}, 8")
    a(f"s_add_u32 s{sT}, s{sT}, s{sT+1}")
    a(f"v_add_u32 v{vWo}, s{sT}, v{vWo}")
    a(f"s_lshl_b32 s{sT}, s{sW}, 2")
    a(f"s_add_u32 s{sT}, s{sT}, {MX}")
    a(f"v_lshlrev_b32 v{vMw}, 5, v{vN}")
    a(f"v_add_u32 v{vMw}, s{sT}, v{vMw}")
    a("s_waitcnt lgkmcnt(0)")
    a(f"s_add_u32 s{sEp}, s{sEp}, 1")
    a(f"s_lshr_b32 s{sT}, s{sEp}, 8")
    a(f"s_add_u32 s{sT}, s{sT}, 0x5a")
    a(f"v_mad_u32_u24 v{vTag}, v{vN}, 37, s{sEp}")
    a(f"v_mad_u32_u24 v{vT+4}, v{vN}, 59, s{sT}")
    a(f"s_mov_b32 s{sT}, 0x0c0c0400")
    a(f"v_perm_b32 v{vTag}, v{vT+4}, v{vTag}, s{sT}")
    a(f"v_mov_b32 v{vC}, 0x3e0293ee")
    for b in range(4):
        a(f"s_min_i32 s{sT}, s{sN+b}, 0x2000")
        a(f"s_cmp_lt_i32 s{sN+b}, 1")
        a(f"s_cselect_b32 s{sN+b}, 0x2000, s{sT}")
        a(f"s_cselect_b32 s{sT}, {hex(0x000f000f << (4*b))}, 0")
        if b == 0:
            a(f"s_mov_b32 s{sCm}, s{sT}")
        else:
            a(f"s_or_b32 s{sCm}, s{sCm}, s{sT}")
        a(f"s_add_u32 s{sNB+b}, s{sN+b}, 15")
        a(f"s_lshr_b32 s{sNB+b}, s{sNB+b}, 4")
        a(f"s_lshr_b32 s{sNF+b}, s{sN+b}, 4")
    a(f"s_mov_b32 s{sCm+1}, s{sCm}")
    a(f"v_cndmask_b32 v{vC}, v{vC}, 0, s[{sCm}:{sCm+1}]")
    a(f"s_and_b32 s{sT}, s{sN}, 15")
    for b in range(1, 4):
        a(f"s_and_b32 s{sT+1}, s{sN+b}, 15")
        a(f"s_lshl_b32 s{sT+1}, s{sT+1}, {4*b}")
        a(f"s_or_b32 s{sT}, s{sT}, s{sT+1}")
    a(f"v_and_b32 v{vT+4}, 12, v{vN}")
    a(f"v_lshrrev_b32 v{vT+4}, v{vT+4}, s{sT}")
    a(f"v_and_b32 v{vT+4}, 15, v{vT+4}")
    a(f"v_lshlrev_b32 v{vT+5}, 2, v{vG}")
    a(f"v_sub_u32 v{vT+4}, v{vT+4}, v{vT+5}")
    for r in range(4):
        a(f"v_cmp_lt_i32 s[{sRm+2*r}:{sRm+2*r+1}], {r}, v{vT+4}")
    a(f"v_mov_b32 v{vT+7}, 0x10000")
    a(f"s_movk_i32 s{sT+2}, 1280")
    a("s_waitcnt vmcnt(12)")
    if DEFER:
        a(f"s_cmp_lt_u32 s{sW}, 4")
        a("s_cbranch_scc1 L_tbl")
        a("s_waitcnt vmcnt(0)")
        a.label("L_tbl")
    tick(2)
    for b in range(4):
        p = vBias + b
        a(f"v_lshrrev_b32 v{vT+4}, 5, v{p}")
        a(f"v_and_b32 v{vT+5}, 0x38, v{vT+4}")
        a(f"v_add_u32 v{vT+5}, v{vT+5}, v{p}")
        a(f"v_and_b32 v{vT+5}, 31, v{vT+5}")
        a(f"v_cmp_gt_u32 vcc, s{sNF+b}, v0")
        a(f"v_cmp_eq_u32 s[{sCm}:{sCm+1}], s{sI}, v{vT+5}")
        a(f"v_cmp_gt_u32 s[{sCm+2}:{sCm+3}], s{sNB+b}, v0")
        a(f"v_cmp_gt_u32 s[{sCm+4}:{sCm+5}], s{sT+2}, v{p}")
        a(f"v_cndmask_b32 v{vT+5}, v{vT+7}, 1, vcc")
        a(f"v_lshlrev_b32 v{vT+4}, 4, v{vT+4}")
        a(f"s_and_b64 s[{sCm}:{sCm+1}], s[{sCm}:{sCm+1}], s[{sCm+2}:{sCm+3}]")
        a(f"v_add_u32 v{vT+4}, {INV + 4*b}, v{vT+4}")
        a(f"s_and_b64 exec, s[{sCm}:{sCm+1}], s[{sCm+4}:{sCm+5}]")
        a(f"ds_add_u32 v{vT+4}, v{vT+5}")
        a("s_mov_b64 exec, -1")
    a("s_waitcnt lgkmcnt(0)")
    a("s_barrier")
    a(f"ds_read_b128 v[{vS}:{vS+3}], v{vT+2}")
    a("s_waitcnt lgkmcnt(0)")
    a(f"v_or3_b32 v{vS}, v{vS}, v{vS+1}, v{vS+2}")
    a(f"v_or_b32 v{vS}, v{vS}, v{vS+3}")
    a(f"v_cmp_ne_u32 vcc, 0, v{vS}")
    a("s_nop 0")
    a(f"s_bitcmp0_b32 vcc_lo, s{sW}")
    a(f"s_cselect_b32 s{sSpecBad}, 1, 0")
    a(f"s_lshr_b64 s[{sCm}:{sCm+1}], vcc, 8")
    a(f"v_mbcnt_lo_u32_b32 v{vT+4}, s{sCm}, 0")
    a(f"v_cmp_gt_u32 vcc, 24, v{vT+4}")
    a(f"v_and_b32 v{vT+5}, 3, v{vT+4}")
    a(f"v_and_b32 v{vT+4}, 7, v{vT+4}")
    a(f"v_cndmask_b32 v{vT+4}, v{vT+5}, v{vT+4}, vcc")
    a(f"v_cmp_eq_u32 vcc, s{sW}, v{vT+4}")
    a("s_nop 0")
    a(f"s_and_b32 s{sU}, vcc_lo, s{sCm}")
    tick(3)
    if DEFER:
        a(f"s_cmp_lt_u32 s{sW}, 4")
        a("s_cbranch_scc1 L_notb")
        load_k(0)
        load_q()
        load_v(0)
        a.label("L_notb")
    a(f"s_cmp_lg_u32 s{sW}, 0")
    a("s_cbranch_scc1 L_round")
    a(f"s_lshl_b32 s{sT}, s{sH}, 5")
    a(f"v_mov_b32 v{vT+4}, s{sT}")
    a(f"v_mov_b32 v{vT+5}, 1")
    a("s_mov_b64 exec, 1")
    a(f"global_atomic_add v{vT+4}, v{vT+5}, s[16:17]")
    a("s_mov_b64 exec, -1")

    a.label("L_round")
    for k in range(1, 4):
        pop(k)
        load_k(k)
    for k in range(1, 4):
        load_v(k)
    tick(4)
    for k in range(4):
        a(f"v_add_u32 v{vT+k}, s{sLc+k}, v{vB4}")
        a(f"ds_read_b32 v{vT+k}, v{vT+k}")
    a(f"s_cmp_lg_u32 s{sRnd}, 0")
    a("s_cbranch_scc1 L_noinit")
    for r in range(32):
        a(f"v_mov_b32 v{vAcc+r}, 0")
    a.label("L_noinit")
    a("s_waitcnt lgkmcnt(0)")
    for k in range(4):
        a(f"v_and_b32 v{vT+4}, 0xffff, v{vT+k}")
        a(f"v_lshrrev_b32 v{vT+5}, 16, v{vT+k}")
        a(f"v_add_u32 v{vT+5}, v{vT+5}, v{vT+4}")
        a(f"v_cvt_f32_u32 v{vT+4}, v{vT+4}")
        a(f"v_cvt_f32_u32 v{vT+5}, v{vT+5}")
        a(f"v_log_f32 v{vT+4}, v{vT+4}")
        a(f"v_log_f32 v{vT+5}, v{vT+5}")
        a("s_nop 0")
        for r in range(4):
            a(f"v_cndmask_b32 v{vBias+4*k+r}, v{vT+4}, v{vT+5}, s[{sRm+2*r}:{sRm+2*r+1}]")
    for k in range(4):
        a(f"s_waitcnt vmcnt({24 - 4*k})")
        for j in range(4):
            r = vK + 16 * k + 4 * j
            a(f"ds_read_b128 v[{r}:{r+3}], v{vKr+j} offset:{k*4096}")
        if k > 0:
            kk = k - 1
            a("s_waitcnt lgkmcnt(4)")
            for j in range(4):
                r = vK + 16 * kk + 4 * j
                c = "0" if j == 0 else f"v[{vS+4*kk}:{vS+4*kk+3}]"
                a(f"v_mfma_f32_16x16x32_bf16 v[{vS+4*kk}:{vS+4*kk+3}], v[{r}:{r+3}], v[{vQ+4*j}:{vQ+4*j+3}], {c}")
    for j in range(4):
        r = vK + 48 + 4 * j
        c = "0" if j == 0 else f"v[{vS+12}:{vS+15}]"
        a(f"s_waitcnt lgkmcnt({3-j})")
        a(f"v_mfma_f32_16x16x32_bf16 v[{vS+12}:{vS+15}], v[{r}:{r+3}], v[{vQ+4*j}:{vQ+4*j+3}], {c}")
    a(f"s_cmp_eq_u32 s{sSpecBad}, 0")
    a("s_cbranch_scc1 L_specok")
    for r in range(4):
        a(f"v_mov_b32 v{vS+r}, 0")
    for r in range(16):
        a(f"v_mov_b32 v{vV+r}, 0")
    a(f"s_mov_b32 s{sSpecBad}, 0")
    a.label("L_specok")
    for e in range(16):
        a(f"v_fma_f32 v{vS+e}, v{vS+e}, v{vC}, v{vBias+e}")
    a(f"v_max3_f32 v{vT}, v{vS}, v{vS+1}, v{vS+2}")
    a(f"v_max3_f32 v{vT+1}, v{vS+3}, v{vS+4}, v{vS+5}")
    a(f"v_max3_f32 v{vT}, v{vT}, v{vS+6}, v{vS+7}")
    a(f"v_max3_f32 v{vT+1}, v{vT+1}, v{vS+8}, v{vS+9}")
    a(f"v_max3_f32 v{vT}, v{vT}, v{vS+10}, v{vS+11}")
    a(f"v_max3_f32 v{vT+1}, v{vT+1}, v{vS+12}, v{vS+13}")
    a(f"v_max3_f32 v{vT}, v{vT}, v{vS+14}, v{vS+15}")
    a(f"v_max3_f32 v{vT}, v{vT}, v{vT+1}, v{vM}")
    a(f"v_mov_b32 v{vT+1}, v{vT}")
    a("s_nop 1")
    a(f"v_permlane32_swap_b32 v{vT}, v{vT+1}")
    a("s_nop 0")
    a(f"v_max_f32 v{vT}, v{vT}, v{vT+1}")
    a(f"v_mov_b32 v{vT+1}, v{vT}")
    a("s_nop 1")
    a(f"v_permlane16_swap_b32 v{vT}, v{vT+1}")
    a(f"s_cmp_eq_u32 s{sRnd}, 0")
    a(f"v_max_f32 v{vT}, v{vT}, v{vT+1}")
    a("s_cbranch_scc1 L_join")
    a(f"s_cmp_lt_u32 s{sW}, 4")
    a("s_cbranch_scc1 L_resc")
    a(f"ds_write_b32 v{vMw}, v{vT}")
    a(f"v_and_b32 v{vT+2}, 0xffffffe0, v{vMw}")
    a(f"v_subrev_u32 v{vT+3}, 16, v{vMw}")
    a(f"v_subrev_u32 v{vT+4}, 0x10000, v{vOw}")
    a("s_waitcnt lgkmcnt(0)")
    a("s_barrier")
    a(f"ds_read_b128 v[{vBias}:{vBias+3}], v{vT+2}")
    a(f"ds_read_b128 v[{vBias+4}:{vBias+7}], v{vT+2} offset:16")
    a(f"ds_read_b32 v{vM}, v{vT+3}")
    a(f"ds_read_b32 v{vLx}, v{vT+3} offset:512")
    for j in range(8):
        a(f"ds_read_b128 v[{vAcc+4*j}:{vAcc+4*j+3}], v{vT+4} offset:{j*16}")
    a("s_waitcnt lgkmcnt(8)")
    a(f"v_max3_f32 v{vT}, v{vBias}, v{vBias+1}, v{vBias+2}")
    a(f"v_max3_f32 v{vT+1}, v{vBias+3}, v{vBias+4}, v{vBias+5}")
    a(f"v_max3_f32 v{vT}, v{vT}, v{vBias+6}, v{vBias+7}")
    a(f"v_max_f32 v{vT}, v{vT}, v{vT+1}")
    a("s_waitcnt lgkmcnt(0)")
    a.label("L_resc")
    a(f"v_sub_f32 v{vT+2}, v{vM}, v{vT}")
    a(f"v_exp_f32 v{vT+2}, v{vT+2}")
    a("s_nop 0")
    a(f"v_mul_f32 v{vL}, v{vL}, v{vT+2}")
    a(f"v_mul_f32 v{vLx}, v{vLx}, v{vT+2}")
    for r in range(0, 32, 2):
        a(f"v_pk_mul_f32 v[{vAcc+r}:{vAcc+r+1}], v[{vAcc+r}:{vAcc+r+1}], v[{vT+2}:{vT+3}] op_sel_hi:[1,0]")
    a.label("L_join")
    a(f"v_mov_b32 v{vM}, v{vT}")
    for e in range(16):
        a(f"v_sub_f32 v{vS+e}, v{vS+e}, v{vT}")
    for e in range(16):
        a(f"v_exp_f32 v{vS+e}, v{vS+e}")
    for e in range(8):
        a(f"v_cvt_pk_bf16_f32 v{vP+e}, v{vS+2*e}, v{vS+2*e+1}")
    for e in range(0, 16, 2):
        a(f"v_add_f32 v{vS+e}, v{vS+e}, v{vS+e+1}")
    for e in range(0, 16, 4):
        a(f"v_add_f32 v{vS+e}, v{vS+e}, v{vS+e+2}")
    a(f"v_add_f32 v{vS}, v{vS}, v{vS+4}")
    a(f"v_add_f32 v{vS+8}, v{vS+8}, v{vS+12}")
    a(f"v_add_f32 v{vS}, v{vS}, v{vS+8}")
    a(f"v_add_f32 v{vL}, v{vL}, v{vS}")
    a(f"v_mov_b32 v{vT}, v{vL}")
    a(f"v_mov_b32 v{vT+1}, v{vL}")
    a(f"ds_write_b32 v{vMw}, v{vM}")
    a("s_nop 0")
    a(f"v_permlane32_swap_b32 v{vT}, v{vT+1}")
    a("s_nop 0")
    a(f"v_add_f32 v{vT}, v{vT}, v{vT+1}")
    a(f"v_mov_b32 v{vT+1}, v{vT}")
    a("s_nop 1")
    a(f"v_permlane16_swap_b32 v{vT}, v{vT+1}")
    a("s_nop 0")
    a(f"v_add_f32 v{vT}, v{vT}, v{vT+1}")
    a(f"v_add_f32 v{vT}, v{vT}, v{vLx}")
    a(f"s_cmp_lt_u32 s{sW}, 4")
    a(f"ds_write_b32 v{vMw}, v{vT} offset:512")
    a("s_cbranch_scc1 L_pv")
    a("s_waitcnt lgkmcnt(0)")
    a("s_barrier")
    a.label("L_pv")
    tick(5)
    for t in range(2):
        vt = vK + 32 * t
        for p in range(4):
            rem = 15 - (8 * t + 2 * p + 1)
            if rem < 12:
                a(f"s_waitcnt vmcnt({rem})")
            r0 = vV + 32 * t + 8 * p
            r1 = r0 + 4
            for w in range(4):
                a(f"v_perm_b32 v{vt + 4*(2*w) + p}, v{r1+w}, v{r0+w}, s{sSelLo}")
                a(f"v_perm_b32 v{vt + 4*(2*w+1) + p}, v{r1+w}, v{r0+w}, s{sSelHi}")
        for j in range(8):
            D = f"v[{vAcc+4*j}:{vAcc+4*j+3}]"
            a(f"v_mfma_f32_16x16x32_bf16 {D}, v[{vt+4*j}:{vt+4*j+3}], v[{vP+4*t}:{vP+4*t+3}], {D}")
    a(f"s_cmp_eq_u32 s{sU}, 0")
    a("s_cbranch_scc0 L_more")
    tick(6)
    for j in range(8):
        a(f"ds_write_b128 v{vOw}, v[{vAcc+4*j}:{vAcc+4*j+3}] offset:{j*16}")
    a(f"s_mov_b32 s{sT0}, 0x07060500")
    a(f"s_mov_b32 s{sT3}, 0x07060501")
    a(f"s_cmp_ge_u32 s{sW}, 4")
    a("s_waitcnt lgkmcnt(0)")
    a("s_cbranch_scc1 L_y")
    a(f"s_cmp_lg_u32 s{sW}, 0")
    a("s_cbranch_scc1 L_a123")
    a(f"s_lshl_b32 s{sT}, s{sH}, 5")
    a(f"v_mov_b32 v{vT+4}, s{sT}")
    a(f"global_load_dword v{vT+5}, v{vT+4}, s[16:17] sc1")
    vOa, vMa, vOut = vT + 6, vT + 7, vT + 8
    a(f"v_lshlrev_b32 v{vOa}, 11, v{vG}")
    a(f"v_lshl_add_u32 v{vOa}, v{vN}, 4, v{vOa}")
    a(f"v_and_b32 v{vT}, 7, v{vN}")
    a(f"v_lshl_add_u32 v{vMa}, v{vG}, 3, v{vT}")
    a(f"v_lshlrev_b32 v{vMa}, 4, v{vMa}")
    a(f"v_lshlrev_b32 v{vOut}, 1, v{vT}")
    a(f"v_lshrrev_b32 v{vT}, 3, v{vN}")
    a(f"v_lshl_add_u32 v{vOut}, v{vT}, 6, v{vOut}")
    a(f"v_and_b32 v{vT}, 1, v{vG}")
    a(f"v_lshl_add_u32 v{vOut}, v{vT}, 5, v{vOut}")
    a(f"v_lshrrev_b32 v{vT}, 1, v{vG}")
    a(f"v_lshl_add_u32 v{vOut}, v{vT}, 4, v{vOut}")
    srd(sQ, 14, 32768)
    a(f"s_lshl_b32 s{sT}, s{sH}, 13")
    a(f"s_lshl_b32 s{sT+1}, s{sI}, 4")
    a(f"s_add_u32 s{sT}, s{sT}, s{sT+1}")
    a(f"s_add_u32 s{sT}, s{sT}, {WS_ML}")
    a(f"v_lshlrev_b32 v{vT+1}, 9, v{vN}")
    a(f"v_add_u32 v{vT+1}, s{sT}, v{vT+1}")
    a(f"s_not_b32 s{sG}, s{sEp}")
    a(f"v_mov_b32 v{vS+2}, s{sEp}")
    a(f"v_mov_b32 v{vS+3}, s{sG}")
    a(f"s_mov_b32 s{sSpin}, 0")
    a("s_barrier")
    a("s_barrier")
    a(f"ds_read_b32 v{vS}, v{vMw} offset:16")
    a(f"ds_read_b128 v[{vS+4}:{vS+7}], v{vMw} offset:528")
    a("s_waitcnt lgkmcnt(0)")
    a(f"v_add_f32 v{vS+4}, v{vS+4}, v{vS+5}")
    a(f"v_add_f32 v{vS+6}, v{vS+6}, v{vS+7}")
    a(f"v_add_f32 v{vS+1}, v{vS+4}, v{vS+6}")
    a("s_mov_b64 exec, 0xffff")
    a(f"buffer_store_dwordx4 v[{vS}:{vS+3}], v{vT+1}, s[{sWS}:{sWS+3}], 0 offen {SPOL}")
    a("s_mov_b64 exec, -1")
    a("s_waitcnt vmcnt(1)")
    a(f"v_readfirstlane_b32 s{sT}, v{vT+5}")
    a(f"s_mov_b32 s{sLo}, s{sI}")
    a(f"s_add_u32 s{sHi}, s{sI}, 1")
    if FORCE == "abandon":
        a(f"s_bitcmp1_b32 s{sI}, 0")
        a(f"s_cselect_b32 s{sT}, 0, s{sT}")
    if FORCE == "all":
        a(f"s_or_b32 s{sT}, s{sT}, 0x10000")
    a(f"s_cmp_eq_u32 s{sT}, 32")
    a("s_cbranch_scc1 L_y")
    a(f"s_and_b32 s{sT+1}, s{sT}, 0xffff")
    a(f"s_cmp_eq_u32 s{sT+1}, 32")
    a("s_cbranch_scc1 L_all")
    a(f"v_mov_b32 v{vT+5}, 0x10000")
    a("s_mov_b64 exec, 1")
    a(f"global_atomic_add v{vT+5}, v{vT+4}, v{vT+5}, s[16:17] sc0")
    a("s_waitcnt vmcnt(0)")
    a("s_mov_b64 exec, -1")
    a(f"v_readfirstlane_b32 s{sT}, v{vT+5}")
    a("s_nop 0")
    a(f"s_cmp_eq_u32 s{sT}, 32")
    a("s_cbranch_scc1 L_y")
    a(f"s_and_b32 s{sT+1}, s{sT}, 0xffff")
    a(f"s_cmp_eq_u32 s{sT+1}, 32")
    a("s_cbranch_scc1 L_all")
    a(f"s_mov_b32 s{sHi}, s{sLo}")
    a("s_branch L_y")
    a.label("L_all")
    a(f"s_mov_b32 s{sLo}, 0")
    a(f"s_mov_b32 s{sHi}, 32")
    a("s_branch L_y")
    a.label("L_more")
    pop(0)
    load_k(0)
    load_v(0)
    a(f"s_mov_b32 s{sRnd}, 1")
    a("s_branch L_round")
    a.label("L_a123")
    a("s_barrier")
    a("s_barrier")
    a.label("L_y")
    a("s_barrier")
    tick(7)
    R0 = vK
    for w in range(4):
        a(f"ds_read_b128 v[{R0+4*w}:{R0+4*w+3}], v{vOr} offset:{w*16384}")
    a("s_waitcnt lgkmcnt(2)")
    a(f"v_pk_add_f32 v[{R0}:{R0+1}], v[{R0}:{R0+1}], v[{R0+4}:{R0+5}]")
    a(f"v_pk_add_f32 v[{R0+2}:{R0+3}], v[{R0+2}:{R0+3}], v[{R0+6}:{R0+7}]")
    a("s_waitcnt lgkmcnt(0)")
    a(f"v_pk_add_f32 v[{R0+8}:{R0+9}], v[{R0+8}:{R0+9}], v[{R0+12}:{R0+13}]")
    a(f"v_pk_add_f32 v[{R0+10}:{R0+11}], v[{R0+10}:{R0+11}], v[{R0+14}:{R0+15}]")
    a(f"v_pk_add_f32 v[{R0}:{R0+1}], v[{R0}:{R0+1}], v[{R0+8}:{R0+9}]")
    a(f"v_pk_add_f32 v[{R0+2}:{R0+3}], v[{R0+2}:{R0+3}], v[{R0+10}:{R0+11}]")
    a(f"v_perm_b32 v{R0}, v{R0}, v{vTag}, s{sT0}")
    a(f"v_perm_b32 v{R0+3}, v{R0+3}, v{vTag}, s{sT3}")
    a(f"s_cmp_lg_u32 s{sW}, 0")
    a(f"buffer_store_dwordx4 v[{R0}:{R0+3}], v{vWo}, s[{sWS}:{sWS+3}], 0 offen {SPOL}")
    tick(8)
    a("s_cbranch_scc1 L_fin")
    FO = vV
    FM = vS
    a(f"s_mov_b32 s{sT3}, 0x0c0c0400")
    a.label("L_slice")
    a(f"s_cmp_ge_u32 s{sLo}, s{sHi}")
    a("s_cbranch_scc1 L_fin")
    a(f"s_lshl_b32 s{sT}, s{sH}, 5")
    a(f"s_add_u32 s{sT}, s{sT}, s{sLo}")
    a(f"s_lshr_b32 s{sT+1}, s{sT}, 1")
    a(f"s_lshl_b32 s{sT+1}, s{sT+1}, 9")
    a(f"s_add_u32 s{sT+1}, s{sT+1}, {WS_ML}")
    a(f"s_lshl_b32 s{sT}, s{sT}, 13")
    a(f"buffer_load_dwordx4 v[{FM}:{FM+3}], v{vMa}, s[{sWS}:{sWS+3}], s{sT+1} offen {LPOL}")
    def o_loads():
        for k in range(8):
            a(f"buffer_load_dwordx4 v[{FO+4*k}:{FO+4*k+3}], v{vOa}, s[{sWS}:{sWS+3}], s{sT} offen offset:{k*256} {LPOL}")
    o_loads()
    a(f"s_lshr_b32 s{sT+2}, s{sLo}, 3")
    a(f"s_lshl_b32 s{sT+2}, s{sT+2}, 13")
    a(f"s_and_b32 s{sT+3}, s{sLo}, 7")
    a(f"s_lshl_b32 s{sT+3}, s{sT+3}, 7")
    a(f"s_add_u32 s{sT+2}, s{sT+2}, s{sT+3}")
    a(f"s_lshl_b32 s{sT+3}, s{sH}, 10")
    a(f"s_add_u32 s{sT+2}, s{sT+2}, s{sT+3}")
    a("s_waitcnt vmcnt(8)")
    a.label("L_p1")
    a(f"v_cmp_ne_u32 vcc, s{sEp}, v{FM+2}")
    a(f"v_cmp_ne_u32 s[{sCm}:{sCm+1}], s{sG}, v{FM+3}")
    a("s_nop 0")
    a(f"s_or_b64 vcc, vcc, s[{sCm}:{sCm+1}]")
    a("s_cbranch_scc0 L_w")
    a(f"buffer_load_dwordx4 v[{FM}:{FM+3}], v{vMa}, s[{sWS}:{sWS+3}], s{sT+1} offen {LPOL}")
    a(f"s_add_u32 s{sSpin}, s{sSpin}, 1")
    a(f"s_cmp_lt_u32 s{sSpin}, 0x100000")
    a("s_waitcnt vmcnt(0)")
    a("s_cbranch_scc1 L_p1")
    a("s_branch L_fin")
    a.label("L_w")
    dpp = "row_mask:0xf bank_mask:0xf"
    a(f"v_max_f32_dpp v{vT}, v{FM}, v{FM} row_ror:1 {dpp}")
    a("s_nop 1")
    a(f"v_max_f32_dpp v{vT}, v{vT}, v{vT} row_ror:2 {dpp}")
    a("s_nop 1")
    a(f"v_max_f32_dpp v{vT}, v{vT}, v{vT} row_ror:4 {dpp}")
    a(f"v_mov_b32 v{vT+1}, v{vT}")
    a("s_nop 1")
    a(f"v_permlane32_swap_b32 v{vT}, v{vT+1}")
    a("s_nop 0")
    a(f"v_max_f32 v{vT}, v{vT}, v{vT+1}")
    a(f"v_mov_b32 v{vT+1}, v{vT}")
    a("s_nop 1")
    a(f"v_permlane16_swap_b32 v{vT}, v{vT+1}")
    a("s_nop 0")
    a(f"v_max_f32 v{vT}, v{vT}, v{vT+1}")
    a(f"v_sub_f32 v{FM}, v{FM}, v{vT}")
    a(f"v_exp_f32 v{FM}, v{FM}")
    a("s_nop 0")
    a(f"v_mul_f32 v{vT}, v{FM}, v{FM+1}")
    a("s_nop 1")
    a(f"v_add_f32_dpp v{vT}, v{vT}, v{vT} row_ror:1 {dpp}")
    a("s_nop 1")
    a(f"v_add_f32_dpp v{vT}, v{vT}, v{vT} row_ror:2 {dpp}")
    a("s_nop 1")
    a(f"v_add_f32_dpp v{vT}, v{vT}, v{vT} row_ror:4 {dpp}")
    a(f"v_mov_b32 v{vT+1}, v{vT}")
    a("s_nop 1")
    a(f"v_permlane32_swap_b32 v{vT}, v{vT+1}")
    a("s_nop 0")
    a(f"v_add_f32 v{vT}, v{vT}, v{vT+1}")
    a(f"v_mov_b32 v{vT+1}, v{vT}")
    a("s_nop 1")
    a(f"v_permlane16_swap_b32 v{vT}, v{vT+1}")
    a("s_nop 0")
    a(f"v_add_f32 v{vT}, v{vT}, v{vT+1}")
    a(f"v_rcp_f32 v{vT}, v{vT}")
    a("s_nop 0")
    a(f"v_mul_f32 v{FM}, v{FM}, v{vT}")
    tick(9)
    a.label("L_p2")
    for k in range(8):
        a(f"s_waitcnt vmcnt({7-k})")
        a(f"v_perm_b32 v{vT+1}, v{FO+4*k+3}, v{FO+4*k}, s{sT3}")
        if k == 0:
            a(f"v_xor_b32 v{vT}, v{vT+1}, v{vTag}")
        else:
            a(f"v_bitop3_b32 v{vT}, v{vT}, v{vT+1}, v{vTag} bitop3:0xf6")
        for r in range(4):
            op = "v_mul_f32_dpp" if k == 0 else "v_fmac_f32_dpp"
            a(f"{op} v{vP+r}, v{FM}, v{FO+4*k+r} row_newbcast:{k} {dpp}")
    a(f"v_cmp_ne_u32 vcc, 0, v{vT}")
    a(f"v_permlane32_swap_b32 v{vP}, v{vP+1}")
    a(f"v_permlane32_swap_b32 v{vP+2}, v{vP+3}")
    a("s_cbranch_vccz L_ok")
    o_loads()
    a(f"s_add_u32 s{sSpin}, s{sSpin}, 1")
    a(f"s_cmp_lt_u32 s{sSpin}, 0x100000")
    a("s_cbranch_scc1 L_p2")
    a("s_branch L_fin")
    a.label("L_ok")
    a(f"v_add_f32 v{vP}, v{vP}, v{vP+1}")
    a(f"v_add_f32 v{vP+2}, v{vP+2}, v{vP+3}")
    a("s_nop 1")
    a(f"v_permlane16_swap_b32 v{vP}, v{vP+2}")
    a("s_nop 0")
    a(f"v_add_f32 v{vP}, v{vP}, v{vP+2}")
    a(f"v_cvt_pk_bf16_f32 v{vP}, v{vP}, v{vP}")
    a(f"buffer_store_short v{vP}, v{vOut}, s[{sQ}:{sQ+3}], s{sT+2} offen {OPOL}")
    tick(10)
    a(f"s_lshl_b32 s{sT}, s{sH}, 7")
    a(f"s_add_u32 s{sT}, s{sT}, {WS_EP}")
    a(f"v_mov_b32 v{vT}, s{sT}")
    a(f"v_mov_b32 v{vT+1}, s{sEp}")
    a("s_mov_b64 exec, 1")
    a(f"buffer_store_dword v{vT+1}, v{vT}, s[{sWS}:{sWS+3}], 0 offen {OPOL}")
    a("s_mov_b64 exec, -1")
    a(f"s_add_u32 s{sLo}, s{sLo}, 1")
    a("s_branch L_slice")
    a.label("L_fin")
    if STAMP:
        a("s_waitcnt vmcnt(0)")
        tick(11)
        a(f"v_writelane_b32 v{vX+1}, s{sSpin}, 12")
        a(f"v_writelane_b32 v{vX}, 1, 12")
        flush_ticks()
    a.label("L_end")
    a("s_endpgm")

    head = f"""; Paged (block-table) GQA decode attention.
; @launch grid=(256,1,1) block=(512,1,1) lds={LDS_BYTES}
.amdgcn_target "amdgcn-amd-amdhsa--gfx950"
.text
.globl {NAME}_kernel
.p2align 8
.type {NAME}_kernel,@function
"""
    tail = f""".section .rodata,"a"
.p2align 6
.amdhsa_kernel {NAME}_kernel
  .amdhsa_next_free_vgpr {NVGPR}
  .amdhsa_next_free_sgpr 102
  .amdhsa_accum_offset {NVGPR}
  .amdhsa_group_segment_fixed_size 0
  .amdhsa_kernarg_size 64
  .amdhsa_user_sgpr_count 2
  .amdhsa_user_sgpr_kernarg_segment_ptr 1
  .amdhsa_system_sgpr_workgroup_id_x 1
.end_amdhsa_kernel
"""
    return head + a.text() + tail

if __name__ == "__main__":
    opts = dict(kv.split("=", 1) for kv in sys.argv[2:])
    open(sys.argv[1], "w").write(gen(opts))
```

```python
import sys

NAME = "standalone__paged_block_table_kv_radixattention__decode"

class Asm:
    def __init__(self):
        self.lines = []
    def __call__(self, s="", c=None):
        s = s.strip()
        self.lines.append("    " + s + (f"    ; {c}" if c else ""))
    def label(self, n):
        self.lines.append(n + ":")
    def c(self, s):
        self.lines.append("    ; " + s)
    def text(self):
        return "\n".join(self.lines) + "\n"

KV_BYTES = 1280 * 32768
WS_ML = 2 << 20
WS_AR = WS_ML + 65536
WS_EP = WS_AR + 32768
NEG = "0xf149f2ca"
DPP = "row_mask:0xf bank_mask:0xf"

def gen(opts):
    def pol(k, d):
        return opts.get(k, d).replace("+", " ").replace("def", "")
    def flag(k, d):
        return opts.get(k, d) == "1"
    POL = opts.get("pol", "nt")
    KPOL, VPOL = pol("kpol", POL), pol("vpol", POL)
    OPOL = pol("opol", "def")
    PERM = opts.get("perm", "10543276")
    STAMP = flag("stamp", "0")
    PRIO = flag("prio", "1")
    PREW = flag("prew", "1")
    EARLY = flag("early", "1")
    PREML = flag("preml", "1")
    FORCE = opts.get("force", "")

    a = Asm()
    INV = 131072
    MX = INV + 1024
    LS = MX + 512
    FLG = LS + 512
    QL = FLG + 256
    LDS_BYTES = QL + 4096
    ARS = int(opts.get("ars", "5"))
    CHKPOS = opts.get("chkpos", "pre")
    RS = 528

    vLane, vG, vN, vVo0, vVo1, vM, vL, vC = 1, 2, 3, 4, 5, 6, 7, 8
    vB4 = 9
    vKs = 10
    vKr = 14
    vT = 18
    vS = 28
    vBias = 44
    vP = 60
    vQ = 68
    vAcc = 84
    vK = 116
    vV = 180
    vOw, vOr, vWo, vMw, vTag, vF, vFa = 244, 245, 246, 247, 248, 249, 250
    vX = 252
    NVGPR = 256
    vChk = vBias + 8

    sK, sV, sQ, sWS = 20, 24, 28, 32
    sN, sNB, sNF = 36, 40, 44
    sH, sI, sW, sWb = 48, 49, 50, 51
    sP, sR, sLc = 52, 56, 60
    sU, sRnd, sSelLo, sSelHi, sSpecBad, sEp = 64, 65, 66, 67, 68, 69
    sRm = 70
    sCm = 78
    sNEp, sXcc, sAr = 86, 87, 88
    sT = 94
    sSt = 98
    sLo, sHi, sSpin, sT0, sT3, sMode, sWok, sO0, sO1, sMl, sOut = 36, 37, 38, 39, 40, 41, 42, 43, 44, 45, 46

    def tick(idx):
        if not STAMP:
            return
        a(f"s_memrealtime s[{sSt}:{sSt+1}]")
        a("s_waitcnt lgkmcnt(0)")
        a(f"v_writelane_b32 v{vX}, s{sSt}, {idx}")
        a(f"v_writelane_b32 v{vX+1}, s{sSt+1}, {idx}")
    def flush_ticks():
        a("s_mov_b64 exec, 0xffff")
        a(f"s_lshl_b32 s{sSt}, s2, 3")
        a(f"s_add_u32 s{sSt}, s{sSt}, s{sW}")
        a(f"s_lshl_b32 s{sSt}, s{sSt}, 7")
        a(f"s_add_u32 s{sSt}, s{sSt}, {16<<20}")
        a(f"v_mbcnt_lo_u32_b32 v{vX+2}, -1, 0")
        a(f"v_lshlrev_b32 v{vX+2}, 3, v{vX+2}")
        a(f"v_add_u32 v{vX+2}, s{sSt}, v{vX+2}")
        a(f"v_cmp_ne_u32 vcc, 0, v{vX}")
        a("s_and_b64 exec, exec, vcc")
        a(f"buffer_store_dwordx2 v[{vX}:{vX+1}], v{vX+2}, s[{sWS}:{sWS+3}], 0 offen")

    def srd(d, p, nbytes):
        a(f"s_mov_b32 s{d}, s{p}")
        a(f"s_and_b32 s{d+1}, s{p+1}, 0xffff")
        a(f"s_mov_b32 s{d+2}, {nbytes}")
        a(f"s_mov_b32 s{d+3}, 0x20000")
    def load_k(k):
        a(f"s_add_u32 m0, s{sWb}, {k*4096}")
        a(f"s_mov_b32 s{sK+2}, s{sR+k}")
        for q in range(4):
            a(f"buffer_load_dwordx4 v{vKs+q}, s[{sK}:{sK+3}], s{sP+k} offen offset:{q*1024} {KPOL} lds")
    def load_v(k):
        a(f"s_mov_b32 s{sV+2}, s{sR+k}")
        for i in range(4):
            r = vV + 16 * k + 4 * i
            a(f"buffer_load_dwordx4 v[{r}:{r+3}], v{vVo0 + (i>>1)}, s[{sV}:{sV+3}], s{sP+k} offen offset:{2048*(i&1)} {VPOL}")
    def pop(k):
        a(f"s_ff1_i32_b32 s{sT}, s{sU}", "next candidate of this wave (-1: none)")
        a(f"s_bitset0_b32 s{sU}, s{sT}")
        a(f"s_add_u32 s{sT+1}, s{sT}, 8")
        a(f"s_and_b32 s{sT+2}, s{sT+1}, 0x38")
        a(f"s_sub_u32 s{sT+2}, s{sI}, s{sT+2}")
        a(f"s_and_b32 s{sT+2}, s{sT+2}, 31")
        a(f"s_lshl_b32 s{sP+k}, s{sT+1}, 5")
        a(f"s_add_u32 s{sP+k}, s{sP+k}, s{sT+2}")
        a(f"s_lshl_b32 s{sP+k}, s{sP+k}, 15")
        a(f"s_lshl_b32 s{sLc+k}, s{sT+1}, 4")
        a(f"s_cmp_lt_i32 s{sT}, 0")
        a(f"s_cselect_b32 s{sR+k}, 0, {KV_BYTES}")
        a(f"s_cselect_b32 s{sLc+k}, {63*16}, s{sLc+k}")
    def make_tag(dst, vu, tmp):
        a(f"s_lshr_b32 s{sT}, s{sEp}, 8")
        a(f"s_add_u32 s{sT}, s{sT}, 0x5a")
        a(f"v_mad_u32_u24 v{dst}, v{vu}, 37, s{sEp}")
        a(f"v_mad_u32_u24 v{tmp}, v{vu}, 59, s{sT}")
        a(f"s_mov_b32 s{sT}, 0x0c0c0400")
        a(f"v_perm_b32 v{dst}, v{tmp}, v{dst}, s{sT}")
    def xreduce(op, v, t):
        a(f"v_mov_b32 v{t}, v{v}")
        a("s_nop 1")
        a(f"v_permlane32_swap_b32 v{v}, v{t}")
        a("s_nop 0")
        a(f"{op} v{v}, v{v}, v{t}")
        a(f"v_mov_b32 v{t}, v{v}")
        a("s_nop 1")
        a(f"v_permlane16_swap_b32 v{v}, v{t}")
        a("s_nop 0")
        a(f"{op} v{v}, v{v}, v{t}")
    a.label(f"{NAME}_kernel")
    a("s_cmp_ge_u32 s2, 256")
    a("s_cbranch_scc1 L_end")
    a("s_load_dwordx16 s[4:19], s[0:1], 0")
    if STAMP:
        a(f"v_mov_b32 v{vX}, 0")
        a(f"v_mov_b32 v{vX+1}, 0")
        a(f"s_memrealtime s[{sSt+2}:{sSt+3}]")
    a(f"v_lshrrev_b32 v{vT}, 6, v0")
    a(f"v_and_b32 v{vLane}, 63, v0")
    a(f"v_readfirstlane_b32 s{sW}, v{vT}")
    if PERM == "01234567":
        a(f"s_and_b32 s{sH}, s2, 7")
    else:
        a(f"s_lshl_b32 s{sH}, s2, 2")
        a(f"s_lshr_b32 s{sH}, {hex(int(''.join(reversed(PERM)), 16))}, s{sH}")
        a(f"s_and_b32 s{sH}, s{sH}, 7", "kv head")
    a(f"s_lshr_b32 s{sI}, s2, 3", "workgroup index inside the head")
    if FORCE == "late":
        a(f"s_cmp_lg_u32 s{sI}, 5")
        a("s_cbranch_scc1 L_notlate")
        a("s_movk_i32 s3, 200")
        a.label("L_latespin")
        a("s_sleep 8")
        a("s_sub_u32 s3, s3, 1")
        a("s_cmp_lg_u32 s3, 0")
        a("s_cbranch_scc1 L_latespin")
        a.label("L_notlate")
    a(f"v_lshrrev_b32 v{vG}, 4, v{vLane}")
    a(f"v_and_b32 v{vN}, 15, v{vLane}")
    a(f"v_lshlrev_b32 v{vT+1}, 2, v0")
    a(f"v_lshlrev_b32 v{vT+2}, 4, v{vLane}")
    a(f"v_add_u32 v{vT+2}, {INV}, v{vT+2}")
    for r in range(4):
        a(f"v_mov_b32 v{vS+r}, 0")
    a(f"ds_write_b128 v{vT+2}, v[{vS}:{vS+3}]", "clear the inverse map")
    a(f"s_lshl_b32 s{sT}, s{sH}, 8")
    a(f"s_lshl_b32 s{sWb}, s{sW}, 14")
    a(f"v_xor_b32 v{vT+3}, v{vN}, v{vG}")
    a(f"v_lshlrev_b32 v{vT+3}, 4, v{vT+3}")
    a(f"v_lshlrev_b32 v{vT+4}, 11, v{vG}")
    a(f"v_add_u32 v{vT+4}, s{sT}, v{vT+4}")
    for q in range(4):
        if q == 0:
            a(f"v_add_u32 v{vKs}, v{vT+3}, v{vT+4}")
        else:
            a(f"v_xor_b32 v{vKs+q}, {64*q}, v{vT+3}")
            a(f"v_add_u32 v{vT+4}, {8192-1024}, v{vT+4}")
            a(f"v_add_u32 v{vKs+q}, v{vKs+q}, v{vT+4}")
    a(f"v_lshlrev_b32 v{vWo}, 13, v{vG}")
    a(f"v_lshl_add_u32 v{vWo}, v{vN}, 4, v{vWo}")
    a(f"v_add_u32 v{vVo0}, s{sT}, v{vWo}")
    a(f"v_add_u32 v{vVo1}, 4096, v{vVo0}")
    a(f"v_lshrrev_b32 v{vT+5}, 2, v{vN}")
    a(f"s_lshl_b32 s{sT+1}, s{sW}, 6")
    a(f"v_xor_b32 v{vT+6}, s{sT+1}, v{vT+3}")
    a(f"v_lshl_add_u32 v{vT+6}, v{vG}, 8, v{vT+6}")
    a(f"s_lshl_b32 s{sT+1}, s{sH}, 10")
    a(f"s_lshl_b32 s{sT+2}, s{sW}, 13")
    a(f"s_add_u32 s{sT+1}, s{sT+1}, s{sT+2}")
    a(f"s_lshl_b32 s{sT+2}, s{sW}, 10")
    a(f"s_add_u32 m0, s{sT+2}, {QL}")
    a(f"s_lshl_b32 s{sP}, s{sW}, 5")
    a(f"s_add_u32 s{sP}, s{sP}, s{sI}")
    a(f"s_lshl_b32 s{sP}, s{sP}, 15", "first block of this wave: physical block 32*w + i")
    a(f"s_lshl_b32 s{sLc}, s{sW}, 4")
    a(f"s_mov_b32 s{sR}, {KV_BYTES}")
    a(f"s_mov_b32 s{sK+3}, 0x20000")
    a(f"s_mov_b32 s{sV+3}, 0x20000")
    a(f"s_mov_b32 s{sQ+2}, 32768")
    a(f"s_mov_b32 s{sQ+3}, 0x20000")
    a(f"s_lshl_b32 s{sT+3}, s{sH}, 7")
    a(f"s_add_u32 s{sT+3}, s{sT+3}, {WS_EP}")
    a("s_waitcnt lgkmcnt(0)")
    a("s_add_u32 s10, s10, 4096")
    a("s_addc_u32 s11, s11, 0")
    for b in range(4):
        a(f"global_load_dword v{vBias+b}, v{vT+1}, s[10:11] offset:{b*2048-4096}")
    a(f"s_load_dwordx4 s[{sN}:{sN+3}], s[12:13], 0")
    a(f"s_load_dword s{sEp}, s[18:19], s{sT+3}")
    a(f"s_mov_b32 s{sK}, s6")
    a(f"s_and_b32 s{sK+1}, s7, 0xffff")
    a(f"s_mov_b32 s{sV}, s8")
    a(f"s_and_b32 s{sV+1}, s9, 0xffff")
    a(f"s_mov_b32 s{sQ}, s4")
    a(f"s_and_b32 s{sQ+1}, s5, 0xffff")
    a(f"s_cmp_ge_u32 s{sW}, 4")
    a("s_barrier")
    a("s_cbranch_scc1 L_nospec")
    if PRIO:
        a("s_setprio 2")
    a(f"buffer_load_dwordx4 v{vT+6}, s[{sQ}:{sQ+3}], s{sT+1} offen lds", "four query rows -> LDS")
    load_k(0)
    load_v(0)
    a.label("L_nospec")
    if STAMP:
        a(f"v_writelane_b32 v{vX}, s{sSt+2}, 0")
        a(f"v_writelane_b32 v{vX+1}, s{sSt+3}, 0")
    tick(1)
    srd(sWS, 18, 1 << 28)
    a(f"s_mov_b32 s{sSelLo}, 0x05040100")
    a(f"s_mov_b32 s{sSelHi}, 0x07060302")
    a(f"s_lshr_b32 s{sRnd}, s{sW}, 2", "0: first round of an A-wave, 1: B-wave, 2: later round of an A-wave")
    a(f"v_lshlrev_b32 v{vT+4}, 8, v{vN}")
    a(f"v_add_u32 v{vT+4}, s{sWb}, v{vT+4}")
    for j in range(4):
        if j == 0:
            a(f"v_add_u32 v{vKr}, v{vT+3}, v{vT+4}")
        else:
            a(f"v_xor_b32 v{vKr+j}, {64*j}, v{vT+3}")
            a(f"v_add_u32 v{vKr+j}, v{vKr+j}, v{vT+4}")
    a(f"v_lshlrev_b32 v{vB4}, 2, v{vT+5}")
    a(f"v_add_u32 v{vB4}, {INV}, v{vB4}")
    a(f"v_mov_b32 v{vM}, {NEG}")
    a(f"v_mov_b32 v{vL}, 0")
    a(f"v_mov_b32 v{vFa}, {FLG}")
    a(f"v_mov_b32 v{vF}, 0")
    a(f"v_mov_b32 v{vT+8}, 0")
    a(f"v_mul_u32_u24 v{vOw}, {RS}, v{vN}")
    a(f"v_lshl_add_u32 v{vOw}, v{vG}, 7, v{vOw}")
    a(f"v_add_u32 v{vOw}, s{sWb}, v{vOw}")
    a(f"s_mul_i32 s{sT}, s{sW}, {2*RS}")
    a(f"s_add_u32 s{sT}, s{sT}, 0x10000")
    a(f"v_lshrrev_b32 v{vOr}, 5, v{vLane}")
    a(f"v_add_u32 v{vOr}, v{vOr}, v{vLane}")
    a(f"v_lshlrev_b32 v{vOr}, 4, v{vOr}")
    a(f"v_add_u32 v{vOr}, s{sT}, v{vOr}")
    a(f"s_lshl_b32 s{sT}, s{sH}, 3")
    a(f"s_add_u32 s{sT}, s{sT}, s{sW}")
    a(f"s_lshl_b32 s{sT}, s{sT}, 15")
    a(f"s_lshl_b32 s{sT+1}, s{sI}, 8")
    a(f"s_add_u32 s{sT}, s{sT}, s{sT+1}")
    a(f"v_add_u32 v{vWo}, s{sT}, v{vWo}")
    a(f"s_lshl_b32 s{sT}, s{sW}, 2")
    a(f"s_add_u32 s{sT}, s{sT}, {MX}")
    a(f"v_lshlrev_b32 v{vMw}, 5, v{vN}")
    a(f"v_add_u32 v{vMw}, s{sT}, v{vMw}")
    a(f"s_getreg_b32 s{sXcc}, hwreg(HW_REG_XCC_ID, 0, 4)")
    a(f"s_lshl_b32 s{sAr}, s{sH}, {5 + ARS}")
    a(f"s_add_u32 s{sAr}, s{sAr}, {WS_AR}")
    a("s_waitcnt lgkmcnt(0)")
    a(f"s_add_u32 s{sEp}, s{sEp}, 1", "hand-off epoch of this launch")
    a(f"s_not_b32 s{sNEp}, s{sEp}")
    make_tag(vTag, vN, vT + 4)
    a(f"v_mov_b32 v{vC}, 0x3e0293ee", "log2(e)/sqrt(128)")
    for b in range(4):
        a(f"s_min_i32 s{sT}, s{sN+b}, 0x2000")
        a(f"s_cmp_lt_i32 s{sN+b}, 1")
        a(f"s_cselect_b32 s{sN+b}, 0x2000, s{sT}")
        a(f"s_cselect_b32 s{sT}, {hex(0x000f000f << (4*b))}, 0")
        if b == 0:
            a(f"s_mov_b32 s{sCm}, s{sT}")
        else:
            a(f"s_or_b32 s{sCm}, s{sCm}, s{sT}")
        a(f"s_add_u32 s{sNB+b}, s{sN+b}, 15")
        a(f"s_lshr_b32 s{sNB+b}, s{sNB+b}, 4")
        a(f"s_lshr_b32 s{sNF+b}, s{sN+b}, 4")
    a(f"s_mov_b32 s{sCm+1}, s{sCm}")
    a(f"v_cndmask_b32 v{vC}, v{vC}, 0, s[{sCm}:{sCm+1}]", "ctx <= 0: every position masked -> uniform weights")
    a(f"s_and_b32 s{sT}, s{sN}, 15")
    for b in range(1, 4):
        a(f"s_and_b32 s{sT+1}, s{sN+b}, 15")
        a(f"s_lshl_b32 s{sT+1}, s{sT+1}, {4*b}")
        a(f"s_or_b32 s{sT}, s{sT}, s{sT+1}")
    a(f"v_and_b32 v{vT+4}, 12, v{vN}")
    a(f"v_lshrrev_b32 v{vT+4}, v{vT+4}, s{sT}")
    a(f"v_and_b32 v{vT+4}, 15, v{vT+4}")
    a(f"v_lshlrev_b32 v{vT+5}, 2, v{vG}")
    a(f"v_sub_u32 v{vT+4}, v{vT+4}, v{vT+5}")
    for r in range(4):
        a(f"v_cmp_lt_i32 s[{sRm+2*r}:{sRm+2*r+1}], {r}, v{vT+4}")
    a(f"v_mov_b32 v{vT+7}, 0x10000")
    a(f"s_movk_i32 s{sT+2}, 1280")
    a("s_waitcnt vmcnt(8)")
    a(f"s_cmp_lt_u32 s{sW}, 4")
    a("s_cbranch_scc1 L_tbl")
    a(f"s_waitcnt vmcnt(0)")
    a.label("L_tbl")
    tick(2)
    for b in range(4):
        p = vBias + b
        a(f"v_lshrrev_b32 v{vT+4}, 5, v{p}")
        a(f"v_and_b32 v{vT+5}, 0x38, v{vT+4}")
        a(f"v_add_u32 v{vT+5}, v{vT+5}, v{p}")
        a(f"v_and_b32 v{vT+5}, 31, v{vT+5}")
        a(f"v_cmp_gt_u32 vcc, s{sNF+b}, v0")
        a(f"v_cmp_eq_u32 s[{sCm}:{sCm+1}], s{sI}, v{vT+5}")
        a(f"v_cmp_gt_u32 s[{sCm+2}:{sCm+3}], s{sNB+b}, v0")
        a(f"v_cmp_gt_u32 s[{sCm+4}:{sCm+5}], s{sT+2}, v{p}")
        a(f"v_cndmask_b32 v{vT+5}, v{vT+7}, 1, vcc")
        a(f"v_lshlrev_b32 v{vT+4}, 4, v{vT+4}")
        a(f"s_and_b64 s[{sCm}:{sCm+1}], s[{sCm}:{sCm+1}], s[{sCm+2}:{sCm+3}]")
        a(f"v_add_u32 v{vT+4}, {INV + 4*b}, v{vT+4}")
        a(f"s_and_b64 exec, s[{sCm}:{sCm+1}], s[{sCm+4}:{sCm+5}]")
        a(f"ds_add_u32 v{vT+4}, v{vT+5}")
        a("s_mov_b64 exec, -1")
    a("s_waitcnt lgkmcnt(0)")
    a("s_barrier")
    a(f"ds_read_b128 v[{vS}:{vS+3}], v{vT+2}")
    a(f"s_sub_u32 s{sT}, {QL}, s{sWb}")
    for j in range(4):
        a(f"v_add_u32 v{vP+j}, s{sT}, v{vKr+j}")
        a(f"ds_read_b128 v[{vQ+4*j}:{vQ+4*j+3}], v{vP+j}")
    a("s_waitcnt lgkmcnt(4)")
    a(f"v_or3_b32 v{vS}, v{vS}, v{vS+1}, v{vS+2}")
    a(f"v_or_b32 v{vS}, v{vS}, v{vS+3}")
    a(f"v_cmp_ne_u32 vcc, 0, v{vS}")
    a("s_nop 0")
    a(f"s_bitcmp0_b32 vcc_lo, s{sW}")
    a(f"s_cselect_b32 s{sSpecBad}, 1, 0")
    a(f"s_lshr_b64 s[{sCm}:{sCm+1}], vcc, 8")
    a(f"v_mbcnt_lo_u32_b32 v{vT+4}, s{sCm}, 0")
    a(f"v_cmp_gt_u32 vcc, 24, v{vT+4}")
    a(f"v_and_b32 v{vT+5}, 3, v{vT+4}")
    a(f"v_and_b32 v{vT+4}, 7, v{vT+4}")
    a(f"v_cndmask_b32 v{vT+4}, v{vT+5}, v{vT+4}, vcc")
    a(f"v_cmp_eq_u32 vcc, s{sW}, v{vT+4}")
    a("s_nop 0")
    a(f"s_and_b32 s{sU}, vcc_lo, s{sCm}")
    tick(3)
    a(f"s_cmp_lt_u32 s{sW}, 4")
    a("s_cbranch_scc1 L_a0")
    a(f"s_cmp_eq_u32 s{sSpecBad}, 0")
    a(f"s_cselect_b32 s{sR}, s{sR}, 0")
    a(f"s_mov_b32 s{sSpecBad}, 0")
    if PRIO:
        a("s_setprio 1")
    load_k(0)
    a.label("L_a0")
    a(f"s_cmp_lg_u32 s{sW}, 0")
    a("s_cbranch_scc1 L_round")
    a.c("arrival mark of this workgroup")
    a(f"s_lshl_b32 s{sT}, s{sI}, {ARS}")
    a(f"v_mov_b32 v{vS+9}, s{sT}")
    a(f"v_mov_b32 v{vS+12}, s{sEp}")
    a(f"v_mov_b32 v{vS+13}, s{sNEp}")
    a(f"v_mov_b32 v{vS+14}, s{sXcc}")
    a("s_mov_b64 exec, 1")
    a(f"buffer_store_dwordx3 v[{vS+12}:{vS+14}], v{vS+9}, s[{sWS}:{sWS+3}], s{sAr} offen sc1")
    a("s_mov_b64 exec, -1")

    a.label("L_round")
    for k in range(1, 4):
        pop(k)
        load_k(k)
    tick(4)
    for k in range(4):
        a(f"v_add_u32 v{vT+k}, s{sLc+k}, v{vB4}")
        a(f"ds_read_b32 v{vT+k}, v{vT+k}")
    a(f"s_cmp_lg_u32 s{sRnd}, 0")
    a("s_cbranch_scc1 L_noinit")
    for r in range(32):
        a(f"v_mov_b32 v{vAcc+r}, 0")
    a.label("L_noinit")
    a("s_waitcnt lgkmcnt(0)")
    for k in range(4):
        a(f"v_and_b32 v{vT+4}, 0xffff, v{vT+k}")
        a(f"v_lshrrev_b32 v{vT+5}, 16, v{vT+k}")
        a(f"v_add_u32 v{vT+5}, v{vT+5}, v{vT+4}")
        a(f"v_cvt_f32_u32 v{vT+4}, v{vT+4}")
        a(f"v_cvt_f32_u32 v{vT+5}, v{vT+5}")
        a(f"v_log_f32 v{vT+4}, v{vT+4}")
        a(f"v_log_f32 v{vT+5}, v{vT+5}")
        a("s_nop 0")
        for r in range(4):
            a(f"v_cndmask_b32 v{vBias+4*k+r}, v{vT+4}, v{vT+5}, s[{sRm+2*r}:{sRm+2*r+1}]")
    for k in range(4):
        a(f"s_waitcnt vmcnt({12 - 4*k})")
        for j in range(4):
            r = vK + 16 * k + 4 * j
            a(f"ds_read_b128 v[{r}:{r+3}], v{vKr+j} offset:{k*4096}")
        if k > 0:
            kk = k - 1
            a("s_waitcnt lgkmcnt(4)")
            for j in range(4):
                r = vK + 16 * kk + 4 * j
                c = "0" if j == 0 else f"v[{vS+4*kk}:{vS+4*kk+3}]"
                a(f"v_mfma_f32_16x16x32_bf16 v[{vS+4*kk}:{vS+4*kk+3}], v[{r}:{r+3}], v[{vQ+4*j}:{vQ+4*j+3}], {c}")
    for j in range(4):
        r = vK + 48 + 4 * j
        c = "0" if j == 0 else f"v[{vS+12}:{vS+15}]"
        a(f"s_waitcnt lgkmcnt({3-j})")
        a(f"v_mfma_f32_16x16x32_bf16 v[{vS+12}:{vS+15}], v[{r}:{r+3}], v[{vQ+4*j}:{vQ+4*j+3}], {c}")
    a(f"s_cmp_eq_u32 s{sSpecBad}, 0")
    a("s_cbranch_scc1 L_specok")
    for r in range(4):
        a(f"v_mov_b32 v{vS+r}, 0")
    for r in range(16):
        a(f"v_mov_b32 v{vV+r}, 0")
    a(f"s_mov_b32 s{sSpecBad}, 0")
    a.label("L_specok")
    for e in range(16):
        a(f"v_fma_f32 v{vS+e}, v{vS+e}, v{vC}, v{vBias+e}")
    a(f"v_max3_f32 v{vT}, v{vS}, v{vS+1}, v{vS+2}")
    a(f"v_max3_f32 v{vT+1}, v{vS+3}, v{vS+4}, v{vS+5}")
    a(f"v_max3_f32 v{vT}, v{vT}, v{vS+6}, v{vS+7}")
    a(f"v_max3_f32 v{vT+1}, v{vT+1}, v{vS+8}, v{vS+9}")
    a(f"v_max3_f32 v{vT}, v{vT}, v{vS+10}, v{vS+11}")
    a(f"v_max3_f32 v{vT+1}, v{vT+1}, v{vS+12}, v{vS+13}")
    a(f"v_max3_f32 v{vT}, v{vT}, v{vS+14}, v{vS+15}")
    a(f"v_max3_f32 v{vT}, v{vT}, v{vT+1}, v{vM}")
    xreduce("v_max_f32", vT, vT + 1)
    a(f"s_cmp_ge_u32 s{sW}, 4")
    a(f"ds_write_b32 v{vMw}, v{vT}")
    a(f"v_and_b32 v{vT+2}, 0xffffffe0, v{vMw}")
    tick(13)
    a("s_cbranch_scc1 L_bx")
    if PRIO:
        a("s_setprio 0")
    def chk():
        a(f"s_cmp_lg_u32 s{sW}, 0")
        a("s_cbranch_scc1 L_nochk")
        a(f"v_and_b32 v{vF}, 31, v{vLane}")
        a(f"v_lshlrev_b32 v{vF}, {ARS}, v{vF}")
        a(f"buffer_load_dwordx3 v[{vChk}:{vChk+2}], v{vF}, s[{sWS}:{sWS+3}], s{sAr} offen sc1")
        a.label("L_nochk")
    if CHKPOS == "pre":
        chk()
    for k in range(1, 4):
        load_v(k)
    if CHKPOS == "post":
        chk()
    a(f"s_cmp_lg_u32 s{sU}, 0")
    a("s_cbranch_scc1 L_own")
    a("s_waitcnt lgkmcnt(0)")
    a("s_barrier", "X: row maxima of all waves are in LDS")
    a("s_branch L_wgmax")
    a.label("L_bx")
    a("s_waitcnt lgkmcnt(0)")
    a("s_barrier", "X")
    for k in range(4):
        load_v(k)
    a.label("L_wgmax")
    tick(14)
    a(f"ds_read_b128 v[{vBias}:{vBias+3}], v{vT+2}")
    a(f"ds_read_b128 v[{vBias+4}:{vBias+7}], v{vT+2} offset:16")
    a("s_waitcnt lgkmcnt(0)")
    a(f"v_max3_f32 v{vT}, v{vBias}, v{vBias+1}, v{vBias+2}")
    a(f"v_max3_f32 v{vT+1}, v{vBias+3}, v{vBias+4}, v{vBias+5}")
    a(f"v_max3_f32 v{vT}, v{vT}, v{vBias+6}, v{vBias+7}")
    a(f"v_max_f32 v{vT}, v{vT}, v{vT+1}")
    a.label("L_own")
    a(f"s_cmp_lg_u32 s{sRnd}, 2")
    a("s_cbranch_scc1 L_join")
    a(f"v_sub_f32 v{vT+2}, v{vM}, v{vT}")
    a(f"v_exp_f32 v{vT+2}, v{vT+2}")
    a("s_nop 0")
    a(f"v_mul_f32 v{vL}, v{vL}, v{vT+2}")
    for r in range(0, 32, 2):
        a(f"v_pk_mul_f32 v[{vAcc+r}:{vAcc+r+1}], v[{vAcc+r}:{vAcc+r+1}], v[{vT+2}:{vT+3}] op_sel_hi:[1,0]")
    a.label("L_join")
    a(f"v_mov_b32 v{vM}, v{vT}")
    for e in range(16):
        a(f"v_sub_f32 v{vS+e}, v{vS+e}, v{vT}")
    for e in range(16):
        a(f"v_exp_f32 v{vS+e}, v{vS+e}")
    for e in range(8):
        a(f"v_cvt_pk_bf16_f32 v{vP+e}, v{vS+2*e}, v{vS+2*e+1}")
    for e in range(0, 16, 2):
        a(f"v_add_f32 v{vS+e}, v{vS+e}, v{vS+e+1}")
    for e in range(0, 16, 4):
        a(f"v_add_f32 v{vS+e}, v{vS+e}, v{vS+e+2}")
    a(f"v_add_f32 v{vS}, v{vS}, v{vS+4}")
    a(f"v_add_f32 v{vS+8}, v{vS+8}, v{vS+12}")
    a(f"v_add_f32 v{vS}, v{vS}, v{vS+8}")
    a(f"v_add_f32 v{vL}, v{vL}, v{vS}")
    a(f"v_mov_b32 v{vT}, v{vL}")
    xreduce("v_add_f32", vT, vT + 1)
    a(f"v_subrev_u32 v{vT+4}, 0x10000, v{vOw}", "partner slot")
    a(f"s_cmp_lt_u32 s{sW}, 4")
    a(f"ds_write_b32 v{vMw}, v{vT} offset:512")
    a("s_cbranch_scc1 L_pv")
    a("s_waitcnt lgkmcnt(0)")
    a("s_barrier", "X2: A-wave accumulators, row sums and the mode word are in LDS")
    for j in range(8):
        a(f"ds_read_b128 v[{vAcc+4*j}:{vAcc+4*j+3}], v{vT+4} offset:{j*16}")
    a(f"ds_read_b32 v{vF}, v{vFa}")
    a.label("L_pv")
    tick(5)
    for t in range(2):
        vt = vK + 32 * t
        for p in range(4):
            rem = 15 - (8 * t + 2 * p + 1)
            a(f"s_waitcnt vmcnt({rem})")
            r0 = vV + 32 * t + 8 * p
            r1 = r0 + 4
            for w in range(4):
                a(f"v_perm_b32 v{vt + 4*(2*w) + p}, v{r1+w}, v{r0+w}, s{sSelLo}")
                a(f"v_perm_b32 v{vt + 4*(2*w+1) + p}, v{r1+w}, v{r0+w}, s{sSelHi}")
        if t == 0:
            a("s_waitcnt lgkmcnt(0)")
        for j in range(8):
            D = f"v[{vAcc+4*j}:{vAcc+4*j+3}]"
            a(f"v_mfma_f32_16x16x32_bf16 {D}, v[{vt+4*j}:{vt+4*j+3}], v[{vP+4*t}:{vP+4*t+3}], {D}")
        if t == 0:
            a(f"v_readfirstlane_b32 s{sMode}, v{vF}")
            a(f"s_mov_b32 s{sT0}, 0x07060500")
            a(f"s_mov_b32 s{sT3}, 0x07060501")
    a(f"s_cmp_eq_u32 s{sU}, 0")
    a("s_cbranch_scc0 L_more")
    tick(6)
    for j in range(8):
        a(f"ds_write_b128 v{vOw}, v[{vAcc+4*j}:{vAcc+4*j+3}] offset:{j*16}")
    a(f"s_cmp_ge_u32 s{sW}, 4")
    a("s_waitcnt lgkmcnt(0)")
    a("s_cbranch_scc1 L_y")

    a(f"s_cmp_lg_u32 s{sW}, 0")
    a("s_cbranch_scc1 L_modedone")
    a(f"s_lshl_b32 s{sMode}, s{sI}, 8")
    a(f"s_add_u32 s{sT}, s{sI}, 1")
    a(f"s_lshl_b32 s{sT}, s{sT}, 16")
    a(f"s_or_b32 s{sMode}, s{sMode}, s{sT}")
    if FORCE == "abandon":
        a(f"s_bitcmp1_b32 s{sI}, 0")
        a(f"s_cselect_b32 s{sT}, 0, -1")
        a(f"v_and_b32 v{vChk}, s{sT}, v{vChk}")
        a(f"v_and_b32 v{vChk+1}, s{sT}, v{vChk+1}")
    if FORCE == "all":
        a(f"v_or_b32 v{vChk+2}, 0x100, v{vChk+2}")
    a(f"v_cmp_ne_u32 vcc, s{sEp}, v{vChk}")
    a(f"v_cmp_ne_u32 s[{sCm}:{sCm+1}], s{sNEp}, v{vChk+1}")
    a(f"v_cmp_ne_u32 s[{sCm+2}:{sCm+3}], s{sXcc}, v{vChk+2}")
    a(f"v_cmp_le_u32 s[{sCm+4}:{sCm+5}], 64, v{vChk+2}")
    a(f"s_or_b64 vcc, vcc, s[{sCm}:{sCm+1}]")
    a("s_cbranch_scc1 L_missing")
    a(f"s_cmp_eq_u64 s[{sCm+2}:{sCm+3}], 0")
    a("s_cbranch_scc1 L_modeset", "all 32 workgroups of this head run on this XCD")
    a(f"s_or_b32 s{sMode}, s{sMode}, 1")
    a(f"s_cmp_eq_u64 s[{sCm+4}:{sCm+5}], 0")
    a("s_cbranch_scc1 L_modeset")
    a(f"s_mov_b32 s{sMode}, 0x200001", "somebody left: finalise every slice")
    a("s_branch L_modeset")
    a.label("L_missing")
    a.c("a workgroup of this head has not started yet: leave a mark, look again, then go or stay")
    a(f"s_lshl_b32 s{sT}, s{sI}, {ARS}")
    a(f"v_mov_b32 v{vT}, s{sT}")
    a(f"v_mov_b32 v{vS}, s{sEp}")
    a(f"v_mov_b32 v{vS+1}, s{sNEp}")
    a(f"v_mov_b32 v{vS+2}, 0x100")
    a("s_mov_b64 exec, 1")
    a(f"buffer_store_dwordx3 v[{vS}:{vS+2}], v{vT}, s[{sWS}:{sWS+3}], s{sAr} offen sc1")
    a("s_mov_b64 exec, -1")
    a("s_waitcnt vmcnt(0)")
    a(f"buffer_load_dwordx3 v[{vChk}:{vChk+2}], v{vF}, s[{sWS}:{sWS+3}], s{sAr} offen sc1")
    a("s_waitcnt vmcnt(0)")
    a(f"v_cmp_ne_u32 vcc, s{sEp}, v{vChk}")
    a(f"v_cmp_ne_u32 s[{sCm}:{sCm+1}], s{sNEp}, v{vChk+1}")
    a("s_nop 0")
    a(f"s_or_b64 vcc, vcc, s[{sCm}:{sCm+1}]")
    a(f"s_cselect_b32 s{sMode}, 1, 0x200001")
    a.label("L_modeset")
    a(f"v_mov_b32 v{vF}, s{sMode}")
    a(f"ds_write_b32 v{vFa}, v{vF}")
    a.label("L_modedone")
    vOa, vMa, vOut, vTagC = vT + 6, vT + 7, vT + 8, vT + 5
    a(f"v_lshrrev_b32 v{vT}, 2, v{vLane}")
    a(f"v_lshlrev_b32 v{vMa}, 4, v{vT}", "c*16")
    a(f"v_and_b32 v{vT+1}, 3, v{vLane}")
    a(f"s_lshl_b32 s{sT+1}, s{sW}, 2")
    a(f"v_add_u32 v{vT+2}, s{sT+1}, v{vT+1}", "u")
    a(f"v_lshlrev_b32 v{vOa}, 8, v{vT}")
    a(f"v_lshl_add_u32 v{vOa}, v{vT+2}, 4, v{vOa}", "c*256 + u*16")
    make_tag(vTagC, vT + 2, vT + 3)
    a(f"s_lshr_b32 s{sT}, s{sW}, 1")
    a(f"s_lshl_b32 s{sT}, s{sT}, 6")
    a(f"s_and_b32 s{sT+1}, s{sW}, 1")
    a(f"s_lshl_b32 s{sT+1}, s{sT+1}, 3")
    a(f"s_add_u32 s{sT}, s{sT}, s{sT+1}")
    a(f"v_lshl_add_u32 v{vOut}, v{vT+1}, 1, s{sT}")
    a(f"v_and_b32 v{vT}, 1, v{vG}")
    a(f"v_lshl_add_u32 v{vOut}, v{vT}, 5, v{vOut}")
    a(f"v_lshrrev_b32 v{vT}, 1, v{vG}")
    a(f"v_lshl_add_u32 v{vOut}, v{vT}, 4, v{vOut}")
    srd(sQ, 14, 32768)
    a(f"s_lshl_b32 s{sT}, s{sH}, 13")
    a(f"s_lshl_b32 s{sT+1}, s{sI}, 4")
    a(f"s_add_u32 s{sT}, s{sT}, s{sT+1}")
    a(f"s_add_u32 s{sT}, s{sT}, {WS_ML}")
    a(f"v_lshlrev_b32 v{vT+1}, 9, v{vN}")
    a(f"v_add_u32 v{vT+1}, s{sT}, v{vT+1}", "own (max, sum) granule of row n")
    a(f"v_and_b32 v{vT+2}, 0xffffffe0, v{vMw}")
    a(f"v_mov_b32 v{vS}, v{vM}")
    a(f"v_mov_b32 v{vS+2}, s{sEp}")
    a(f"v_mov_b32 v{vS+3}, s{sNEp}")
    a(f"s_mov_b32 s{sSpin}, 0")
    a("s_waitcnt lgkmcnt(0)")
    a("s_barrier", "X2")
    a(f"ds_read_b32 v{vF}, v{vFa}")
    a(f"ds_read_b128 v[{vS+4}:{vS+7}], v{vT+2} offset:512")
    a(f"ds_read_b128 v[{vS+8}:{vS+11}], v{vT+2} offset:528")
    a("s_waitcnt lgkmcnt(0)")
    a(f"v_readfirstlane_b32 s{sMode}, v{vF}")
    for st in (4, 2):
        for e in range(st):
            a(f"v_add_f32 v{vS+4+e}, v{vS+4+e}, v{vS+4+e+st}")
    a(f"v_add_f32 v{vS+1}, v{vS+4}, v{vS+5}")
    a("s_mov_b64 exec, 0xffff")
    a(f"s_bitcmp1_b32 s{sMode}, 0")
    a("s_cbranch_scc1 L_mlslow")
    a(f"buffer_store_dwordx4 v[{vS}:{vS+3}], v{vT+1}, s[{sWS}:{sWS+3}], 0 offen")
    a("s_branch L_mldone")
    a.label("L_mlslow")
    a(f"buffer_store_dwordx4 v[{vS}:{vS+3}], v{vT+1}, s[{sWS}:{sWS+3}], 0 offen sc1")
    a.label("L_mldone")
    a("s_mov_b64 exec, -1")
    a(f"s_bfe_u32 s{sLo}, s{sMode}, 0x80008")
    a(f"s_lshr_b32 s{sHi}, s{sMode}, 16")
    FM = vQ
    FO = vV
    def slice_setup():
        a(f"s_lshl_b32 s{sT}, s{sH}, 5")
        a(f"s_add_u32 s{sT}, s{sT}, s{sLo}")
        a(f"s_lshl_b32 s{sO0}, s{sT}, 13")
        a(f"s_add_u32 s{sO1}, s{sO0}, 4096")
        a(f"s_lshr_b32 s{sMl}, s{sT}, 1")
        a(f"s_lshl_b32 s{sMl}, s{sMl}, 9")
        a(f"s_add_u32 s{sMl}, s{sMl}, {WS_ML}")
        a(f"s_lshr_b32 s{sOut}, s{sLo}, 3")
        a(f"s_lshl_b32 s{sOut}, s{sOut}, 13")
        a(f"s_and_b32 s{sT}, s{sLo}, 7")
        a(f"s_lshl_b32 s{sT}, s{sT}, 7")
        a(f"s_add_u32 s{sOut}, s{sOut}, s{sT}")
        a(f"s_lshl_b32 s{sT}, s{sH}, 10")
        a(f"s_add_u32 s{sOut}, s{sOut}, s{sT}")
    def ml_loads():
        a(f"buffer_load_dwordx4 v[{FM}:{FM+3}], v{vMa}, s[{sWS}:{sWS+3}], s{sMl} offen sc1")
        a(f"buffer_load_dwordx4 v[{FM+4}:{FM+7}], v{vMa}, s[{sWS}:{sWS+3}], s{sMl} offen offset:256 sc1")
    LPOL = pol("lpol", "sc1")
    def o_loads():
        a(f"buffer_load_dwordx4 v[{FO}:{FO+3}], v{vOa}, s[{sWS}:{sWS+3}], s{sO0} offen {LPOL}")
        a(f"buffer_load_dwordx4 v[{FO+4}:{FO+7}], v{vOa}, s[{sWS}:{sWS+3}], s{sO1} offen {LPOL}")
    slice_setup()
    a.c("pull the lines that will be polled into L2 (results unused)")
    a(f"s_lshl_b32 s{sT}, s{sW}, 11")
    a(f"s_add_u32 s{sT}, s{sT}, s{sO0}")
    a(f"v_lshlrev_b32 v{vT}, 4, v{vLane}")
    a(f"buffer_load_dwordx4 v[{FO+8}:{FO+11}], v{vT}, s[{sWS}:{sWS+3}], s{sT} offen sc1")
    a(f"buffer_load_dwordx4 v[{FO+12}:{FO+15}], v{vT}, s[{sWS}:{sWS+3}], s{sT} offen offset:1024 sc1")
    ml_loads()
    a("s_branch L_y")
    a.label("L_mlpoll")
    ml_loads()
    a("s_waitcnt vmcnt(0)")
    a.label("L_mlchk")
    a(f"v_cmp_ne_u32 vcc, s{sEp}, v{FM+2}")
    a(f"v_cmp_ne_u32 s[{sCm}:{sCm+1}], s{sNEp}, v{FM+3}")
    a(f"v_cmp_ne_u32 s[{sCm+2}:{sCm+3}], s{sEp}, v{FM+6}")
    a(f"v_cmp_ne_u32 s[{sCm+4}:{sCm+5}], s{sNEp}, v{FM+7}")
    a(f"v_max_f32 v{vT}, v{FM}, v{FM+4}")
    a(f"s_or_b64 vcc, vcc, s[{sCm}:{sCm+1}]")
    a(f"s_or_b64 vcc, vcc, s[{sCm+2}:{sCm+3}]")
    a(f"s_or_b64 vcc, vcc, s[{sCm+4}:{sCm+5}]")
    a("s_cbranch_scc0 L_w")
    a(f"s_add_u32 s{sSpin}, s{sSpin}, 1")
    a(f"s_cmp_lt_u32 s{sSpin}, 0x400000")
    a("s_cbranch_scc1 L_mlpoll")
    a("s_branch L_fin")
    a.label("L_w")
    a(f"v_max_f32_dpp v{vT}, v{vT}, v{vT} row_ror:4 {DPP}")
    a("s_nop 1")
    a(f"v_max_f32_dpp v{vT}, v{vT}, v{vT} row_ror:8 {DPP}")
    xreduce("v_max_f32", vT, vT + 1)
    a(f"v_sub_f32 v{FM}, v{FM}, v{vT}")
    a(f"v_sub_f32 v{FM+4}, v{FM+4}, v{vT}")
    a(f"v_exp_f32 v{FM}, v{FM}")
    a(f"v_exp_f32 v{FM+4}, v{FM+4}")
    a(f"v_mul_f32 v{vT}, v{FM}, v{FM+1}")
    a(f"v_fmac_f32 v{vT}, v{FM+4}, v{FM+5}")
    a("s_nop 1")
    a(f"v_add_f32_dpp v{vT}, v{vT}, v{vT} row_ror:4 {DPP}")
    a("s_nop 1")
    a(f"v_add_f32_dpp v{vT}, v{vT}, v{vT} row_ror:8 {DPP}")
    xreduce("v_add_f32", vT, vT + 1)
    a(f"v_rcp_f32 v{vT}, v{vT}")
    a("s_nop 0")
    a(f"v_mul_f32 v{FM}, v{FM}, v{vT}")
    a(f"v_mul_f32 v{FM+4}, v{FM+4}, v{vT}")
    tick(9)
    a("s_branch L_ochk")

    a.label("L_more")
    pop(0)
    load_k(0)
    load_v(0)
    a(f"s_mov_b32 s{sRnd}, 2")
    a("s_branch L_round")

    R0 = vK
    a.label("L_slowo")
    a(f"buffer_store_dwordx4 v[{R0}:{R0+3}], v{vWo}, s[{sWS}:{sWS+3}], 0 offen sc1")
    a("s_branch L_stored")

    a.label("L_y")
    a("s_barrier", "Y: B-wave accumulators are in LDS")
    tick(7)
    for w in range(4):
        a(f"ds_read_b128 v[{R0+4*w}:{R0+4*w+3}], v{vOr} offset:{w*16384}")
    a(f"s_bitcmp1_b32 s{sMode}, 0")
    a("s_waitcnt lgkmcnt(2)")
    a(f"v_pk_add_f32 v[{R0}:{R0+1}], v[{R0}:{R0+1}], v[{R0+4}:{R0+5}]")
    a(f"v_pk_add_f32 v[{R0+2}:{R0+3}], v[{R0+2}:{R0+3}], v[{R0+6}:{R0+7}]")
    a("s_waitcnt lgkmcnt(0)")
    a(f"v_pk_add_f32 v[{R0+8}:{R0+9}], v[{R0+8}:{R0+9}], v[{R0+12}:{R0+13}]")
    a(f"v_pk_add_f32 v[{R0+10}:{R0+11}], v[{R0+10}:{R0+11}], v[{R0+14}:{R0+15}]")
    a(f"v_pk_add_f32 v[{R0}:{R0+1}], v[{R0}:{R0+1}], v[{R0+8}:{R0+9}]")
    a(f"v_pk_add_f32 v[{R0+2}:{R0+3}], v[{R0+2}:{R0+3}], v[{R0+10}:{R0+11}]")
    a(f"v_perm_b32 v{R0}, v{R0}, v{vTag}, s{sT0}")
    a(f"v_perm_b32 v{R0+3}, v{R0+3}, v{vTag}, s{sT3}")
    a("s_cbranch_scc1 L_slowo")
    a(f"buffer_store_dwordx4 v[{R0}:{R0+3}], v{vWo}, s[{sWS}:{sWS+3}], 0 offen {pol('spol', 'def')}")
    a.label("L_stored")
    a(f"s_cmp_ge_u32 s{sW}, 4")
    tick(8)
    a("s_cbranch_scc1 L_fin")
    a(f"s_mov_b32 s{sT3}, 0x0c0c0400")
    a(f"s_cmp_ge_u32 s{sLo}, s{sHi}")
    a("s_cbranch_scc1 L_fin")
    if opts.get("mlearly", "0") == "1":
        o_loads()
        a("s_waitcnt vmcnt(3)")
        a("s_branch L_mlchk")
    a.label("L_first")
    ml_loads()
    o_loads()
    a("s_waitcnt vmcnt(2)")
    a("s_branch L_mlchk")
    a.label("L_opoll")
    tick(15)
    o_loads()
    a(f"s_add_u32 s{sSpin}, s{sSpin}, 1")
    a(f"s_cmp_ge_u32 s{sSpin}, 0x400000")
    a("s_cbranch_scc1 L_fin")
    a.label("L_ochk")
    a("s_waitcnt vmcnt(1)")
    a(f"v_perm_b32 v{vT}, v{FO+3}, v{FO}, s{sT3}")
    a(f"v_pk_mul_f32 v[{FO}:{FO+1}], v[{FO}:{FO+1}], v[{FM}:{FM+1}] op_sel_hi:[1,0]")
    a(f"v_pk_mul_f32 v[{FO+2}:{FO+3}], v[{FO+2}:{FO+3}], v[{FM}:{FM+1}] op_sel_hi:[1,0]")
    a(f"v_cmp_ne_u32 vcc, v{vT}, v{vTagC}")
    a("s_waitcnt vmcnt(0)")
    a(f"v_perm_b32 v{vT+1}, v{FO+7}, v{FO+4}, s{sT3}")
    a(f"v_pk_fma_f32 v[{FO}:{FO+1}], v[{FO+4}:{FO+5}], v[{FM+4}:{FM+5}], v[{FO}:{FO+1}] op_sel_hi:[1,0,1]")
    a(f"v_cmp_ne_u32 s[{sCm}:{sCm+1}], v{vT+1}, v{vTagC}")
    a(f"v_pk_fma_f32 v[{FO+2}:{FO+3}], v[{FO+6}:{FO+7}], v[{FM+4}:{FM+5}], v[{FO+2}:{FO+3}] op_sel_hi:[1,0,1]")
    a(f"v_permlane32_swap_b32 v{FO}, v{FO+1}")
    a(f"s_or_b64 vcc, vcc, s[{sCm}:{sCm+1}]")
    a("s_cbranch_scc1 L_opoll")
    a(f"v_permlane32_swap_b32 v{FO+2}, v{FO+3}")
    a(f"v_add_f32 v{FO}, v{FO}, v{FO+1}")
    a(f"v_add_f32 v{FO+2}, v{FO+2}, v{FO+3}")
    a("s_nop 1")
    a(f"v_permlane16_swap_b32 v{FO}, v{FO+2}")
    a("s_nop 0")
    a(f"v_add_f32 v{FO}, v{FO}, v{FO+2}")
    a("s_nop 1")
    a(f"v_add_f32_dpp v{FO}, v{FO}, v{FO} row_ror:4 {DPP}")
    a("s_nop 1")
    a(f"v_add_f32_dpp v{FO}, v{FO}, v{FO} row_ror:8 {DPP}")
    a("s_mov_b32 exec_lo, 0x000f000f")
    a("s_mov_b32 exec_hi, 0x000f000f")
    a(f"v_cvt_pk_bf16_f32 v{FO}, v{FO}, v{FO}")
    a(f"buffer_store_short v{FO}, v{vOut}, s[{sQ}:{sQ+3}], s{sOut} offen {OPOL}")
    a("s_mov_b64 exec, -1")
    tick(10)
    a(f"s_add_u32 s{sLo}, s{sLo}, 1")
    a(f"s_cmp_ge_u32 s{sLo}, s{sHi}")
    a("s_cbranch_scc1 L_epoch")
    slice_setup()
    a("s_branch L_first")
    a.label("L_epoch")
    a.c("every workgroup of this head has read the epoch word: advance it for the next launch")
    a(f"s_cmp_lg_u32 s{sHi}, 32")
    a("s_cbranch_scc1 L_fin")
    a(f"s_lshl_b32 s{sT}, s{sH}, 7")
    a(f"s_add_u32 s{sT}, s{sT}, {WS_EP}")
    a(f"v_mov_b32 v{vT}, s{sT}")
    a(f"v_mov_b32 v{vT+1}, s{sEp}")
    a("s_mov_b64 exec, 1")
    a(f"buffer_store_dword v{vT+1}, v{vT}, s[{sWS}:{sWS+3}], 0 offen")
    a.label("L_fin")
    if STAMP:
        a("s_mov_b64 exec, -1")
        a("s_waitcnt vmcnt(0)")
        tick(11)
        a(f"v_writelane_b32 v{vX+1}, s{sSpin}, 12")
        a(f"v_writelane_b32 v{vX}, 1, 12")
        flush_ticks()
    a.label("L_end")
    a("s_endpgm")

    head = f"""; Paged (block-table) GQA decode attention.
; @launch grid=(256,1,1) block=(512,1,1) lds={LDS_BYTES}
.amdgcn_target "amdgcn-amd-amdhsa--gfx950"
.text
.globl {NAME}_kernel
.p2align 8
.type {NAME}_kernel,@function
"""
    tail = f""".section .rodata,"a"
.p2align 6
.amdhsa_kernel {NAME}_kernel
  .amdhsa_next_free_vgpr {NVGPR}
  .amdhsa_next_free_sgpr 102
  .amdhsa_accum_offset {NVGPR}
  .amdhsa_group_segment_fixed_size 0
  .amdhsa_kernarg_size 64
  .amdhsa_user_sgpr_count 2
  .amdhsa_user_sgpr_kernarg_segment_ptr 1
  .amdhsa_system_sgpr_workgroup_id_x 1
.end_amdhsa_kernel
"""
    return head + a.text() + tail

if __name__ == "__main__":
    opts = dict(kv.split("=", 1) for kv in sys.argv[2:])
    open(sys.argv[1], "w").write(gen(opts))
```

```python
import sys

NAME = "standalone__paged_block_table_kv_radixattention__decode"

class Asm:
    def __init__(self):
        self.lines = []
    def __call__(self, s="", c=None):
        s = s.strip()
        self.lines.append("    " + s + (f"    ; {c}" if c else ""))
    def label(self, n):
        self.lines.append(n + ":")
    def c(self, s):
        self.lines.append("    ; " + s)
    def text(self):
        return "\n".join(self.lines) + "\n"

KV_BYTES = 1280 * 32768
WS_ML = 2 << 20
WS_AR = WS_ML + 65536
WS_EP = WS_AR + 32768
NEG = "0xf149f2ca"
DPP = "row_mask:0xf bank_mask:0xf"

def gen(opts):
    def pol(k, d):
        return opts.get(k, d).replace("+", " ").replace("def", "")
    def flag(k, d):
        return opts.get(k, d) == "1"
    POL = opts.get("pol", "nt")
    KPOL, VPOL = pol("kpol", POL), pol("vpol", POL)
    OPOL = pol("opol", "def")
    PERM = opts.get("perm", "10543276")
    STAMP = flag("stamp", "0")
    PRIO = flag("prio", "1")
    PREW = flag("prew", "1")
    EARLY = flag("early", "1")
    PREML = flag("preml", "1")
    FORCE = opts.get("force", "")

    a = Asm()
    INV = 131072
    MX = INV + 1024
    LS = MX + 512
    FLG = LS + 512
    QL = FLG + 256
    LDS_BYTES = QL + 4096
    ARS = int(opts.get("ars", "4"))
    CHKPOS = opts.get("chkpos", "pre")
    BSPEC = flag("bspec", "1")
    LATEBAR = flag("latebar", "0")
    WARM = flag("warm", "1")
    CNT = INV + 62 * 16
    RS = 528

    vLane, vG, vN, vVo0, vVo1, vM, vL, vC = 1, 2, 3, 4, 5, 6, 7, 8
    vB4 = 9
    vKs = 10
    vKr = 14
    vT = 18
    vS = 28
    vBias = 44
    vP = 60
    vQ = 68
    vAcc = 84
    vK = 116
    vV = 180
    vOw, vOr, vWo, vMw, vTag, vF, vFa = 244, 245, 246, 247, 248, 249, 250
    vX = 252
    NVGPR = 256
    vChk = vBias + 8

    sK, sV, sQ, sWS = 20, 24, 28, 32
    sN, sNB, sNF = 36, 40, 44
    sH, sI, sW, sWb = 48, 49, 50, 51
    sP, sR, sLc = 52, 56, 60
    sU, sRnd, sSelLo, sSelHi, sSpecBad, sEp = 64, 65, 66, 67, 68, 69
    sRm = 70
    sCm = 78
    sNEp, sXcc, sAr = 86, 87, 88
    sM0, sM1 = 90, 92
    sT = 94
    sSt = 98
    sLo, sHi, sSpin, sT0, sT3, sMode, sWok, sO0, sO1, sMl, sOut = 36, 37, 38, 39, 40, 41, 42, 43, 44, 45, 46

    def tick(idx):
        if not STAMP:
            return
        a(f"s_memrealtime s[{sSt}:{sSt+1}]")
        a("s_waitcnt lgkmcnt(0)")
        a(f"v_writelane_b32 v{vX}, s{sSt}, {idx}")
        a(f"v_writelane_b32 v{vX+1}, s{sSt+1}, {idx}")
    def flush_ticks():
        a("s_mov_b64 exec, 0xffff")
        a(f"s_lshl_b32 s{sSt}, s2, 3")
        a(f"s_add_u32 s{sSt}, s{sSt}, s{sW}")
        a(f"s_lshl_b32 s{sSt}, s{sSt}, 7")
        a(f"s_add_u32 s{sSt}, s{sSt}, {16<<20}")
        a(f"v_mbcnt_lo_u32_b32 v{vX+2}, -1, 0")
        a(f"v_lshlrev_b32 v{vX+2}, 3, v{vX+2}")
        a(f"v_add_u32 v{vX+2}, s{sSt}, v{vX+2}")
        a(f"v_cmp_ne_u32 vcc, 0, v{vX}")
        a("s_and_b64 exec, exec, vcc")
        a(f"buffer_store_dwordx2 v[{vX}:{vX+1}], v{vX+2}, s[{sWS}:{sWS+3}], 0 offen")

    def srd(d, p, nbytes):
        a(f"s_mov_b32 s{d}, s{p}")
        a(f"s_and_b32 s{d+1}, s{p+1}, 0xffff")
        a(f"s_mov_b32 s{d+2}, {nbytes}")
        a(f"s_mov_b32 s{d+3}, 0x20000")
    def load_k(k):
        a(f"s_add_u32 m0, s{sWb}, {k*4096}")
        a(f"s_mov_b32 s{sK+2}, s{sR+k}")
        for q in range(4):
            a(f"buffer_load_dwordx4 v{vKs+q}, s[{sK}:{sK+3}], s{sP+k} offen offset:{q*1024} {KPOL} lds")
    def load_v(k):
        a(f"s_mov_b32 s{sV+2}, s{sR+k}")
        for i in range(4):
            r = vV + 16 * k + 4 * i
            a(f"buffer_load_dwordx4 v[{r}:{r+3}], v{vVo0 + (i>>1)}, s[{sV}:{sV+3}], s{sP+k} offen offset:{2048*(i&1)} {VPOL}")
    def pop(k):
        a(f"s_ff1_i32_b32 s{sT}, s{sU}", "next candidate of this wave (-1: none)")
        a(f"s_bitset0_b32 s{sU}, s{sT}")
        a(f"s_add_u32 s{sT+1}, s{sT}, 8")
        a(f"s_and_b32 s{sT+2}, s{sT+1}, 0x38")
        a(f"s_sub_u32 s{sT+2}, s{sI}, s{sT+2}")
        a(f"s_and_b32 s{sT+2}, s{sT+2}, 31")
        a(f"s_lshl_b32 s{sP+k}, s{sT+1}, 5")
        a(f"s_add_u32 s{sP+k}, s{sP+k}, s{sT+2}")
        a(f"s_lshl_b32 s{sP+k}, s{sP+k}, 15")
        a(f"s_lshl_b32 s{sLc+k}, s{sT+1}, 4")
        a(f"s_cmp_lt_i32 s{sT}, 0")
        a(f"s_cselect_b32 s{sR+k}, 0, {KV_BYTES}")
        a(f"s_cselect_b32 s{sLc+k}, {63*16}, s{sLc+k}")
    def make_tag(dst, vu, tmp):
        a(f"s_lshr_b32 s{sT}, s{sEp}, 8")
        a(f"s_add_u32 s{sT}, s{sT}, 0x5a")
        a(f"v_mad_u32_u24 v{dst}, v{vu}, 37, s{sEp}")
        a(f"v_mad_u32_u24 v{tmp}, v{vu}, 59, s{sT}")
        a(f"s_mov_b32 s{sT}, 0x0c0c0400")
        a(f"v_perm_b32 v{dst}, v{tmp}, v{dst}, s{sT}")
    def xreduce(op, v, t):
        a(f"v_mov_b32 v{t}, v{v}")
        a("s_nop 1")
        a(f"v_permlane32_swap_b32 v{v}, v{t}")
        a("s_nop 0")
        a(f"{op} v{v}, v{v}, v{t}")
        a(f"v_mov_b32 v{t}, v{v}")
        a("s_nop 1")
        a(f"v_permlane16_swap_b32 v{v}, v{t}")
        a("s_nop 0")
        a(f"{op} v{v}, v{v}, v{t}")
    a.label(f"{NAME}_kernel")
    a("s_cmp_ge_u32 s2, 256")
    a("s_cbranch_scc1 L_end")
    a("s_load_dwordx16 s[4:19], s[0:1], 0")
    if STAMP:
        a(f"v_mov_b32 v{vX}, 0")
        a(f"v_mov_b32 v{vX+1}, 0")
        a(f"s_memrealtime s[{sSt+2}:{sSt+3}]")
    a(f"v_lshrrev_b32 v{vT}, 6, v0")
    a(f"v_and_b32 v{vLane}, 63, v0")
    a(f"v_readfirstlane_b32 s{sW}, v{vT}")
    if PERM == "01234567":
        a(f"s_and_b32 s{sH}, s2, 7")
    else:
        a(f"s_lshl_b32 s{sH}, s2, 2")
        a(f"s_lshr_b32 s{sH}, {hex(int(''.join(reversed(PERM)), 16))}, s{sH}")
        a(f"s_and_b32 s{sH}, s{sH}, 7", "kv head")
    a(f"s_lshr_b32 s{sI}, s2, 3", "workgroup index inside the head")
    if FORCE == "late":
        a(f"s_cmp_lg_u32 s{sI}, 5")
        a("s_cbranch_scc1 L_notlate")
        a("s_movk_i32 s3, 200")
        a.label("L_latespin")
        a("s_sleep 8")
        a("s_sub_u32 s3, s3, 1")
        a("s_cmp_lg_u32 s3, 0")
        a("s_cbranch_scc1 L_latespin")
        a.label("L_notlate")
    a(f"v_lshrrev_b32 v{vG}, 4, v{vLane}")
    a(f"v_and_b32 v{vN}, 15, v{vLane}")
    a(f"v_lshlrev_b32 v{vT+1}, 2, v0")
    a(f"v_lshlrev_b32 v{vT+2}, 4, v{vLane}")
    a(f"v_add_u32 v{vT+2}, {INV}, v{vT+2}")
    for r in range(4):
        a(f"v_mov_b32 v{vS+r}, 0")
    a(f"ds_write_b128 v{vT+2}, v[{vS}:{vS+3}]", "clear the inverse map")
    a(f"s_lshl_b32 s{sT}, s{sH}, 8")
    a(f"s_lshl_b32 s{sWb}, s{sW}, 14")
    a(f"v_xor_b32 v{vT+3}, v{vN}, v{vG}")
    a(f"v_lshlrev_b32 v{vT+3}, 4, v{vT+3}")
    a(f"v_lshlrev_b32 v{vT+4}, 11, v{vG}")
    a(f"v_add_u32 v{vT+4}, s{sT}, v{vT+4}")
    for q in range(4):
        if q == 0:
            a(f"v_add_u32 v{vKs}, v{vT+3}, v{vT+4}")
        else:
            a(f"v_xor_b32 v{vKs+q}, {64*q}, v{vT+3}")
            a(f"v_add_u32 v{vT+4}, {8192-1024}, v{vT+4}")
            a(f"v_add_u32 v{vKs+q}, v{vKs+q}, v{vT+4}")
    a(f"v_lshlrev_b32 v{vWo}, 13, v{vG}")
    a(f"v_lshl_add_u32 v{vWo}, v{vN}, 4, v{vWo}")
    a(f"v_add_u32 v{vVo0}, s{sT}, v{vWo}")
    a(f"v_add_u32 v{vVo1}, 4096, v{vVo0}")
    a(f"v_lshrrev_b32 v{vT+5}, 2, v{vN}")
    a(f"s_lshl_b32 s{sT+1}, s{sW}, 6")
    a(f"v_xor_b32 v{vT+6}, s{sT+1}, v{vT+3}")
    a(f"v_lshl_add_u32 v{vT+6}, v{vG}, 8, v{vT+6}")
    a(f"s_lshl_b32 s{sT+1}, s{sH}, 10")
    a(f"s_lshl_b32 s{sT+2}, s{sW}, 13")
    a(f"s_add_u32 s{sT+1}, s{sT+1}, s{sT+2}")
    a(f"s_lshl_b32 s{sT+2}, s{sW}, 10")
    a(f"s_add_u32 m0, s{sT+2}, {QL}")
    a(f"s_lshl_b32 s{sP}, s{sW}, 5")
    a(f"s_add_u32 s{sP}, s{sP}, s{sI}")
    a(f"s_lshl_b32 s{sP}, s{sP}, 15", "first block of this wave: physical block 32*w + i")
    a(f"s_lshl_b32 s{sLc}, s{sW}, 4")
    a(f"s_mov_b32 s{sR}, {KV_BYTES}")
    a(f"s_mov_b32 s{sK+3}, 0x20000")
    a(f"s_mov_b32 s{sV+3}, 0x20000")
    a(f"s_mov_b32 s{sQ+2}, 32768")
    a(f"s_mov_b32 s{sQ+3}, 0x20000")
    a(f"s_lshl_b32 s{sT+3}, s{sH}, 7")
    a(f"s_add_u32 s{sT+3}, s{sT+3}, {WS_EP}")
    a("s_waitcnt lgkmcnt(0)")
    a("s_add_u32 s10, s10, 4096")
    a("s_addc_u32 s11, s11, 0")
    for b in range(4):
        a(f"global_load_dword v{vBias+b}, v{vT+1}, s[10:11] offset:{b*2048-4096}")
    a(f"s_load_dwordx4 s[{sN}:{sN+3}], s[12:13], 0")
    a(f"s_load_dword s{sEp}, s[18:19], s{sT+3}")
    a(f"s_mov_b32 s{sK}, s6")
    a(f"s_and_b32 s{sK+1}, s7, 0xffff")
    a(f"s_mov_b32 s{sV}, s8")
    a(f"s_and_b32 s{sV+1}, s9, 0xffff")
    a(f"s_mov_b32 s{sQ}, s4")
    a(f"s_and_b32 s{sQ+1}, s5, 0xffff")
    a(f"s_cmp_ge_u32 s{sW}, 4")
    if not LATEBAR:
        a("s_barrier")
    a("s_cbranch_scc1 L_bspec")
    if PRIO:
        a("s_setprio 2")
    a(f"buffer_load_dwordx4 v{vT+6}, s[{sQ}:{sQ+3}], s{sT+1} offen lds", "four query rows -> LDS")
    load_k(0)
    load_v(0)
    if BSPEC:
        a("s_branch L_nospec")
    a.label("L_bspec")
    if BSPEC:
        load_k(0)
    a.label("L_nospec")
    if STAMP:
        a(f"v_writelane_b32 v{vX}, s{sSt+2}, 0")
        a(f"v_writelane_b32 v{vX+1}, s{sSt+3}, 0")
    tick(1)
    srd(sWS, 18, 1 << 28)
    a(f"s_mov_b32 s{sSelLo}, 0x05040100")
    a(f"s_mov_b32 s{sSelHi}, 0x07060302")
    a(f"s_lshr_b32 s{sRnd}, s{sW}, 2", "0: first round of an A-wave, 1: B-wave, 2: later round of an A-wave")
    a(f"v_lshlrev_b32 v{vT+4}, 8, v{vN}")
    a(f"v_add_u32 v{vT+4}, s{sWb}, v{vT+4}")
    for j in range(4):
        if j == 0:
            a(f"v_add_u32 v{vKr}, v{vT+3}, v{vT+4}")
        else:
            a(f"v_xor_b32 v{vKr+j}, {64*j}, v{vT+3}")
            a(f"v_add_u32 v{vKr+j}, v{vKr+j}, v{vT+4}")
    a(f"v_lshlrev_b32 v{vB4}, 2, v{vT+5}")
    a(f"v_add_u32 v{vB4}, {INV}, v{vB4}")
    a(f"v_mov_b32 v{vM}, {NEG}")
    a(f"v_mov_b32 v{vL}, 0")
    a(f"v_mov_b32 v{vFa}, {FLG}")
    a(f"v_mov_b32 v{vF}, 0")
    a(f"v_mov_b32 v{vT+8}, 0")
    a(f"v_mul_u32_u24 v{vOw}, {RS}, v{vN}")
    a(f"v_lshl_add_u32 v{vOw}, v{vG}, 7, v{vOw}")
    a(f"v_add_u32 v{vOw}, s{sWb}, v{vOw}")
    a(f"s_and_b32 s{sT+1}, s{sW}, 3")
    a(f"s_mul_i32 s{sT}, s{sT+1}, {2*RS}")
    a(f"s_add_u32 s{sT}, s{sT}, 0x10000")
    a(f"v_lshrrev_b32 v{vOr}, 5, v{vLane}")
    a(f"v_add_u32 v{vOr}, v{vOr}, v{vLane}")
    a(f"v_lshlrev_b32 v{vOr}, 4, v{vOr}")
    a(f"v_add_u32 v{vOr}, s{sT}, v{vOr}")
    a(f"s_lshl_b32 s{sT}, s{sH}, 3")
    a(f"s_add_u32 s{sT}, s{sT}, s{sT+1}")
    a(f"s_lshl_b32 s{sT}, s{sT}, 15")
    a(f"s_lshl_b32 s{sT+1}, s{sI}, 8")
    a(f"s_add_u32 s{sT}, s{sT}, s{sT+1}")
    a(f"v_add_u32 v{vWo}, s{sT}, v{vWo}")
    a(f"s_lshl_b32 s{sT}, s{sW}, 2")
    a(f"s_add_u32 s{sT}, s{sT}, {MX}")
    a(f"v_lshlrev_b32 v{vMw}, 5, v{vN}")
    a(f"v_add_u32 v{vMw}, s{sT}, v{vMw}")
    a(f"s_getreg_b32 s{sXcc}, hwreg(HW_REG_XCC_ID, 0, 4)")
    a(f"s_lshl_b32 s{sAr}, s{sH}, {5 + ARS}")
    a(f"s_add_u32 s{sAr}, s{sAr}, {WS_AR}")
    a("s_waitcnt lgkmcnt(0)")
    a(f"s_add_u32 s{sEp}, s{sEp}, 1", "hand-off epoch of this launch")
    a(f"s_not_b32 s{sNEp}, s{sEp}")
    make_tag(vTag, vN, vT + 4)
    a(f"v_mov_b32 v{vC}, 0x3e0293ee", "log2(e)/sqrt(128)")
    for b in range(4):
        a(f"s_min_i32 s{sT}, s{sN+b}, 0x2000")
        a(f"s_cmp_lt_i32 s{sN+b}, 1")
        a(f"s_cselect_b32 s{sN+b}, 0x2000, s{sT}")
        a(f"s_cselect_b32 s{sT}, {hex(0x000f000f << (4*b))}, 0")
        if b == 0:
            a(f"s_mov_b32 s{sCm}, s{sT}")
        else:
            a(f"s_or_b32 s{sCm}, s{sCm}, s{sT}")
        a(f"s_add_u32 s{sNB+b}, s{sN+b}, 15")
        a(f"s_lshr_b32 s{sNB+b}, s{sNB+b}, 4")
        a(f"s_lshr_b32 s{sNF+b}, s{sN+b}, 4")
    a(f"s_mov_b32 s{sCm+1}, s{sCm}")
    a(f"v_cndmask_b32 v{vC}, v{vC}, 0, s[{sCm}:{sCm+1}]", "ctx <= 0: every position masked -> uniform weights")
    a(f"s_and_b32 s{sT}, s{sN}, 15")
    for b in range(1, 4):
        a(f"s_and_b32 s{sT+1}, s{sN+b}, 15")
        a(f"s_lshl_b32 s{sT+1}, s{sT+1}, {4*b}")
        a(f"s_or_b32 s{sT}, s{sT}, s{sT+1}")
    a(f"v_and_b32 v{vT+4}, 12, v{vN}")
    a(f"v_lshrrev_b32 v{vT+4}, v{vT+4}, s{sT}")
    a(f"v_and_b32 v{vT+4}, 15, v{vT+4}")
    a(f"v_lshlrev_b32 v{vT+5}, 2, v{vG}")
    a(f"v_sub_u32 v{vT+4}, v{vT+4}, v{vT+5}")
    for r in range(4):
        a(f"v_cmp_lt_i32 s[{sRm+2*r}:{sRm+2*r+1}], {r}, v{vT+4}")
    a(f"v_mov_b32 v{vT+7}, 0x10000")
    a(f"s_movk_i32 s{sT+2}, 1280")
    if LATEBAR:
        a("s_barrier")
    a("s_waitcnt vmcnt(8)")
    a(f"s_cmp_lt_u32 s{sW}, 4")
    a("s_cbranch_scc1 L_tbl")
    a(f"s_waitcnt vmcnt({4 if BSPEC else 0})")
    a.label("L_tbl")
    tick(2)
    for b in range(4):
        p = vBias + b
        a(f"v_lshrrev_b32 v{vT+4}, 5, v{p}")
        a(f"v_and_b32 v{vT+5}, 0x38, v{vT+4}")
        a(f"v_add_u32 v{vT+5}, v{vT+5}, v{p}")
        a(f"v_and_b32 v{vT+5}, 31, v{vT+5}")
        a(f"v_cmp_gt_u32 vcc, s{sNF+b}, v0")
        a(f"v_cmp_eq_u32 s[{sCm}:{sCm+1}], s{sI}, v{vT+5}")
        a(f"v_cmp_gt_u32 s[{sCm+2}:{sCm+3}], s{sNB+b}, v0")
        a(f"v_cmp_gt_u32 s[{sCm+4}:{sCm+5}], s{sT+2}, v{p}")
        a(f"v_cndmask_b32 v{vT+5}, v{vT+7}, 1, vcc")
        a(f"v_lshlrev_b32 v{vT+4}, 4, v{vT+4}")
        a(f"s_and_b64 s[{sCm}:{sCm+1}], s[{sCm}:{sCm+1}], s[{sCm+2}:{sCm+3}]")
        a(f"v_add_u32 v{vT+4}, {INV + 4*b}, v{vT+4}")
        a(f"s_and_b64 exec, s[{sCm}:{sCm+1}], s[{sCm+4}:{sCm+5}]")
        a(f"ds_add_u32 v{vT+4}, v{vT+5}")
        a("s_mov_b64 exec, -1")
    a("s_waitcnt lgkmcnt(0)")
    a("s_barrier")
    a(f"ds_read_b128 v[{vS}:{vS+3}], v{vT+2}")
    a(f"s_sub_u32 s{sT}, {QL}, s{sWb}")
    for j in range(4):
        a(f"v_add_u32 v{vP+j}, s{sT}, v{vKr+j}")
        a(f"ds_read_b128 v[{vQ+4*j}:{vQ+4*j+3}], v{vP+j}")
    a("s_waitcnt lgkmcnt(4)")
    a(f"v_or3_b32 v{vS}, v{vS}, v{vS+1}, v{vS+2}")
    a(f"v_or_b32 v{vS}, v{vS}, v{vS+3}")
    a(f"v_cmp_ne_u32 vcc, 0, v{vS}")
    a("s_nop 0")
    a(f"s_bitcmp0_b32 vcc_lo, s{sW}")
    a(f"s_cselect_b32 s{sSpecBad}, 1, 0")
    a(f"s_lshr_b64 s[{sCm}:{sCm+1}], vcc, 8")
    a(f"v_mbcnt_lo_u32_b32 v{vT+4}, s{sCm}, 0")
    a(f"v_cmp_gt_u32 vcc, 24, v{vT+4}")
    a(f"v_and_b32 v{vT+5}, 3, v{vT+4}")
    a(f"v_and_b32 v{vT+4}, 7, v{vT+4}")
    a(f"v_cndmask_b32 v{vT+4}, v{vT+5}, v{vT+4}, vcc")
    a(f"v_cmp_eq_u32 vcc, s{sW}, v{vT+4}")
    a("s_nop 0")
    a(f"s_and_b32 s{sU}, vcc_lo, s{sCm}")
    tick(3)
    a(f"s_cmp_lt_u32 s{sW}, 4")
    a("s_cbranch_scc1 L_a0")
    a(f"s_cmp_eq_u32 s{sSpecBad}, 0")
    a(f"s_cselect_b32 s{sR}, s{sR}, 0")
    if PRIO:
        a("s_setprio 1")
    if not BSPEC:
        load_k(0)
    a.label("L_a0")
    a(f"s_cmp_lg_u32 s{sW}, 0")
    a("s_cbranch_scc1 L_round")
    a.c("arrival mark of this workgroup")
    a(f"s_lshl_b32 s{sT}, s{sI}, {ARS}")
    a(f"v_mov_b32 v{vS+9}, s{sT}")
    a(f"v_mov_b32 v{vS+12}, s{sEp}")
    a(f"v_mov_b32 v{vS+13}, s{sNEp}")
    a(f"v_mov_b32 v{vS+14}, s{sXcc}")
    a("s_mov_b64 exec, 1")
    a(f"buffer_store_dwordx3 v[{vS+12}:{vS+14}], v{vS+9}, s[{sWS}:{sWS+3}], s{sAr} offen sc1")
    a("s_mov_b64 exec, -1")

    a.label("L_round")
    for k in range(1, 4):
        pop(k)
        load_k(k)
    tick(4)
    for k in range(4):
        a(f"v_add_u32 v{vT+k}, s{sLc+k}, v{vB4}")
        a(f"ds_read_b32 v{vT+k}, v{vT+k}")
    a(f"s_cmp_lg_u32 s{sRnd}, 0")
    a("s_cbranch_scc1 L_noinit")
    for r in range(32):
        a(f"v_mov_b32 v{vAcc+r}, 0")
    a.label("L_noinit")
    a("s_waitcnt lgkmcnt(0)")
    for k in range(4):
        a(f"v_and_b32 v{vT+4}, 0xffff, v{vT+k}")
        a(f"v_lshrrev_b32 v{vT+5}, 16, v{vT+k}")
        a(f"v_add_u32 v{vT+5}, v{vT+5}, v{vT+4}")
        a(f"v_cvt_f32_u32 v{vT+4}, v{vT+4}")
        a(f"v_cvt_f32_u32 v{vT+5}, v{vT+5}")
        a(f"v_log_f32 v{vT+4}, v{vT+4}")
        a(f"v_log_f32 v{vT+5}, v{vT+5}")
        a("s_nop 0")
        for r in range(4):
            a(f"v_cndmask_b32 v{vBias+4*k+r}, v{vT+4}, v{vT+5}, s[{sRm+2*r}:{sRm+2*r+1}]")
    for k in range(4):
        a(f"s_waitcnt vmcnt({12 - 4*k})")
        for j in range(4):
            r = vK + 16 * k + 4 * j
            a(f"ds_read_b128 v[{r}:{r+3}], v{vKr+j} offset:{k*4096}")
        if k > 0:
            kk = k - 1
            a("s_waitcnt lgkmcnt(4)")
            for j in range(4):
                r = vK + 16 * kk + 4 * j
                c = "0" if j == 0 else f"v[{vS+4*kk}:{vS+4*kk+3}]"
                a(f"v_mfma_f32_16x16x32_bf16 v[{vS+4*kk}:{vS+4*kk+3}], v[{r}:{r+3}], v[{vQ+4*j}:{vQ+4*j+3}], {c}")
    for j in range(4):
        r = vK + 48 + 4 * j
        c = "0" if j == 0 else f"v[{vS+12}:{vS+15}]"
        a(f"s_waitcnt lgkmcnt({3-j})")
        a(f"v_mfma_f32_16x16x32_bf16 v[{vS+12}:{vS+15}], v[{r}:{r+3}], v[{vQ+4*j}:{vQ+4*j+3}], {c}")
    a(f"s_cmp_eq_u32 s{sSpecBad}, 0")
    a("s_cbranch_scc1 L_specok")
    for r in range(4):
        a(f"v_mov_b32 v{vS+r}, 0")
    for r in range(16):
        a(f"v_mov_b32 v{vV+r}, 0")
    a(f"s_mov_b32 s{sSpecBad}, 0")
    a.label("L_specok")
    for e in range(16):
        a(f"v_fma_f32 v{vS+e}, v{vS+e}, v{vC}, v{vBias+e}")
    a(f"v_max3_f32 v{vT}, v{vS}, v{vS+1}, v{vS+2}")
    a(f"v_max3_f32 v{vT+1}, v{vS+3}, v{vS+4}, v{vS+5}")
    a(f"v_max3_f32 v{vT}, v{vT}, v{vS+6}, v{vS+7}")
    a(f"v_max3_f32 v{vT+1}, v{vT+1}, v{vS+8}, v{vS+9}")
    a(f"v_max3_f32 v{vT}, v{vT}, v{vS+10}, v{vS+11}")
    a(f"v_max3_f32 v{vT+1}, v{vT+1}, v{vS+12}, v{vS+13}")
    a(f"v_max3_f32 v{vT}, v{vT}, v{vS+14}, v{vS+15}")
    a(f"v_max3_f32 v{vT}, v{vT}, v{vT+1}, v{vM}")
    xreduce("v_max_f32", vT, vT + 1)
    a(f"s_cmp_ge_u32 s{sW}, 4")
    a(f"ds_write_b32 v{vMw}, v{vT}")
    a(f"v_and_b32 v{vT+2}, 0xffffffe0, v{vMw}")
    tick(13)
    a("s_cbranch_scc1 L_bx")
    if PRIO:
        a("s_setprio 0")
    def chk():
        a(f"s_cmp_lg_u32 s{sW}, 0")
        a("s_cbranch_scc1 L_nochk")
        a(f"v_and_b32 v{vF}, 31, v{vLane}")
        a(f"v_lshlrev_b32 v{vF}, {ARS}, v{vF}")
        a(f"buffer_load_dwordx3 v[{vChk}:{vChk+2}], v{vF}, s[{sWS}:{sWS+3}], s{sAr} offen sc1")
        a.label("L_nochk")
    if CHKPOS == "pre":
        chk()
    for k in range(1, 4):
        load_v(k)
    if CHKPOS == "post":
        chk()
    a(f"s_cmp_lg_u32 s{sU}, 0")
    a("s_cbranch_scc1 L_own")
    a("s_waitcnt lgkmcnt(0)")
    a("s_barrier", "X: row maxima of all waves are in LDS")
    a("s_branch L_wgmax")
    a.label("L_bx")
    a("s_waitcnt lgkmcnt(0)")
    a("s_barrier", "X")
    for k in range(4):
        load_v(k)
    a.label("L_wgmax")
    tick(14)
    a(f"ds_read_b128 v[{vBias}:{vBias+3}], v{vT+2}")
    a(f"ds_read_b128 v[{vBias+4}:{vBias+7}], v{vT+2} offset:16")
    a("s_waitcnt lgkmcnt(0)")
    a(f"v_max3_f32 v{vT}, v{vBias}, v{vBias+1}, v{vBias+2}")
    a(f"v_max3_f32 v{vT+1}, v{vBias+3}, v{vBias+4}, v{vBias+5}")
    a(f"v_max3_f32 v{vT}, v{vT}, v{vBias+6}, v{vBias+7}")
    a(f"v_max_f32 v{vT}, v{vT}, v{vT+1}")
    a.label("L_own")
    a(f"s_cmp_lg_u32 s{sRnd}, 2")
    a("s_cbranch_scc1 L_join")
    a(f"v_sub_f32 v{vT+2}, v{vM}, v{vT}")
    a(f"v_exp_f32 v{vT+2}, v{vT+2}")
    a("s_nop 0")
    a(f"v_mul_f32 v{vL}, v{vL}, v{vT+2}")
    for r in range(0, 32, 2):
        a(f"v_pk_mul_f32 v[{vAcc+r}:{vAcc+r+1}], v[{vAcc+r}:{vAcc+r+1}], v[{vT+2}:{vT+3}] op_sel_hi:[1,0]")
    a.label("L_join")
    a(f"v_mov_b32 v{vM}, v{vT}")
    for e in range(16):
        a(f"v_sub_f32 v{vS+e}, v{vS+e}, v{vT}")
    for e in range(16):
        a(f"v_exp_f32 v{vS+e}, v{vS+e}")
    for e in range(8):
        a(f"v_cvt_pk_bf16_f32 v{vP+e}, v{vS+2*e}, v{vS+2*e+1}")
    for e in range(0, 16, 2):
        a(f"v_add_f32 v{vS+e}, v{vS+e}, v{vS+e+1}")
    for e in range(0, 16, 4):
        a(f"v_add_f32 v{vS+e}, v{vS+e}, v{vS+e+2}")
    a(f"v_add_f32 v{vS}, v{vS}, v{vS+4}")
    a(f"v_add_f32 v{vS+8}, v{vS+8}, v{vS+12}")
    a(f"v_add_f32 v{vS}, v{vS}, v{vS+8}")
    a(f"v_add_f32 v{vL}, v{vL}, v{vS}")
    a(f"v_mov_b32 v{vT}, v{vL}")
    xreduce("v_add_f32", vT, vT + 1)
    a(f"v_subrev_u32 v{vT+4}, 0x10000, v{vOw}", "partner slot")
    a(f"s_cmp_lt_u32 s{sW}, 4")
    a(f"ds_write_b32 v{vMw}, v{vT} offset:512")
    a("s_cbranch_scc1 L_pv")
    a("s_waitcnt lgkmcnt(0)")
    a("s_barrier", "X2: A-wave accumulators, row sums and the mode word are in LDS")
    for j in range(8):
        a(f"ds_read_b128 v[{vAcc+4*j}:{vAcc+4*j+3}], v{vT+4} offset:{j*16}")
    a(f"ds_read_b32 v{vF}, v{vFa}")
    a.label("L_pv")
    tick(5)
    for t in range(2):
        vt = vK + 32 * t
        for p in range(4):
            rem = 15 - (8 * t + 2 * p + 1)
            a(f"s_waitcnt vmcnt({rem})")
            r0 = vV + 32 * t + 8 * p
            r1 = r0 + 4
            for w in range(4):
                a(f"v_perm_b32 v{vt + 4*(2*w) + p}, v{r1+w}, v{r0+w}, s{sSelLo}")
                a(f"v_perm_b32 v{vt + 4*(2*w+1) + p}, v{r1+w}, v{r0+w}, s{sSelHi}")
        if t == 0:
            a("s_waitcnt lgkmcnt(0)")
        for j in range(8):
            D = f"v[{vAcc+4*j}:{vAcc+4*j+3}]"
            a(f"v_mfma_f32_16x16x32_bf16 {D}, v[{vt+4*j}:{vt+4*j+3}], v[{vP+4*t}:{vP+4*t+3}], {D}")
        if t == 0:
            a(f"v_readfirstlane_b32 s{sMode}, v{vF}")
            a(f"s_mov_b32 s{sT0}, 0x07060500")
            a(f"s_mov_b32 s{sT3}, 0x07060501")
            a(f"s_mov_b32 s{sO1}, {4*32768}")
            a(f"v_mov_b32 v{vT}, {CNT}")
            a(f"v_mov_b32 v{vT+1}, 1")
    a(f"s_cmp_eq_u32 s{sU}, 0")
    a("s_cbranch_scc0 L_more")
    tick(6)
    for j in range(8):
        a(f"ds_write_b128 v{vOw}, v[{vAcc+4*j}:{vAcc+4*j+3}] offset:{j*16}")
    a(f"s_cmp_lt_u32 s{sW}, 4")
    a("s_cbranch_scc1 L_atail")
    R0 = vK
    a("s_mov_b64 exec, 1")
    a(f"ds_add_rtn_u32 v{vT+1}, v{vT}, v{vT+1}")
    a("s_waitcnt lgkmcnt(0)")
    a(f"v_cmp_eq_u32 vcc, 3, v{vT+1}")
    a("s_cbranch_vccnz L_go")
    a.label("L_bspin")
    a(f"ds_read_b32 v{vT+1}, v{vT}")
    a("s_waitcnt lgkmcnt(0)")
    a(f"v_cmp_eq_u32 vcc, 4, v{vT+1}")
    a("s_cbranch_vccz L_bspin")
    a.label("L_go")
    a("s_mov_b64 exec, -1")
    tick(7)
    for hh in range(2):
        for w in range(4):
            a(f"ds_read_b128 v[{R0+16*hh+4*w}:{R0+16*hh+4*w+3}], v{vOr} offset:{w*16384 + hh*8*RS}")
    a(f"s_bitcmp1_b32 s{sMode}, 0")
    a("s_cbranch_scc1 L_slowo")
    def bsum(sfx):
        for hh in range(2):
            R = R0 + 16 * hh
            a(f"s_waitcnt lgkmcnt({6 - 4*hh})")
            a(f"v_pk_add_f32 v[{R}:{R+1}], v[{R}:{R+1}], v[{R+4}:{R+5}]")
            a(f"v_pk_add_f32 v[{R+2}:{R+3}], v[{R+2}:{R+3}], v[{R+6}:{R+7}]")
            a(f"s_waitcnt lgkmcnt({4 - 4*hh})")
            a(f"v_pk_add_f32 v[{R+8}:{R+9}], v[{R+8}:{R+9}], v[{R+12}:{R+13}]")
            a(f"v_pk_add_f32 v[{R+10}:{R+11}], v[{R+10}:{R+11}], v[{R+14}:{R+15}]")
            a(f"v_pk_add_f32 v[{R}:{R+1}], v[{R}:{R+1}], v[{R+8}:{R+9}]")
            a(f"v_pk_add_f32 v[{R+2}:{R+3}], v[{R+2}:{R+3}], v[{R+10}:{R+11}]")
            a(f"v_perm_b32 v{R}, v{R}, v{vTag}, s{sT0}")
            a(f"v_perm_b32 v{R+3}, v{R+3}, v{vTag}, s{sT3}")
            a(f"buffer_store_dwordx4 v[{R}:{R+3}], v{vWo}, s[{sWS}:{sWS+3}], {'0' if hh == 0 else 's%d' % sO1} offen {sfx}")
    bsum("")
    tick(8)
    a("s_branch L_fin" if STAMP else "s_endpgm")
    a.label("L_slowo")
    bsum("sc1")
    a("s_branch L_fin")
    a.label("L_atail")
    a(f"s_cmp_lg_u32 s{sW}, 0")
    a("s_cbranch_scc1 L_modedone")
    a(f"s_lshl_b32 s{sMode}, s{sI}, 8")
    a(f"s_add_u32 s{sT}, s{sI}, 1")
    a(f"s_lshl_b32 s{sT}, s{sT}, 16")
    a(f"s_or_b32 s{sMode}, s{sMode}, s{sT}")
    a(f"s_mov_b32 s{sSpin}, 0")
    a.label("L_look")
    if FORCE == "abandon":
        a(f"s_bitcmp1_b32 s{sI}, 0")
        a(f"s_cselect_b32 s{sT}, 0, -1")
        a(f"v_and_b32 v{vChk}, s{sT}, v{vChk}")
        a(f"v_and_b32 v{vChk+1}, s{sT}, v{vChk+1}")
    if FORCE == "all":
        a(f"v_or_b32 v{vChk+2}, 0x100, v{vChk+2}")
    a(f"v_cmp_ne_u32 vcc, s{sEp}, v{vChk}")
    a(f"v_cmp_ne_u32 s[{sCm}:{sCm+1}], s{sNEp}, v{vChk+1}")
    a(f"v_cmp_ne_u32 s[{sCm+2}:{sCm+3}], s{sXcc}, v{vChk+2}")
    a(f"v_cmp_le_u32 s[{sCm+4}:{sCm+5}], 64, v{vChk+2}")
    a(f"s_or_b64 vcc, vcc, s[{sCm}:{sCm+1}]")
    a("s_cbranch_scc1 L_missing")
    a(f"s_cmp_eq_u64 s[{sCm+2}:{sCm+3}], 0")
    a("s_cbranch_scc1 L_modeset", "all 32 workgroups of this head run on this XCD")
    a(f"s_or_b32 s{sMode}, s{sMode}, 1")
    a(f"s_cmp_eq_u64 s[{sCm+4}:{sCm+5}], 0")
    a("s_cbranch_scc1 L_modeset")
    a(f"s_mov_b32 s{sMode}, 0x200001", "somebody left: finalise every slice")
    a("s_branch L_modeset")
    a.label("L_missing")
    a(f"s_add_u32 s{sSpin}, s{sSpin}, 1")
    a(f"s_cmp_ge_u32 s{sSpin}, 64")
    a("s_cbranch_scc1 L_leave")
    a(f"buffer_load_dwordx3 v[{vChk}:{vChk+2}], v{vF}, s[{sWS}:{sWS+3}], s{sAr} offen sc1")
    a("s_waitcnt vmcnt(0)")
    a("s_branch L_look")
    a.label("L_leave")
    a.c("a workgroup of this head has not started yet: leave a mark, look again, then go or stay")
    a(f"s_lshl_b32 s{sT}, s{sI}, {ARS}")
    a(f"v_mov_b32 v{vT}, s{sT}")
    a(f"v_mov_b32 v{vS}, s{sEp}")
    a(f"v_mov_b32 v{vS+1}, s{sNEp}")
    a(f"v_mov_b32 v{vS+2}, 0x100")
    a("s_mov_b64 exec, 1")
    a(f"buffer_store_dwordx3 v[{vS}:{vS+2}], v{vT}, s[{sWS}:{sWS+3}], s{sAr} offen sc1")
    a("s_mov_b64 exec, -1")
    a("s_waitcnt vmcnt(0)")
    a(f"buffer_load_dwordx3 v[{vChk}:{vChk+2}], v{vF}, s[{sWS}:{sWS+3}], s{sAr} offen sc1")
    a("s_waitcnt vmcnt(0)")
    a(f"v_cmp_ne_u32 vcc, s{sEp}, v{vChk}")
    a(f"v_cmp_ne_u32 s[{sCm}:{sCm+1}], s{sNEp}, v{vChk+1}")
    a("s_nop 0")
    a(f"s_or_b64 vcc, vcc, s[{sCm}:{sCm+1}]")
    a(f"s_cselect_b32 s{sMode}, 1, 0x200001")
    a.label("L_modeset")
    a(f"v_mov_b32 v{vF}, s{sMode}")
    a(f"ds_write_b32 v{vFa}, v{vF}")
    a.label("L_modedone")
    vOa, vMa, vOut, vTagC = vT + 6, vT + 7, vT + 8, vT + 5
    a(f"v_lshrrev_b32 v{vT}, 2, v{vLane}")
    a(f"v_lshlrev_b32 v{vMa}, 4, v{vT}", "c*16")
    a(f"v_and_b32 v{vT+1}, 3, v{vLane}")
    a(f"s_lshl_b32 s{sT+1}, s{sW}, 2")
    a(f"v_add_u32 v{vT+2}, s{sT+1}, v{vT+1}", "u")
    a(f"v_lshlrev_b32 v{vOa}, 8, v{vT}")
    a(f"v_lshl_add_u32 v{vOa}, v{vT+2}, 4, v{vOa}", "c*256 + u*16")
    make_tag(vTagC, vT + 2, vT + 3)
    a(f"s_lshr_b32 s{sT}, s{sW}, 1")
    a(f"s_lshl_b32 s{sT}, s{sT}, 6")
    a(f"s_and_b32 s{sT+1}, s{sW}, 1")
    a(f"s_lshl_b32 s{sT+1}, s{sT+1}, 3")
    a(f"s_add_u32 s{sT}, s{sT}, s{sT+1}")
    a(f"v_lshl_add_u32 v{vOut}, v{vT+1}, 1, s{sT}")
    a(f"v_and_b32 v{vT}, 1, v{vG}")
    a(f"v_lshl_add_u32 v{vOut}, v{vT}, 5, v{vOut}")
    a(f"v_lshrrev_b32 v{vT}, 1, v{vG}")
    a(f"v_lshl_add_u32 v{vOut}, v{vT}, 4, v{vOut}")
    srd(sQ, 14, 32768)
    a(f"s_lshl_b32 s{sT}, s{sH}, 13")
    a(f"s_lshl_b32 s{sT+1}, s{sI}, 4")
    a(f"s_add_u32 s{sT}, s{sT}, s{sT+1}")
    a(f"s_add_u32 s{sT}, s{sT}, {WS_ML}")
    a(f"v_lshlrev_b32 v{vT+1}, 9, v{vN}")
    a(f"v_add_u32 v{vT+1}, s{sT}, v{vT+1}", "own (max, sum) granule of row n")
    a(f"v_and_b32 v{vT+2}, 0xffffffe0, v{vMw}")
    a(f"v_mov_b32 v{vS}, v{vM}")
    a(f"v_mov_b32 v{vS+2}, s{sEp}")
    a(f"v_mov_b32 v{vS+3}, s{sNEp}")
    FM = vQ
    FO = vV
    def slice_setup():
        a(f"s_lshl_b32 s{sT}, s{sH}, 5")
        a(f"s_add_u32 s{sT}, s{sT}, s{sLo}")
        a(f"s_lshl_b32 s{sO0}, s{sT}, 13")
        a(f"s_add_u32 s{sO1}, s{sO0}, 4096")
        a(f"s_lshr_b32 s{sMl}, s{sT}, 1")
        a(f"s_lshl_b32 s{sMl}, s{sMl}, 9")
        a(f"s_add_u32 s{sMl}, s{sMl}, {WS_ML}")
        a(f"s_lshr_b32 s{sOut}, s{sLo}, 3")
        a(f"s_lshl_b32 s{sOut}, s{sOut}, 13")
        a(f"s_and_b32 s{sT}, s{sLo}, 7")
        a(f"s_lshl_b32 s{sT}, s{sT}, 7")
        a(f"s_add_u32 s{sOut}, s{sOut}, s{sT}")
        a(f"s_lshl_b32 s{sT}, s{sH}, 10")
        a(f"s_add_u32 s{sOut}, s{sOut}, s{sT}")
    def ml_loads():
        a(f"buffer_load_dwordx4 v[{FM}:{FM+3}], v{vMa}, s[{sWS}:{sWS+3}], s{sMl} offen sc1")
        a(f"buffer_load_dwordx4 v[{FM+4}:{FM+7}], v{vMa}, s[{sWS}:{sWS+3}], s{sMl} offen offset:256 sc1")
    LPOL = pol("lpol", "sc1")
    def o_loads():
        a(f"buffer_load_dwordx4 v[{FO}:{FO+3}], v{vOa}, s[{sWS}:{sWS+3}], s{sO0} offen {LPOL}")
        a(f"buffer_load_dwordx4 v[{FO+4}:{FO+7}], v{vOa}, s[{sWS}:{sWS+3}], s{sO1} offen {LPOL}")
    a(f"s_mov_b32 s{sSpin}, 0")
    PRE2 = False
    if PRE2:
        a(f"s_mov_b32 s{sLo}, s{sI}")
        slice_setup()
        o_loads()
        ml_loads()
    a("s_waitcnt lgkmcnt(0)")
    a("s_barrier", "X2")
    a(f"ds_read_b32 v{vF}, v{vFa}")
    a(f"ds_read_b128 v[{vS+4}:{vS+7}], v{vT+2} offset:512")
    a(f"ds_read_b128 v[{vS+8}:{vS+11}], v{vT+2} offset:528")
    a("s_waitcnt lgkmcnt(0)")
    a(f"v_readfirstlane_b32 s{sMode}, v{vF}")
    for st in (4, 2):
        for e in range(st):
            a(f"v_add_f32 v{vS+4+e}, v{vS+4+e}, v{vS+4+e+st}")
    a(f"v_add_f32 v{vS+1}, v{vS+4}, v{vS+5}")
    a(f"s_lshl_b32 s{sT}, s{sW}, 2")
    a(f"s_lshl_b64 exec, 15, s{sT}", "each A-wave publishes four rows")
    a(f"s_bitcmp1_b32 s{sMode}, 0")
    a("s_cbranch_scc1 L_mlslow")
    a(f"buffer_store_dwordx4 v[{vS}:{vS+3}], v{vT+1}, s[{sWS}:{sWS+3}], 0 offen")
    a("s_branch L_mldone")
    a.label("L_mlslow")
    a(f"buffer_store_dwordx4 v[{vS}:{vS+3}], v{vT+1}, s[{sWS}:{sWS+3}], 0 offen sc1")
    a.label("L_mldone")
    a("s_mov_b64 exec, -1")
    a(f"s_bfe_u32 s{sLo}, s{sMode}, 0x80008")
    a(f"s_lshr_b32 s{sHi}, s{sMode}, 16")
    a(f"s_mov_b32 s{sT3}, 0x0c0c0400")
    a(f"s_cmp_ge_u32 s{sLo}, s{sHi}")
    a("s_cbranch_scc1 L_fin")
    if PRE2:
        a(f"s_cmp_eq_u32 s{sLo}, s{sI}")
        a("s_cbranch_scc1 L_mlpoll")
    a.label("L_slice")
    slice_setup()
    a(f"s_mov_b64 s[{sM0}:{sM0+1}], -1")
    a(f"s_mov_b64 s[{sM1}:{sM1+1}], -1")
    def o_masked():
        a(f"s_wqm_b64 exec, s[{sM0}:{sM0+1}]")
        a(f"buffer_load_dwordx4 v[{FO}:{FO+3}], v{vOa}, s[{sWS}:{sWS+3}], s{sO0} offen sc1")
        a(f"s_wqm_b64 exec, s[{sM1}:{sM1+1}]")
        a(f"buffer_load_dwordx4 v[{FO+4}:{FO+7}], v{vOa}, s[{sWS}:{sWS+3}], s{sO1} offen sc1")
        a("s_mov_b64 exec, -1")
    def o_check():
        a(f"v_perm_b32 v{vT+2}, v{FO+3}, v{FO}, s{sT3}")
        a(f"v_perm_b32 v{vT+3}, v{FO+7}, v{FO+4}, s{sT3}")
        a(f"v_cmp_ne_u32 s[{sM0}:{sM0+1}], v{vT+2}, v{vTagC}")
        a(f"v_cmp_ne_u32 s[{sM1}:{sM1+1}], v{vT+3}, v{vTagC}")
    a.c("poll (max, sum) granules and, meanwhile, the 64-byte pieces that do not carry this launch's tag yet")
    a.label("L_mlpoll")
    o_masked()
    ml_loads()
    a(f"s_add_u32 s{sSpin}, s{sSpin}, 1")
    a(f"s_cmp_ge_u32 s{sSpin}, 0x400000")
    a("s_cbranch_scc1 L_fin")
    a("s_waitcnt vmcnt(2)")
    o_check()
    a("s_waitcnt vmcnt(0)")
    a(f"v_cmp_ne_u32 vcc, s{sEp}, v{FM+2}")
    a(f"v_cmp_ne_u32 s[{sCm}:{sCm+1}], s{sNEp}, v{FM+3}")
    a(f"v_cmp_ne_u32 s[{sCm+2}:{sCm+3}], s{sEp}, v{FM+6}")
    a(f"v_cmp_ne_u32 s[{sCm+4}:{sCm+5}], s{sNEp}, v{FM+7}")
    a(f"v_max_f32 v{vT}, v{FM}, v{FM+4}")
    a(f"s_or_b64 vcc, vcc, s[{sCm}:{sCm+1}]")
    a(f"s_or_b64 vcc, vcc, s[{sCm+2}:{sCm+3}]")
    a(f"s_or_b64 vcc, vcc, s[{sCm+4}:{sCm+5}]")
    a("s_cbranch_scc1 L_mlpoll")
    o_masked()
    a.label("L_w")
    a(f"v_max_f32_dpp v{vT}, v{vT}, v{vT} row_ror:4 {DPP}")
    a("s_nop 1")
    a(f"v_max_f32_dpp v{vT}, v{vT}, v{vT} row_ror:8 {DPP}")
    xreduce("v_max_f32", vT, vT + 1)
    a(f"v_sub_f32 v{FM}, v{FM}, v{vT}")
    a(f"v_sub_f32 v{FM+4}, v{FM+4}, v{vT}")
    a(f"v_exp_f32 v{FM}, v{FM}")
    a(f"v_exp_f32 v{FM+4}, v{FM+4}")
    a(f"v_mul_f32 v{vT}, v{FM}, v{FM+1}")
    a(f"v_fmac_f32 v{vT}, v{FM+4}, v{FM+5}")
    a("s_nop 1")
    a(f"v_add_f32_dpp v{vT}, v{vT}, v{vT} row_ror:4 {DPP}")
    a("s_nop 1")
    a(f"v_add_f32_dpp v{vT}, v{vT}, v{vT} row_ror:8 {DPP}")
    xreduce("v_add_f32", vT, vT + 1)
    a(f"v_rcp_f32 v{vT}, v{vT}")
    a("s_nop 0")
    a(f"v_mul_f32 v{FM}, v{FM}, v{vT}")
    a(f"v_mul_f32 v{FM+4}, v{FM+4}, v{vT}")
    tick(9)
    FA = vP
    a("s_branch L_owait")
    a.label("L_opoll")
    o_masked()
    a(f"s_add_u32 s{sSpin}, s{sSpin}, 1")
    a(f"s_cmp_ge_u32 s{sSpin}, 0x400000")
    a("s_cbranch_scc1 L_fin")
    a.label("L_owait")
    a("s_waitcnt vmcnt(0)")
    o_check()
    a(f"v_pk_mul_f32 v[{FA}:{FA+1}], v[{FO}:{FO+1}], v[{FM}:{FM+1}] op_sel_hi:[1,0]")
    a(f"v_pk_mul_f32 v[{FA+2}:{FA+3}], v[{FO+2}:{FO+3}], v[{FM}:{FM+1}] op_sel_hi:[1,0]")
    a(f"s_or_b64 vcc, s[{sM0}:{sM0+1}], s[{sM1}:{sM1+1}]")
    a("s_cbranch_scc1 L_opoll")
    a.label("L_ok")
    a(f"v_pk_fma_f32 v[{FA}:{FA+1}], v[{FO+4}:{FO+5}], v[{FM+4}:{FM+5}], v[{FA}:{FA+1}] op_sel_hi:[1,0,1]")
    a(f"v_pk_fma_f32 v[{FA+2}:{FA+3}], v[{FO+6}:{FO+7}], v[{FM+4}:{FM+5}], v[{FA+2}:{FA+3}] op_sel_hi:[1,0,1]")
    a(f"s_add_u32 s{sLo}, s{sLo}, 1")
    a(f"v_permlane32_swap_b32 v{FA}, v{FA+1}")
    a(f"v_permlane32_swap_b32 v{FA+2}, v{FA+3}")
    a(f"v_add_f32 v{FA}, v{FA}, v{FA+1}")
    a(f"v_add_f32 v{FA+2}, v{FA+2}, v{FA+3}")
    a("s_nop 1")
    a(f"v_permlane16_swap_b32 v{FA}, v{FA+2}")
    a(f"s_cmp_lt_u32 s{sHi}, 32")
    a(f"v_add_f32 v{FA}, v{FA}, v{FA+2}")
    a("s_nop 1")
    a(f"v_add_f32_dpp v{FA}, v{FA}, v{FA} row_ror:4 {DPP}")
    a("s_nop 1")
    a(f"v_add_f32_dpp v{FA}, v{FA}, v{FA} row_ror:8 {DPP}")
    a("s_mov_b32 exec_lo, 0x000f000f")
    a("s_mov_b32 exec_hi, 0x000f000f")
    a(f"v_cvt_pk_bf16_f32 v{FA}, v{FA}, v{FA}")
    a(f"buffer_store_short v{FA}, v{vOut}, s[{sQ}:{sQ+3}], s{sOut} offen {OPOL}")
    if STAMP:
        a("s_mov_b64 exec, -1")
        tick(10)
        a("s_cbranch_scc1 L_fin")
    else:
        a("s_cbranch_scc0 L_next")
        a("s_endpgm")
        a.label("L_next")
    a("s_mov_b64 exec, -1")
    a(f"s_cmp_lt_u32 s{sLo}, s{sHi}")
    a("s_cbranch_scc1 L_slice")
    a.label("L_epoch")
    a.c("every workgroup of this head has read the epoch word: advance it for the next launch")
    a(f"s_lshl_b32 s{sT}, s{sH}, 7")
    a(f"s_add_u32 s{sT}, s{sT}, {WS_EP}")
    a(f"v_mov_b32 v{vT}, s{sT}")
    a(f"v_mov_b32 v{vT+1}, s{sEp}")
    a("s_mov_b64 exec, 1")
    a(f"buffer_store_dword v{vT+1}, v{vT}, s[{sWS}:{sWS+3}], 0 offen")
    a.label("L_fin")
    if STAMP:
        a("s_mov_b64 exec, -1")
        a("s_waitcnt vmcnt(0)")
        tick(11)
        a(f"v_writelane_b32 v{vX+1}, s{sSpin}, 12")
        a(f"v_writelane_b32 v{vX}, 1, 12")
        flush_ticks()
    a.label("L_end")
    a("s_endpgm")
    a.label("L_more")
    pop(0)
    load_k(0)
    load_v(0)
    a(f"s_mov_b32 s{sRnd}, 2")
    a("s_branch L_round")

    head = f"""; Paged (block-table) GQA decode attention.
; @launch grid=(256,1,1) block=(512,1,1) lds={LDS_BYTES}
.amdgcn_target "amdgcn-amd-amdhsa--gfx950"
.text
.globl {NAME}_kernel
.p2align 8
.type {NAME}_kernel,@function
"""
    tail = f""".section .rodata,"a"
.p2align 6
.amdhsa_kernel {NAME}_kernel
  .amdhsa_next_free_vgpr {NVGPR}
  .amdhsa_next_free_sgpr 102
  .amdhsa_accum_offset {NVGPR}
  .amdhsa_group_segment_fixed_size 0
  .amdhsa_kernarg_size 64
  .amdhsa_user_sgpr_count 2
  .amdhsa_user_sgpr_kernarg_segment_ptr 1
  .amdhsa_system_sgpr_workgroup_id_x 1
.end_amdhsa_kernel
"""
    return head + a.text() + tail

if __name__ == "__main__":
    opts = dict(kv.split("=", 1) for kv in sys.argv[2:])
    open(sys.argv[1], "w").write(gen(opts))
```

```python
import sys

NAME = "standalone__paged_block_table_kv_radixattention__decode"

class Asm:
    def __init__(self):
        self.lines = []
    def __call__(self, s="", c=None):
        s = s.strip()
        self.lines.append("    " + s + (f"    ; {c}" if c else ""))
    def label(self, n):
        self.lines.append(n + ":")
    def c(self, s):
        self.lines.append("    ; " + s)
    def text(self):
        return "\n".join(self.lines) + "\n"

KV_BYTES = 1280 * 32768
WS_ML = 2 << 20
WS_AR = WS_ML + 65536
WS_EP = WS_AR + 32768
NEG = "0xf149f2ca"
DPP = "row_mask:0xf bank_mask:0xf"

def gen(opts):
    def pol(k, d):
        return opts.get(k, d).replace("+", " ").replace("def", "")
    def flag(k, d):
        return opts.get(k, d) == "1"
    POL = opts.get("pol", "nt")
    KPOL, VPOL = pol("kpol", POL), pol("vpol", POL)
    OPOL = pol("opol", "def")
    PERM = opts.get("perm", "01234567")
    STAMP = flag("stamp", "0")
    FORCE = opts.get("force", "")
    L = int(opts.get("l", "6"))
    L2 = int(opts.get("l2", str(L)))
    LSW = int(opts.get("lsw", "64"))
    IL = int(opts.get("il", "11"))
    IP = int(opts.get("ip", "54"))
    NTB = int(opts.get("ntb", "3"))
    BAR1 = opts.get("bar1", "pre")
    CHKB = int(opts.get("chkb", "4"))
    PREO = flag("preo", "0")
    ARS = 4

    a = Asm()
    INV = 131072
    C1, C2, C3, C4 = INV + 60 * 16, INV + 60 * 16 + 4, INV + 60 * 16 + 8, INV + 60 * 16 + 12
    KL = INV + 1024
    MX = KL + 1024
    LS = MX + 256
    FLG = INV + 61 * 16
    QL = LS + 256
    LDS_BYTES = QL + 4096
    RS = 528
    POFF = 16384
    AOFF = POFF + 4096

    vLane, vG, vN = 1, 2, 3
    vT = 4
    vTag, vCa = 14, 15
    vPa = 16
    vP = 20
    vKs, vKr = 36, 40
    vM, vL, vC, vB4, vMx, vMw = 44, 45, 46, 47, 48, 49
    vW = 52
    vQ = 60
    vS = 76
    vKf = 108
    vTb = 76
    vKl = 50
    vOa, vMa, vOut, vTagC = 144, 145, 146, 147
    FM, FO, FA = 148, 156, 164
    vVo0, vVo1, vWo, vOw, vOr, vF = 17, 18, 19, 40, 41, 42
    vSig, vSa = 43, 44
    vAcc = 48
    vV = 80
    vVt = 144
    vX = 144 + 32 * NTB
    NVGPR = vX + 8 if STAMP else vX

    sK, sV, sQ, sWS = 20, 24, 28, 32
    sN, sNB, sNF = 36, 40, 44
    sH, sI, sW, sWl, sWb = 48, 49, 50, 51, 52
    sU, sRnd, sMore, sBad, sEp, sNEp, sXcc, sAr = 53, 54, 55, 56, 57, 58, 59, 60
    sSelLo, sSelHi = 61, 62
    sExp = 63
    sRm = 64
    sCm = 72
    sP, sR = 80, 4
    sM0, sM1 = 88, 90
    sT = 92
    sLc, sKb = 96, 97
    sSt = 98
    sLo, sHi, sSpin, sT0, sT3, sMode, sO0, sO1, sMl, sOut = 36, 37, 38, 39, 40, 41, 42, 43, 44, 45

    def tick(idx):
        if not STAMP:
            return
        a(f"s_memrealtime s[{sSt}:{sSt+1}]")
        a("s_waitcnt lgkmcnt(0)")
        a(f"v_writelane_b32 v{vX}, s{sSt}, {idx}")
        a(f"v_writelane_b32 v{vX+1}, s{sSt+1}, {idx}")
    def flush_ticks():
        a("s_mov_b64 exec, 0xffff")
        a(f"s_lshl_b32 s{sSt}, s2, 3")
        a(f"s_add_u32 s{sSt}, s{sSt}, s{sW}")
        a(f"s_lshl_b32 s{sSt}, s{sSt}, 7")
        a(f"s_add_u32 s{sSt}, s{sSt}, {16<<20}")
        a(f"v_mbcnt_lo_u32_b32 v{vX+2}, -1, 0")
        a(f"v_lshlrev_b32 v{vX+2}, 3, v{vX+2}")
        a(f"v_add_u32 v{vX+2}, s{sSt}, v{vX+2}")
        a(f"v_cmp_ne_u32 vcc, 0, v{vX}")
        a("s_and_b64 exec, exec, vcc")
        a(f"buffer_store_dwordx2 v[{vX}:{vX+1}], v{vX+2}, s[{sWS}:{sWS+3}], 0 offen")
    def srd(d, p, nbytes):
        a(f"s_mov_b32 s{d}, s{p}")
        a(f"s_and_b32 s{d+1}, s{p+1}, 0xffff")
        a(f"s_mov_b32 s{d+2}, {nbytes}")
        a(f"s_mov_b32 s{d+3}, 0x20000")
    def k_load(k, q):
        a(f"buffer_load_dwordx4 v{vKs+q}, s[{sK}:{sK+3}], s{sP+k} offen offset:{q*1024} {KPOL} lds")
    def v_load(k, i):
        r = vV + 16 * (k & 3) + 4 * i
        a(f"buffer_load_dwordx4 v[{r}:{r+3}], v{vVo0 + (i>>1)}, s[{sV}:{sV+3}], s{sP+k} offen offset:{2048*(i&1)} {VPOL}")
    def pop_lc():
        a(f"s_ff1_i32_b32 s{sT}, s{sU}", "next candidate (-1: none)")
        a(f"s_bitset0_b32 s{sU}, s{sT}")
        a(f"s_lshl_b32 s{sLc}, s{sT}, 4")
        a(f"s_add_u32 s{sLc}, s{sLc}, 128")
        a(f"s_cmp_lt_i32 s{sT}, 0")
        a(f"s_cselect_b32 s{sLc}, {63*16}, s{sLc}")
    def pop(k, rdst, want_lc):
        a(f"s_ff1_i32_b32 s{sT}, s{sU}", "next candidate (-1: none)")
        a(f"s_bitset0_b32 s{sU}, s{sT}")
        a(f"s_add_u32 s{sT+1}, s{sT}, 8")
        a(f"s_and_b32 s{sT+2}, s{sT+1}, 0x38")
        a(f"s_sub_u32 s{sT+2}, s{sI}, s{sT+2}")
        a(f"s_and_b32 s{sT+2}, s{sT+2}, 31")
        a(f"s_lshl_b32 s{sP+k}, s{sT+1}, 5")
        a(f"s_add_u32 s{sP+k}, s{sP+k}, s{sT+2}")
        a(f"s_lshl_b32 s{sP+k}, s{sP+k}, 15")
        if want_lc:
            a(f"s_lshl_b32 s{sLc}, s{sT+1}, 4")
        a(f"s_cmp_lt_i32 s{sT}, 0")
        a(f"s_cselect_b32 s{rdst}, 0, {KV_BYTES}")
        if want_lc:
            a(f"s_cselect_b32 s{sLc}, {63*16}, s{sLc}")
    def make_tag(dst, vu, tmp):
        a(f"s_lshr_b32 s{sT}, s{sEp}, 8")
        a(f"s_add_u32 s{sT}, s{sT}, 0x5a")
        a(f"v_mad_u32_u24 v{dst}, v{vu}, 37, s{sEp}")
        a(f"v_mad_u32_u24 v{tmp}, v{vu}, 59, s{sT}")
        a(f"s_mov_b32 s{sT}, 0x0c0c0400")
        a(f"v_perm_b32 v{dst}, v{tmp}, v{dst}, s{sT}")
    def xreduce(op, v, t):
        a(f"v_mov_b32 v{t}, v{v}")
        a("s_nop 1")
        a(f"v_permlane32_swap_b32 v{v}, v{t}")
        a("s_nop 0")
        a(f"{op} v{v}, v{v}, v{t}")
        a(f"v_mov_b32 v{t}, v{v}")
        a("s_nop 1")
        a(f"v_permlane16_swap_b32 v{v}, v{t}")
        a("s_nop 0")
        a(f"{op} v{v}, v{v}, v{t}")
    def signal(cnt, t):
        a(f"v_mov_b32 v{t}, 1")
        a("s_mov_b64 exec, 1")
        a(f"ds_add_u32 v{vCa}, v{t} offset:{cnt - C1}")
        a("s_mov_b64 exec, -1")
    def spin(cnt, t, label, exp):
        a.label(label)
        a(f"ds_read_b32 v{t}, v{vCa} offset:{cnt - C1}")
        a("s_waitcnt lgkmcnt(0)")
        a(f"v_cmp_gt_u32 vcc, {exp}, v{t}")
        a(f"s_cbranch_vccnz {label}")

    a.label(f"{NAME}_kernel")
    a("s_cmp_ge_u32 s2, 256")
    a("s_cbranch_scc1 L_end")
    a("s_load_dwordx16 s[4:19], s[0:1], 0")
    if STAMP:
        a(f"v_mov_b32 v{vX}, 0")
        a(f"v_mov_b32 v{vX+1}, 0")
        a(f"s_memrealtime s[{sSt+2}:{sSt+3}]")
    a(f"v_lshrrev_b32 v{vT}, 6, v0")
    a(f"v_and_b32 v{vLane}, 63, v0")
    a(f"v_readfirstlane_b32 s{sW}, v{vT}")
    if PERM == "01234567":
        a(f"s_and_b32 s{sH}, s2, 7", "kv head")
    else:
        a(f"s_lshl_b32 s{sH}, s2, 2")
        a(f"s_lshr_b32 s{sH}, {hex(int(''.join(reversed(PERM)), 16))}, s{sH}")
        a(f"s_and_b32 s{sH}, s{sH}, 7", "kv head")
    a(f"s_lshr_b32 s{sI}, s2, 3", "workgroup index inside the head")
    if FORCE == "late":
        a(f"s_cmp_lg_u32 s{sI}, 5")
        a("s_cbranch_scc1 L_notlate")
        a("s_movk_i32 s3, 400")
        a.label("L_latespin")
        a("s_sleep 8")
        a("s_sub_u32 s3, s3, 1")
        a("s_cmp_lg_u32 s3, 0")
        a("s_cbranch_scc1 L_latespin")
        a.label("L_notlate")
    CW = opts.get("cw", "1")
    if CW == "1":
        a("s_getpc_b64 s[96:97]")
        a.label("L_pc")
        a(f"v_lshlrev_b32 v{vT+8}, 5, v0")
        a(f"v_min_u32 v{vT+8}, (L_codeend - L_pc - 4), v{vT+8}")
        a(f"global_load_dword v{vP+15}, v{vT+8}, s[96:97]", "kernel text -> L2 (value unused)")
    a(f"v_lshrrev_b32 v{vG}, 4, v{vLane}")
    a(f"v_and_b32 v{vN}, 15, v{vLane}")
    a(f"v_and_b32 v{vT+7}, 255, v0")
    a(f"v_lshlrev_b32 v{vT+1}, 3, v{vT+7}")
    a(f"v_lshlrev_b32 v{vPa}, 4, v{vLane}")
    a(f"v_add_u32 v{vT+2}, {INV}, v{vPa}")
    for r in range(4):
        a(f"v_mov_b32 v{vP+r}, 0")
    a(f"ds_write_b128 v{vT+2}, v[{vP}:{vP+3}]", "clear the inverse map and the counters")
    a(f"ds_write_b128 v{vT+2}, v[{vP}:{vP+3}] offset:1024")
    a(f"s_and_b32 s{sWl}, s{sW}, 3")
    a(f"s_lshl_b32 s{sT}, s{sH}, 8")
    a(f"s_lshl_b32 s{sWb}, s{sWl}, 15")
    a(f"s_lshl_b32 s{sP}, s{sWl}, 5")
    a(f"s_add_u32 s{sP}, s{sP}, s{sI}")
    a(f"s_lshl_b32 s{sP}, s{sP}, 15", "first two blocks of a wave pair: physical 32*w + i and 32*(w+4) + i")
    a(f"s_add_u32 s{sP+1}, s{sP}, {128*32768}")
    a(f"s_mov_b32 s{sK+2}, {KV_BYTES}")
    a(f"s_mov_b32 s{sK+3}, 0x20000")
    a(f"s_mov_b32 s{sV+2}, {KV_BYTES}")
    a(f"s_mov_b32 s{sV+3}, 0x20000")
    a(f"s_lshl_b32 s{sT+3}, s{sH}, 7")
    a(f"s_add_u32 s{sT+3}, s{sT+3}, {WS_EP}")
    a(f"v_xor_b32 v{vT+3}, v{vN}, v{vG}")
    a(f"v_lshlrev_b32 v{vT+3}, 4, v{vT+3}")
    a(f"v_lshlrev_b32 v{vT+4}, 11, v{vG}")
    a(f"v_add_u32 v{vT+4}, s{sT}, v{vT+4}")
    for q in range(4):
        if q == 0:
            a(f"v_add_u32 v{vKs}, v{vT+3}, v{vT+4}")
        else:
            a(f"v_xor_b32 v{vKs+q}, {64*q}, v{vT+3}")
            a(f"v_add_u32 v{vT+4}, {8192-1024}, v{vT+4}")
            a(f"v_add_u32 v{vKs+q}, v{vKs+q}, v{vT+4}")
    a(f"s_lshl_b32 s{sT+1}, s{sWl}, 6")
    a(f"v_xor_b32 v{vT+6}, s{sT+1}, v{vT+3}")
    a(f"v_lshl_add_u32 v{vT+6}, v{vG}, 8, v{vT+6}")
    a(f"s_lshl_b32 s{sT+1}, s{sH}, 10")
    a(f"s_lshl_b32 s{sT+2}, s{sWl}, 13")
    a(f"s_add_u32 s{sT+1}, s{sT+1}, s{sT+2}")
    a(f"s_lshl_b32 s{sT+2}, s{sWl}, 10")
    a(f"s_add_u32 m0, s{sT+2}, {QL}")
    a(f"s_mov_b32 s{sQ+2}, 32768")
    a(f"s_mov_b32 s{sQ+3}, 0x20000")
    a(f"v_lshlrev_b32 v{vWo}, 13, v{vG}")
    a(f"v_lshl_add_u32 v{vWo}, v{vN}, 4, v{vWo}")
    a(f"v_add_u32 v{vVo0}, s{sT}, v{vWo}")
    a(f"v_add_u32 v{vVo1}, 4096, v{vVo0}")
    def get_list():
        a("s_barrier", "the inverse map is complete")
        a(f"ds_read_b128 v[{vP}:{vP+3}], v{vT+2}")
        a("s_waitcnt lgkmcnt(0)")
        a(f"v_or3_b32 v{vP}, v{vP}, v{vP+1}, v{vP+2}")
        a(f"v_or_b32 v{vP}, v{vP}, v{vP+3}")
        a(f"v_cmp_ne_u32 vcc, 0, v{vP}")
        a("s_nop 0")
        a(f"s_lshr_b64 s[{sCm}:{sCm+1}], vcc, 8")
        a(f"v_mbcnt_lo_u32_b32 v{vT+4}, s{sCm}, 0")
        a(f"s_lshr_b32 s{sBad}, vcc_lo, s{sWl}")
        a(f"v_and_b32 v{vT+4}, 3, v{vT+4}")
        a(f"v_cmp_eq_u32 vcc, s{sWl}, v{vT+4}")
        a(f"s_andn2_b32 s{sBad}, 0x11, s{sBad}", "bit0 / bit4: first / second static block is not referenced")
        a(f"s_bcnt1_i32_b32 s{sMore}, s{sCm}")
        a(f"s_and_b32 s{sU}, vcc_lo, s{sCm}")
    def common_init():
        if STAMP:
            a(f"v_writelane_b32 v{vX}, s{sSt+2}, 0")
            a(f"v_writelane_b32 v{vX+1}, s{sSt+3}, 0")
        a(f"v_mov_b32 v{vCa}, {C1}")
        a(f"s_add_u32 s{sT}, s{sWb}, {POFF}")
        a(f"v_add_u32 v{vPa}, s{sT}, v{vPa}")
        a(f"s_mov_b32 s{sExp}, 4")
    a(f"s_mov_b32 s{sWS+2}, {1 << 28}")
    a(f"s_mov_b32 s{sWS+3}, 0x20000")
    a(f"s_mov_b32 s{sRnd}, 0")
    a(f"s_cmp_lt_u32 s{sW}, 4")
    a("s_waitcnt lgkmcnt(0)")
    if BAR1 == "pre":
        a("s_barrier")
    a(f"s_load_dword s{sEp}, s[18:19], s{sT+3}")
    a(f"s_mov_b32 s{sK}, s6")
    a(f"s_mov_b32 s{sK+1}, s7")
    a(f"s_mov_b32 s{sV}, s8")
    a(f"s_mov_b32 s{sV+1}, s9")
    a(f"s_mov_b32 s{sQ}, s4")
    a(f"s_mov_b32 s{sQ+1}, s5")
    a(f"s_mov_b32 s{sWS}, s18")
    a(f"s_mov_b32 s{sWS+1}, s19")
    a("s_cbranch_scc1 L_vmain")

    a("s_add_u32 s10, s10, 4096")
    a("s_addc_u32 s11, s11, 0")
    for b in range(4):
        a(f"global_load_dwordx2 v[{vTb+2*b}:{vTb+2*b+1}], v{vT+1}, s[10:11] offset:{b*2048-4096}")
    a(f"s_load_dwordx4 s[{sN}:{sN+3}], s[12:13], 0")
    if BAR1 == "post":
        a("s_barrier")
    a(f"buffer_load_dwordx4 v{vT+6}, s[{sQ}:{sQ+3}], s{sT+1} offen lds", "four query rows -> LDS")
    common_init()
    tick(1)
    a(f"v_lshlrev_b32 v{vT+4}, 8, v{vN}")
    a(f"v_add_u32 v{vT+4}, s{sWb}, v{vT+4}")
    for j in range(4):
        if j == 0:
            a(f"v_add_u32 v{vKr}, v{vT+3}, v{vT+4}")
        else:
            a(f"v_xor_b32 v{vKr+j}, {64*j}, v{vT+3}")
            a(f"v_add_u32 v{vKr+j}, v{vKr+j}, v{vT+4}")
    a(f"v_and_b32 v{vB4}, 12, v{vN}")
    a(f"v_add_u32 v{vB4}, {INV}, v{vB4}")
    a(f"v_mov_b32 v{vM}, {NEG}")
    a(f"v_mov_b32 v{vL}, 0")
    a(f"v_lshlrev_b32 v{vMx}, 4, v{vN}")
    a(f"v_add_u32 v{vMx}, {MX}, v{vMx}")
    a(f"s_lshl_b32 s{sT}, s{sWl}, 2")
    a(f"v_add_u32 v{vMw}, s{sT}, v{vMx}")
    a(f"v_lshlrev_b32 v{vKl}, 2, v{vT+7}")
    a(f"v_add_u32 v{vKl}, {KL}, v{vKl}")
    a(f"v_lshlrev_b32 v{vT+8}, 1, v{vT+7}", "table columns 2t and 2t+1")
    a(f"v_add_u32 v{vT+9}, 1, v{vT+8}")
    a(f"s_getreg_b32 s{sXcc}, hwreg(HW_REG_XCC_ID, 0, 4)")
    a(f"s_lshl_b32 s{sAr}, s{sH}, {5 + ARS}")
    a(f"s_add_u32 s{sAr}, s{sAr}, {WS_AR}")
    a("s_waitcnt lgkmcnt(0)")
    a(f"s_add_u32 s{sEp}, s{sEp}, 1", "hand-off epoch of this launch")
    a(f"s_not_b32 s{sNEp}, s{sEp}")
    for b in range(4):
        a(f"s_min_i32 s{sT}, s{sN+b}, 0x2000")
        a(f"s_cmp_lt_i32 s{sN+b}, 1")
        a(f"s_cselect_b32 s{sN+b}, 0x2000, s{sT}")
        a(f"s_cselect_b32 s{sT}, {hex(0x000f000f << (4*b))}, 0")
        if b == 0:
            a(f"s_mov_b32 s{sM0}, s{sT}")
        else:
            a(f"s_or_b32 s{sM0}, s{sM0}, s{sT}")
        a(f"s_add_u32 s{sNB+b}, s{sN+b}, 15")
        a(f"s_lshr_b32 s{sNB+b}, s{sNB+b}, 4")
        a(f"s_lshr_b32 s{sNF+b}, s{sN+b}, 4")
    a(f"v_mov_b32 v{vT+7}, 0x10000")
    a(f"s_movk_i32 s{sT+2}, 1280")
    a.c("inverse page map restricted to this workgroup's physical blocks")
    for b in range(4):
        a(f"s_waitcnt vmcnt({4 - b})")
        if b == 0:
            tick(2)
        for cc in range(2):
            p = vTb + 2 * b + cc
            col = vT + 8 + cc
            a(f"v_lshrrev_b32 v{vT+4}, 5, v{p}")
            a(f"v_and_b32 v{vT+5}, 0x38, v{vT+4}")
            a(f"v_add_u32 v{vT+5}, v{vT+5}, v{p}")
            a(f"v_and_b32 v{vT+5}, 31, v{vT+5}")
            a(f"v_cmp_gt_u32 vcc, s{sNF+b}, v{col}")
            a(f"v_cmp_eq_u32 s[{sCm}:{sCm+1}], s{sI}, v{vT+5}")
            a(f"v_cmp_gt_u32 s[{sCm+2}:{sCm+3}], s{sNB+b}, v{col}")
            a(f"v_cmp_gt_u32 s[{sCm+4}:{sCm+5}], s{sT+2}, v{p}")
            a(f"v_cndmask_b32 v{vT+5}, v{vT+7}, 1, vcc")
            a(f"v_lshlrev_b32 v{vT+4}, 4, v{vT+4}")
            a(f"s_and_b64 s[{sCm}:{sCm+1}], s[{sCm}:{sCm+1}], s[{sCm+2}:{sCm+3}]")
            a(f"v_add_u32 v{vT+4}, {INV + 4*b}, v{vT+4}")
            a(f"s_and_b64 exec, s[{sCm}:{sCm+1}], s[{sCm+4}:{sCm+5}]")
            a(f"ds_add_u32 v{vT+4}, v{vT+5}")
            a("s_mov_b64 exec, -1")
    a(f"s_cmp_lg_u32 s{sW}, 4")
    a("s_waitcnt vmcnt(0)")
    a("s_cbranch_scc1 L_noarr")
    a.c("arrival mark of this workgroup")
    a(f"s_lshl_b32 s{sT}, s{sI}, {ARS}")
    a(f"v_mov_b32 v{vT}, s{sT}")
    a(f"v_mov_b32 v{vT+4}, s{sEp}")
    a(f"v_mov_b32 v{vT+5}, s{sNEp}")
    a(f"v_mov_b32 v{vT+6}, s{sXcc}")
    a("s_mov_b64 exec, 1")
    a(f"buffer_store_dwordx3 v[{vT+4}:{vT+6}], v{vT}, s[{sWS}:{sWS+3}], s{sAr} offen sc1")
    a("s_mov_b64 exec, -1")
    a.label("L_noarr")
    tick(14)
    a("s_waitcnt lgkmcnt(0)")
    get_list()
    tick(3)

    def finish(b):
        if b < 2:
            a(f"s_bitcmp1_b32 s{sBad}, {4*b}")
            a(f"s_cbranch_scc0 L_good{b}")
            for r in range(4):
                a(f"v_mov_b32 v{vS+4*b+r}, 0")
            a.label(f"L_good{b}")
        a(f"v_and_b32 v{vT+4}, 0xffff, v{vW+b}")
        a(f"v_lshrrev_b32 v{vT+5}, 16, v{vW+b}")
        a(f"v_add_u32 v{vT+5}, v{vT+5}, v{vT+4}")
        a(f"v_cvt_f32_u32 v{vT+4}, v{vT+4}")
        a(f"v_cvt_f32_u32 v{vT+5}, v{vT+5}")
        a(f"v_log_f32 v{vT+4}, v{vT+4}")
        a(f"v_log_f32 v{vT+5}, v{vT+5}")
        a("s_nop 0")
        for r in range(4):
            a(f"v_cndmask_b32 v{vT+6+r}, v{vT+4}, v{vT+5}, s[{sRm+2*r}:{sRm+2*r+1}]")
        for r in range(4):
            a(f"v_fma_f32 v{vS+4*b+r}, v{vS+4*b+r}, v{vC}, v{vT+6+r}")
        src = vM if b == 0 else vT
        a(f"v_max3_f32 v{vT}, v{src}, v{vS+4*b}, v{vS+4*b+1}")
        a(f"v_max3_f32 v{vT}, v{vT}, v{vS+4*b+2}, v{vS+4*b+3}")
    def qk(b):
        f = vKf + 16 * (b & 1)
        for j in range(4):
            a(f"ds_read_b128 v[{f+4*j}:{f+4*j+3}], v{vKr+j} offset:{b*4096}")
        if b > 0:
            finish(b - 1)
        for j in range(4):
            c = "0" if j == 0 else f"v[{vS+4*b}:{vS+4*b+3}]"
            a(f"s_waitcnt lgkmcnt({3-j})")
            a(f"v_mfma_f32_16x16x32_bf16 v[{vS+4*b}:{vS+4*b+3}], v[{f+4*j}:{f+4*j+3}], v[{vQ+4*j}:{vQ+4*j+3}], {c}")
    def wread(k):
        a(f"v_add_u32 v{vW+k}, s{sLc}, v{vB4}")
        a(f"ds_read_b32 v{vW+k}, v{vW+k}")

    a(f"s_lshl_b32 s{sLc}, s{sWl}, 4")
    a(f"v_add_u32 v{vW}, s{sLc}, v{vB4}")
    a(f"ds_read_b32 v{vW+1}, v{vW} offset:64")
    a(f"ds_read_b32 v{vW}, v{vW}")
    a(f"s_sub_u32 s{sT}, {QL}, s{sWb}")
    for j in range(4):
        a(f"v_add_u32 v{vT+j}, s{sT}, v{vKr+j}")
        a(f"ds_read_b128 v[{vQ+4*j}:{vQ+4*j+3}], v{vT+j}")
    a(f"s_mov_b32 s{sM0+1}, s{sM0}")
    a(f"v_mov_b32 v{vC}, 0x3e0293ee", "log2(e)/sqrt(128)")
    a(f"v_cndmask_b32 v{vC}, v{vC}, 0, s[{sM0}:{sM0+1}]", "ctx <= 0: every position masked -> uniform weights")
    a(f"s_and_b32 s{sT}, s{sN}, 15")
    for b in range(1, 4):
        a(f"s_and_b32 s{sT+1}, s{sN+b}, 15")
        a(f"s_lshl_b32 s{sT+1}, s{sT+1}, {4*b}")
        a(f"s_or_b32 s{sT}, s{sT}, s{sT+1}")
    a(f"v_and_b32 v{vT+4}, 12, v{vN}")
    a(f"v_lshrrev_b32 v{vT+4}, v{vT+4}, s{sT}")
    a(f"v_and_b32 v{vT+4}, 15, v{vT+4}")
    a(f"v_lshlrev_b32 v{vT+5}, 2, v{vG}")
    a(f"v_sub_u32 v{vT+4}, v{vT+4}, v{vT+5}")
    for r in range(4):
        a(f"v_cmp_lt_i32 s[{sRm+2*r}:{sRm+2*r+1}], {r}, v{vT+4}")
    a(f"v_and_b32 v{vOa}, 31, v{vLane}")
    a(f"v_lshlrev_b32 v{vOa}, {ARS}, v{vOa}")
    a(f"s_mov_b32 s{sKb}, 1")
    a.label("L_kround")
    for k in range(2, 8):
        pop_lc()
        wread(k)
    for b in range(8):
        a.label(f"L_kw{b}")
        a(f"ds_read_b32 v{vT+1}, v{vKl}")
        a("s_waitcnt lgkmcnt(0)")
        a(f"v_cmp_gt_u32 vcc, s{sKb}, v{vT+1}")
        a(f"s_cbranch_vccnz L_kw{b}")
        a(f"s_add_u32 s{sKb}, s{sKb}, 1")
        qk(b)
        if b == CHKB:
            a(f"s_cmp_lg_u32 s{sW}, 4")
            a("s_cbranch_scc1 L_nochk")
            a("s_waitcnt vmcnt(0)")
            a(f"buffer_load_dwordx3 v[{FO}:{FO+2}], v{vOa}, s[{sWS}:{sWS+3}], s{sAr} offen sc1")
            a.label("L_nochk")
    tick(4)
    a("s_nop 3")
    finish(7)
    a(f"s_mov_b32 s{sBad}, 0")
    xreduce("v_max_f32", vT, vT + 1)
    a(f"ds_write_b32 v{vMw}, v{vT}")
    signal(C1, vT + 1)
    tick(13)
    spin(C1, vT + 1, "L_s1", f"s{sExp}")
    a(f"ds_read_b128 v[{vT+4}:{vT+7}], v{vMx}")
    a("s_waitcnt lgkmcnt(0)")
    a(f"v_max3_f32 v{vT}, v{vT+4}, v{vT+5}, v{vT+6}")
    a(f"v_max_f32 v{vT}, v{vT}, v{vT+7}", "workgroup-wide row maximum")
    a(f"v_sub_f32 v{vT+2}, v{vM}, v{vT}")
    a(f"v_exp_f32 v{vT+2}, v{vT+2}")
    a(f"v_mov_b32 v{vM}, v{vT}")
    for e in range(32):
        a(f"v_sub_f32 v{vS+e}, v{vS+e}, v{vT}")
    a(f"v_mul_f32 v{vL}, v{vL}, v{vT+2}")
    a(f"ds_write_b32 v{vPa}, v{vT+2} offset:{AOFF - POFF}")
    for t in range(4):
        for e in range(8):
            a(f"v_exp_f32 v{vS+8*t+e}, v{vS+8*t+e}")
        for e in range(4):
            a(f"v_cvt_pk_bf16_f32 v{vP+4*t+e}, v{vS+8*t+2*e}, v{vS+8*t+2*e+1}")
        a(f"ds_write_b128 v{vPa}, v[{vP+4*t}:{vP+4*t+3}] offset:{t*1024}")
    for st in (16, 8, 4, 2):
        for e in range(0, st, 2):
            a(f"v_pk_add_f32 v[{vS+e}:{vS+e+1}], v[{vS+e}:{vS+e+1}], v[{vS+e+st}:{vS+e+st+1}]")
    a(f"v_add_f32 v{vS}, v{vS}, v{vS+1}")
    a(f"v_add_f32 v{vL}, v{vL}, v{vS}")
    a(f"v_mov_b32 v{vT}, v{vL}")
    xreduce("v_add_f32", vT, vT + 1)
    a(f"ds_write_b32 v{vMw}, v{vT} offset:{LS - MX}")
    a(f"s_cmp_lg_u32 s{sW}, 4")
    a("s_cbranch_scc1 L_decided")
    a(f"s_lshl_b32 s{sT}, s{sI}, {ARS}")
    a(f"v_mov_b32 v{vT}, s{sT}")
    a(f"v_mov_b32 v{vT+4}, s{sEp}")
    a(f"v_mov_b32 v{vT+5}, s{sNEp}")
    a(f"s_lshl_b32 s{sMode}, s{sI}, 8")
    a(f"s_add_u32 s{sT}, s{sI}, 1")
    a(f"s_lshl_b32 s{sT}, s{sT}, 16")
    a(f"s_or_b32 s{sMode}, s{sMode}, s{sT}")
    a(f"s_mov_b32 s{sSpin}, 0")
    a("s_branch L_look1")
    a.label("L_look")
    a(f"buffer_load_dwordx3 v[{FO}:{FO+2}], v{vOa}, s[{sWS}:{sWS+3}], s{sAr} offen sc1")
    a.label("L_look1")
    a(f"s_add_u32 s{sSpin}, s{sSpin}, 1")
    a("s_waitcnt vmcnt(0)")
    if FORCE == "abandon":
        a(f"s_bitcmp1_b32 s{sI}, 0")
        a(f"s_cselect_b32 s{sT}, 0, -1")
        a(f"v_and_b32 v{FO}, s{sT}, v{FO}")
        a(f"v_and_b32 v{FO+1}, s{sT}, v{FO+1}")
    if FORCE == "all":
        a(f"v_or_b32 v{FO+2}, 0x100, v{FO+2}")
    a(f"v_cmp_ne_u32 vcc, s{sEp}, v{FO}")
    a(f"v_cmp_ne_u32 s[{sCm}:{sCm+1}], s{sNEp}, v{FO+1}")
    a(f"v_cmp_ne_u32 s[{sCm+2}:{sCm+3}], s{sXcc}, v{FO+2}")
    a(f"v_cmp_le_u32 s[{sCm+4}:{sCm+5}], 64, v{FO+2}")
    a(f"s_or_b64 vcc, vcc, s[{sCm}:{sCm+1}]")
    a("s_cbranch_scc1 L_missing")
    a(f"s_cmp_eq_u64 s[{sCm+2}:{sCm+3}], 0")
    a("s_cbranch_scc1 L_modeset", "all 32 workgroups of this head run on this XCD")
    a(f"s_or_b32 s{sMode}, s{sMode}, 1")
    a(f"s_cmp_eq_u64 s[{sCm+4}:{sCm+5}], 0")
    a("s_cbranch_scc1 L_modeset")
    a(f"s_mov_b32 s{sMode}, 0x200001", "somebody left: finalise every slice")
    a("s_branch L_modeset")
    a.label("L_missing")
    a(f"s_cmp_lt_u32 s{sSpin}, 64")
    a("s_cbranch_scc1 L_look")
    a.c("a workgroup of this head has not started yet: leave a mark, look again, then go or stay")
    a(f"v_mov_b32 v{vT+6}, 0x100")
    a("s_mov_b64 exec, 1")
    a(f"buffer_store_dwordx3 v[{vT+4}:{vT+6}], v{vT}, s[{sWS}:{sWS+3}], s{sAr} offen sc1")
    a("s_mov_b64 exec, -1")
    a("s_waitcnt vmcnt(0)")
    a(f"buffer_load_dwordx3 v[{FO}:{FO+2}], v{vOa}, s[{sWS}:{sWS+3}], s{sAr} offen sc1")
    a("s_waitcnt vmcnt(0)")
    a(f"v_cmp_ne_u32 vcc, s{sEp}, v{FO}")
    a(f"v_cmp_ne_u32 s[{sCm}:{sCm+1}], s{sNEp}, v{FO+1}")
    a("s_nop 0")
    a(f"s_or_b64 vcc, vcc, s[{sCm}:{sCm+1}]")
    a(f"s_cselect_b32 s{sMode}, 1, 0x200001")
    a.label("L_modeset")
    a(f"v_mov_b32 v{vT+1}, s{sMode}")
    a(f"ds_write_b32 v{vCa}, v{vT+1} offset:{FLG - C1}")
    a.label("L_decided")
    signal(C2, vT + 1)
    tick(5)
    a(f"s_cmp_gt_u32 s{sMore}, 24")
    a("s_cbranch_scc1 L_kmore")

    a(f"v_lshrrev_b32 v{vT}, 2, v{vLane}")
    a(f"v_lshlrev_b32 v{vMa}, 4, v{vT}", "c*16")
    a(f"v_and_b32 v{vT+1}, 3, v{vLane}")
    a(f"s_lshl_b32 s{sT+1}, s{sWl}, 2")
    a(f"v_add_u32 v{vT+2}, s{sT+1}, v{vT+1}", "unit u = 4*w + (lane&3)")
    a(f"v_lshlrev_b32 v{vOa}, 8, v{vT}")
    a(f"v_lshl_add_u32 v{vOa}, v{vT+2}, 4, v{vOa}", "c*256 + u*16")
    make_tag(vTagC, vT + 2, vT + 3)
    a(f"s_lshr_b32 s{sT}, s{sWl}, 1")
    a(f"s_lshl_b32 s{sT}, s{sT}, 6")
    a(f"s_and_b32 s{sT+1}, s{sWl}, 1")
    a(f"s_lshl_b32 s{sT+1}, s{sT+1}, 3")
    a(f"s_add_u32 s{sT}, s{sT}, s{sT+1}")
    a(f"v_lshl_add_u32 v{vOut}, v{vT+1}, 1, s{sT}")
    a(f"v_and_b32 v{vT}, 1, v{vG}")
    a(f"v_lshl_add_u32 v{vOut}, v{vT}, 5, v{vOut}")
    a(f"v_lshrrev_b32 v{vT}, 1, v{vG}")
    a(f"v_lshl_add_u32 v{vOut}, v{vT}, 4, v{vOut}")
    srd(sQ, 14, 32768)
    a(f"s_lshl_b32 s{sT}, s{sH}, 13")
    a(f"s_lshl_b32 s{sT+1}, s{sI}, 4")
    a(f"s_add_u32 s{sT}, s{sT}, s{sT+1}")
    a(f"s_add_u32 s{sT}, s{sT}, {WS_ML}")
    a(f"v_lshlrev_b32 v{vT+3}, 9, v{vN}")
    a(f"v_add_u32 v{vT+3}, s{sT}, v{vT+3}", "own (max, sum) granule of row n")
    a(f"v_mov_b32 v{vS}, v{vM}")
    a(f"v_mov_b32 v{vS+2}, s{sEp}")
    a(f"v_mov_b32 v{vS+3}, s{sNEp}")
    a(f"s_mov_b32 s{sSpin}, 0")
    a(f"s_mov_b32 s{sT3}, 0x0c0c0400")
    spin(C2, vT + 1, "L_s2", f"s{sExp}")
    a(f"ds_read_b32 v{vT}, v{vCa} offset:{FLG - C1}")
    a(f"ds_read_b128 v[{vS+4}:{vS+7}], v{vMx} offset:{LS - MX}")
    a("s_waitcnt lgkmcnt(0)")
    a(f"v_readfirstlane_b32 s{sMode}, v{vT}")
    a(f"v_add_f32 v{vS+4}, v{vS+4}, v{vS+5}")
    a(f"v_add_f32 v{vS+6}, v{vS+6}, v{vS+7}")
    a(f"v_add_f32 v{vS+1}, v{vS+4}, v{vS+6}")
    a(f"s_lshl_b32 s{sT}, s{sWl}, 2")
    a(f"s_lshl_b64 exec, 15, s{sT}", "each K-wave publishes four rows")
    a(f"s_bitcmp1_b32 s{sMode}, 0")
    a("s_cbranch_scc1 L_mlslow")
    a(f"buffer_store_dwordx4 v[{vS}:{vS+3}], v{vT+3}, s[{sWS}:{sWS+3}], 0 offen")
    a("s_branch L_mldone")
    a.label("L_mlslow")
    a(f"buffer_store_dwordx4 v[{vS}:{vS+3}], v{vT+3}, s[{sWS}:{sWS+3}], 0 offen sc1")
    a.label("L_mldone")
    a("s_mov_b64 exec, -1")
    a(f"s_bfe_u32 s{sLo}, s{sMode}, 0x80008")
    a(f"s_lshr_b32 s{sHi}, s{sMode}, 16")
    a(f"s_cmp_ge_u32 s{sLo}, s{sHi}")
    a("s_cbranch_scc1 L_fin")
    a.label("L_slice")
    a(f"s_lshl_b32 s{sT}, s{sH}, 5")
    a(f"s_add_u32 s{sT}, s{sT}, s{sLo}")
    a(f"s_lshl_b32 s{sO0}, s{sT}, 13")
    a(f"s_add_u32 s{sO1}, s{sO0}, 4096")
    a(f"s_lshr_b32 s{sMl}, s{sT}, 1")
    a(f"s_lshl_b32 s{sMl}, s{sMl}, 9")
    a(f"s_add_u32 s{sMl}, s{sMl}, {WS_ML}")
    a(f"s_lshr_b32 s{sOut}, s{sLo}, 3")
    a(f"s_lshl_b32 s{sOut}, s{sOut}, 13")
    a(f"s_and_b32 s{sT}, s{sLo}, 7")
    a(f"s_lshl_b32 s{sT}, s{sT}, 7")
    a(f"s_add_u32 s{sOut}, s{sOut}, s{sT}")
    a(f"s_lshl_b32 s{sT}, s{sH}, 10")
    a(f"s_add_u32 s{sOut}, s{sOut}, s{sT}")
    a(f"s_mov_b64 s[{sM0}:{sM0+1}], -1")
    a(f"s_mov_b64 s[{sM1}:{sM1+1}], -1")
    if PREO:
        a.c("pull the lines that will be polled into L2 (results unused)")
        a(f"s_lshl_b32 s{sT}, s{sWl}, 11")
        a(f"s_add_u32 s{sT}, s{sT}, s{sO0}")
        a(f"v_lshlrev_b32 v{vT}, 4, v{vLane}")
        a(f"buffer_load_dwordx4 v[{FO}:{FO+3}], v{vT}, s[{sWS}:{sWS+3}], s{sT} offen sc1")
        a(f"buffer_load_dwordx4 v[{FO+4}:{FO+7}], v{vT}, s[{sWS}:{sWS+3}], s{sT} offen offset:1024 sc1")
    a.label("L_mlpoll")
    a(f"buffer_load_dwordx4 v[{FM}:{FM+3}], v{vMa}, s[{sWS}:{sWS+3}], s{sMl} offen sc1")
    a(f"buffer_load_dwordx4 v[{FM+4}:{FM+7}], v{vMa}, s[{sWS}:{sWS+3}], s{sMl} offen offset:256 sc1")
    a(f"s_add_u32 s{sSpin}, s{sSpin}, 1")
    a(f"s_cmp_ge_u32 s{sSpin}, 0x400000")
    a("s_cbranch_scc1 L_fin")
    a("s_waitcnt vmcnt(0)")
    a(f"v_cmp_ne_u32 vcc, s{sEp}, v{FM+2}")
    a(f"v_cmp_ne_u32 s[{sCm}:{sCm+1}], s{sNEp}, v{FM+3}")
    a(f"v_cmp_ne_u32 s[{sCm+2}:{sCm+3}], s{sEp}, v{FM+6}")
    a(f"v_cmp_ne_u32 s[{sCm+4}:{sCm+5}], s{sNEp}, v{FM+7}")
    a(f"v_max_f32 v{vT}, v{FM}, v{FM+4}")
    a(f"s_or_b64 vcc, vcc, s[{sCm}:{sCm+1}]")
    a(f"s_or_b64 vcc, vcc, s[{sCm+2}:{sCm+3}]")
    a(f"s_or_b64 vcc, vcc, s[{sCm+4}:{sCm+5}]")
    a("s_cbranch_scc1 L_mlpoll")
    a(f"v_max_f32_dpp v{vT}, v{vT}, v{vT} row_ror:4 {DPP}")
    a("s_nop 1")
    a(f"v_max_f32_dpp v{vT}, v{vT}, v{vT} row_ror:8 {DPP}")
    xreduce("v_max_f32", vT, vT + 1)
    a(f"v_sub_f32 v{FM}, v{FM}, v{vT}")
    a(f"v_sub_f32 v{FM+4}, v{FM+4}, v{vT}")
    a(f"v_exp_f32 v{FM}, v{FM}")
    a(f"v_exp_f32 v{FM+4}, v{FM+4}")
    a(f"v_mul_f32 v{vT}, v{FM}, v{FM+1}")
    a(f"v_fmac_f32 v{vT}, v{FM+4}, v{FM+5}")
    a("s_nop 1")
    a(f"v_add_f32_dpp v{vT}, v{vT}, v{vT} row_ror:4 {DPP}")
    a("s_nop 1")
    a(f"v_add_f32_dpp v{vT}, v{vT}, v{vT} row_ror:8 {DPP}")
    xreduce("v_add_f32", vT, vT + 1)
    a(f"v_rcp_f32 v{vT}, v{vT}")
    a("s_nop 0")
    a(f"v_mul_f32 v{FM}, v{FM}, v{vT}")
    a(f"v_mul_f32 v{FM+4}, v{FM+4}, v{vT}")
    tick(9)
    spin(C4, vT + 1, "L_s4", f"s{sExp}")
    a.c("re-read the 64-byte pieces that do not carry this launch's tag yet")
    a.label("L_opoll")
    a(f"s_wqm_b64 exec, s[{sM0}:{sM0+1}]")
    a(f"buffer_load_dwordx4 v[{FO}:{FO+3}], v{vOa}, s[{sWS}:{sWS+3}], s{sO0} offen sc1")
    a(f"s_wqm_b64 exec, s[{sM1}:{sM1+1}]")
    a(f"buffer_load_dwordx4 v[{FO+4}:{FO+7}], v{vOa}, s[{sWS}:{sWS+3}], s{sO1} offen sc1")
    a("s_mov_b64 exec, -1")
    a(f"s_add_u32 s{sSpin}, s{sSpin}, 1")
    a(f"s_cmp_ge_u32 s{sSpin}, 0x400000")
    a("s_cbranch_scc1 L_fin")
    a("s_waitcnt vmcnt(0)")
    a(f"v_perm_b32 v{vT+2}, v{FO+3}, v{FO}, s{sT3}")
    a(f"v_perm_b32 v{vT+3}, v{FO+7}, v{FO+4}, s{sT3}")
    a(f"v_cmp_ne_u32 s[{sM0}:{sM0+1}], v{vT+2}, v{vTagC}")
    a(f"v_cmp_ne_u32 s[{sM1}:{sM1+1}], v{vT+3}, v{vTagC}")
    a(f"v_pk_mul_f32 v[{FA}:{FA+1}], v[{FO}:{FO+1}], v[{FM}:{FM+1}] op_sel_hi:[1,0]")
    a(f"v_pk_mul_f32 v[{FA+2}:{FA+3}], v[{FO+2}:{FO+3}], v[{FM}:{FM+1}] op_sel_hi:[1,0]")
    a(f"s_or_b64 vcc, s[{sM0}:{sM0+1}], s[{sM1}:{sM1+1}]")
    a("s_cbranch_scc1 L_opoll")
    a(f"v_pk_fma_f32 v[{FA}:{FA+1}], v[{FO+4}:{FO+5}], v[{FM+4}:{FM+5}], v[{FA}:{FA+1}] op_sel_hi:[1,0,1]")
    a(f"v_pk_fma_f32 v[{FA+2}:{FA+3}], v[{FO+6}:{FO+7}], v[{FM+4}:{FM+5}], v[{FA+2}:{FA+3}] op_sel_hi:[1,0,1]")
    a(f"s_add_u32 s{sLo}, s{sLo}, 1")
    a(f"v_permlane32_swap_b32 v{FA}, v{FA+1}")
    a(f"v_permlane32_swap_b32 v{FA+2}, v{FA+3}")
    a(f"v_add_f32 v{FA}, v{FA}, v{FA+1}")
    a(f"v_add_f32 v{FA+2}, v{FA+2}, v{FA+3}")
    a("s_nop 1")
    a(f"v_permlane16_swap_b32 v{FA}, v{FA+2}")
    a(f"s_cmp_lt_u32 s{sHi}, 32")
    a(f"v_add_f32 v{FA}, v{FA}, v{FA+2}")
    a("s_nop 1")
    a(f"v_add_f32_dpp v{FA}, v{FA}, v{FA} row_ror:4 {DPP}")
    a("s_nop 1")
    a(f"v_add_f32_dpp v{FA}, v{FA}, v{FA} row_ror:8 {DPP}")
    a("s_mov_b32 exec_lo, 0x000f000f")
    a("s_mov_b32 exec_hi, 0x000f000f")
    a(f"v_cvt_pk_bf16_f32 v{FA}, v{FA}, v{FA}")
    a(f"buffer_store_short v{FA}, v{vOut}, s[{sQ}:{sQ+3}], s{sOut} offen {OPOL}")
    if STAMP:
        a("s_mov_b64 exec, -1")
        tick(10)
        a("s_cbranch_scc1 L_fin")
    else:
        a("s_cbranch_scc0 L_next")
        a("s_endpgm")
        a.label("L_next")
    a("s_mov_b64 exec, -1")
    a(f"s_cmp_lt_u32 s{sLo}, s{sHi}")
    a("s_cbranch_scc1 L_slice")
    a.c("every workgroup of this head has read the epoch word: advance it for the next launch")
    a(f"s_lshl_b32 s{sT}, s{sH}, 7")
    a(f"s_add_u32 s{sT}, s{sT}, {WS_EP}")
    a(f"v_mov_b32 v{vT}, s{sT}")
    a(f"v_mov_b32 v{vT+1}, s{sEp}")
    a("s_mov_b64 exec, 1")
    a(f"buffer_store_dword v{vT+1}, v{vT}, s[{sWS}:{sWS+3}], 0 offen")
    a("s_branch L_fin")
    a.label("L_kmore")
    a("s_waitcnt lgkmcnt(0)")
    a("s_barrier", "E: the V-waves are done with this round's P")
    a(f"s_mov_b32 s{sMore}, 0")
    a(f"s_mov_b32 s{sRnd}, 1")
    a(f"s_mov_b32 s{sExp}, 8")
    for k in range(2):
        pop_lc()
        wread(k)
    a("s_branch L_kround")

    a.label("L_vmain")
    if BAR1 == "post":
        a("s_barrier")
    a("s_setprio 1")
    a(f"s_mov_b32 s{sR}, {KV_BYTES}")
    a(f"s_mov_b32 s{sR+1}, {KV_BYTES}")
    a.label("L_vround")

    def perms(pr):
        t, p = pr >> 2, pr & 3
        vt = vVt + 32 * (t % NTB)
        r0 = vV + 32 * (t & 1) + 8 * p
        r1 = r0 + 4
        for w in range(4):
            a(f"v_perm_b32 v{vt + 4*(2*w) + p}, v{r1+w}, v{r0+w}, s{sSelLo}")
            a(f"v_perm_b32 v{vt + 4*(2*w+1) + p}, v{r1+w}, v{r0+w}, s{sSelHi}")
    def pv(t):
        vt = vVt + 32 * (t % NTB)
        for j in range(8):
            D = f"v[{vAcc+4*j}:{vAcc+4*j+3}]"
            a(f"v_mfma_f32_16x16x32_bf16 {D}, v[{vt+4*j}:{vt+4*j+3}], v[{vP+4*t}:{vP+4*t+3}], {D}")
    def fetch_p():
        tick(13)
        spin(C2, vT, "L_sp", f"s{sExp}")
        for t in range(4):
            a(f"ds_read_b128 v[{vP+4*t}:{vP+4*t+3}], v{vPa} offset:{t*1024}")
        a(f"ds_read_b32 v{vF}, v{vCa} offset:{FLG - C1}")
        a(f"ds_read_b32 v{vT}, v{vPa} offset:{AOFF - POFF}")
        a(f"s_cmp_eq_u32 s{sRnd}, 0")
        a("s_waitcnt lgkmcnt(0)")
        a(f"v_readfirstlane_b32 s{sMode}, v{vF}")
        a("s_cbranch_scc1 L_noresc")
        for r in range(0, 32, 2):
            a(f"v_pk_mul_f32 v[{vAcc+r}:{vAcc+r+1}], v[{vAcc+r}:{vAcc+r+1}], v[{vT}:{vT+1}] op_sel_hi:[1,0]")
        a("s_nop 1")
        a.label("L_noresc")
        tick(5)
    seq = [("K", k, q) for k in (0, 1) for q in range(4)] + [("V", k, q) for k in (0, 1) for q in range(4)]
    seq += [("K", k, q) for k in range(2, 8) for q in range(4)] + [("V", k, q) for k in range(2, 8) for q in range(4)]
    pos = {x: i for i, x in enumerate(seq)}
    st = {"pairs": 0, "tiles": 0, "p": False, "kl": 0, "list": False, "popped": 2}
    def pair_done_at(pr):
        k, q = pr >> 1, 2 * (pr & 1) + 1
        return pos[("V", k, q)]
    def retire(complete, final=False):
        while st["kl"] < 8 and pos[("K", st["kl"], 3)] <= complete and st["init"]:
            a(f"v_add_u32 v{vSig}, 1, v{vSig}")
            a(f"ds_write_b32 v{vSa}, v{vSig}", "K block landed")
            st["kl"] += 1
        n = 0
        while st["list"] and st["pairs"] < 16 and pair_done_at(st["pairs"]) <= complete and (final or n < 1):
            pr = st["pairs"]; t = pr >> 2
            if t - st["tiles"] >= NTB:
                if not st["p"]:
                    fetch_p(); st["p"] = True
                pv(st["tiles"]); st["tiles"] += 1
            if pr < 4:
                a(f"s_bitcmp1_b32 s{sBad}, {4*(pr>>1)}")
                a(f"s_cbranch_scc0 L_vgood{pr}")
                for r in range(8):
                    a(f"v_mov_b32 v{vV+8*pr+r}, 0")
                a.label(f"L_vgood{pr}")
            perms(pr); st["pairs"] += 1; n += 1
        if n == 0 or final:
            m = 0
            while st["p"] and st["tiles"] < (st["pairs"] >> 2) and st["tiles"] < 3 and (final or m < 1):
                pv(st["tiles"]); st["tiles"] += 1; m += 1
    st["init"] = False
    for i, (kind, k, q) in enumerate(seq):
        W = L if i < LSW else L2
        if q == 0:
            assert k < st["popped"]
            if kind == "K":
                a(f"s_add_u32 m0, s{sWb}, {k*4096}")
                a(f"s_mov_b32 s{sK+2}, s{sR+k}")
            else:
                a(f"s_mov_b32 s{sV+2}, s{sR+k}")
        if i >= W:
            a(f"s_waitcnt vmcnt({W-1})")
        if kind == "K":
            k_load(k, q)
        else:
            assert k < 4 or st["pairs"] > 2 * (k - 4) + (q >> 1), (i, st)
            v_load(k, q)
        if i == W - 1:
            a.c("set-up work, hidden behind the first loads")
            a(f"s_cmp_lg_u32 s{sRnd}, 0")
            a("s_cbranch_scc1 L_vinit")
            common_init()
            tick(1)
            a(f"v_mov_b32 v{vSig}, 0")
            a(f"v_lshlrev_b32 v{vSa}, 2, v{vT+7}")
            a(f"v_add_u32 v{vSa}, {KL}, v{vSa}")
            a(f"s_mov_b32 s{sSelLo}, 0x05040100")
            a(f"s_mov_b32 s{sSelHi}, 0x07060302")
            a(f"v_mul_u32_u24 v{vOw}, {RS}, v{vN}")
            a(f"v_lshl_add_u32 v{vOw}, v{vG}, 7, v{vOw}")
            a(f"v_add_u32 v{vOw}, s{sWb}, v{vOw}")
            a(f"s_mul_i32 s{sT}, s{sWl}, {2*RS}")
            a(f"v_lshrrev_b32 v{vOr}, 5, v{vLane}")
            a(f"v_add_u32 v{vOr}, v{vOr}, v{vLane}")
            a(f"v_lshlrev_b32 v{vOr}, 4, v{vOr}")
            a(f"v_add_u32 v{vOr}, s{sT}, v{vOr}")
            a(f"s_lshl_b32 s{sT}, s{sH}, 3")
            a(f"s_add_u32 s{sT}, s{sT}, s{sWl}")
            a(f"s_lshl_b32 s{sT}, s{sT}, 15")
            a(f"s_lshl_b32 s{sT+1}, s{sI}, 8")
            a(f"s_add_u32 s{sT}, s{sT}, s{sT+1}")
            a(f"v_add_u32 v{vWo}, s{sT}, v{vWo}")
            for r in range(32):
                a(f"v_mov_b32 v{vAcc+r}, 0")
            a(f"s_mov_b32 s{sT0}, 0x07060500")
            a(f"s_mov_b32 s{sT3}, 0x07060501")
            a(f"s_mov_b32 s{sO1}, {4*32768}")
            a("s_waitcnt lgkmcnt(0)")
            a(f"s_add_u32 s{sEp}, s{sEp}, 1")
            make_tag(vTag, vN, vT + 4)
            a.label("L_vinit")
            st["init"] = True
        if i == IL:
            a(f"s_cmp_lg_u32 s{sRnd}, 0")
            a("s_cbranch_scc1 L_vlist")
            tick(14)
            get_list()
            tick(3)
            a.label("L_vlist")
            st["list"] = True
        elif st["list"] and st["popped"] < 8 and (i + 2 >= pos[("K", st["popped"], 0)] or q == 1):
            pop(st["popped"], sR + st["popped"], False); st["popped"] += 1
        if i == 39:
            tick(4)
        if i == 63:
            signal(C4, vT)
        if i >= IP and not st["p"]:
            fetch_p(); st["p"] = True
        elif i != IL:
            retire(i - W)
    tick(15)
    a(f"v_mov_b32 v{vT+1}, 1")
    retire(63 - W, final=True)
    while st["pairs"] < 16:
        c = pair_done_at(st["pairs"])
        a(f"s_waitcnt vmcnt({63 - c})")
        retire(c, final=True)
    assert st["kl"] == 8 and st["tiles"] == 3
    pv(3)
    a(f"s_cmp_gt_u32 s{sMore}, 24")
    a("s_cbranch_scc1 L_vmore")
    tick(6)
    for j in range(8):
        a(f"ds_write_b128 v{vOw}, v[{vAcc+4*j}:{vAcc+4*j+3}] offset:{j*16}")
    R0 = vV
    a("s_mov_b64 exec, 1")
    a(f"ds_add_rtn_u32 v{vT+1}, v{vCa}, v{vT+1} offset:{C3 - C1}")
    a("s_waitcnt lgkmcnt(0)")
    a(f"v_cmp_eq_u32 vcc, 3, v{vT+1}")
    a("s_cbranch_vccnz L_go")
    spin(C3, vT + 1, "L_s3", "4")
    a.label("L_go")
    a("s_mov_b64 exec, -1")
    tick(7)
    a(f"v_add_u32 v{vT}, 0x10000, v{vOr}")
    for hh in range(2):
        for w in range(4):
            a(f"ds_read_b128 v[{R0+16*hh+4*w}:{R0+16*hh+4*w+3}], v{vOr if w < 2 else vT} offset:{(w&1)*32768 + hh*8*RS}")
    a(f"s_bitcmp1_b32 s{sMode}, 0")
    a("s_cbranch_scc1 L_slowo")
    def bsum(sfx):
        for hh in range(2):
            R = R0 + 16 * hh
            a(f"s_waitcnt lgkmcnt({6 - 4*hh})")
            a(f"v_pk_add_f32 v[{R}:{R+1}], v[{R}:{R+1}], v[{R+4}:{R+5}]")
            a(f"v_pk_add_f32 v[{R+2}:{R+3}], v[{R+2}:{R+3}], v[{R+6}:{R+7}]")
            a(f"s_waitcnt lgkmcnt({4 - 4*hh})")
            a(f"v_pk_add_f32 v[{R+8}:{R+9}], v[{R+8}:{R+9}], v[{R+12}:{R+13}]")
            a(f"v_pk_add_f32 v[{R+10}:{R+11}], v[{R+10}:{R+11}], v[{R+14}:{R+15}]")
            a(f"v_pk_add_f32 v[{R}:{R+1}], v[{R}:{R+1}], v[{R+8}:{R+9}]")
            a(f"v_pk_add_f32 v[{R+2}:{R+3}], v[{R+2}:{R+3}], v[{R+10}:{R+11}]")
            a(f"v_perm_b32 v{R}, v{R}, v{vTag}, s{sT0}")
            a(f"v_perm_b32 v{R+3}, v{R+3}, v{vTag}, s{sT3}")
            a(f"buffer_store_dwordx4 v[{R}:{R+3}], v{vWo}, s[{sWS}:{sWS+3}], {'0' if hh == 0 else 's%d' % sO1} offen {sfx}")
    bsum("")
    tick(8)
    a("s_branch L_fin" if STAMP else "s_endpgm")
    a.label("L_slowo")
    bsum("sc1")
    a("s_branch L_fin")
    a.label("L_vmore")
    a("s_barrier", "E")
    a(f"s_mov_b32 s{sMore}, 0")
    a(f"s_mov_b32 s{sRnd}, 1")
    a(f"s_mov_b32 s{sExp}, 8")
    for k in range(2):
        pop(k, sR + k, False)
    a(f"s_mov_b32 s{sBad}, 0")
    a("s_branch L_vround")

    a.label("L_fin")
    if STAMP:
        a("s_mov_b64 exec, -1")
        a("s_waitcnt vmcnt(0)")
        tick(11)
        a(f"v_writelane_b32 v{vX+1}, s{sSpin}, 12")
        a(f"v_writelane_b32 v{vX}, 1, 12")
        flush_ticks()
    a.label("L_end")
    a("s_endpgm")
    a.label("L_codeend")

    head = f"""; Paged (block-table) GQA decode attention.
; @launch grid=(256,1,1) block=(512,1,1) lds={LDS_BYTES}
.amdgcn_target "amdgcn-amd-amdhsa--gfx950"
.text
.globl {NAME}_kernel
.p2align 8
.type {NAME}_kernel,@function
"""
    tail = f""".section .rodata,"a"
.p2align 6
.amdhsa_kernel {NAME}_kernel
  .amdhsa_next_free_vgpr {NVGPR}
  .amdhsa_next_free_sgpr 102
  .amdhsa_accum_offset {NVGPR}
  .amdhsa_group_segment_fixed_size 0
  .amdhsa_kernarg_size 64
  .amdhsa_user_sgpr_count 2
  .amdhsa_user_sgpr_kernarg_segment_ptr 1
  .amdhsa_system_sgpr_workgroup_id_x 1
.end_amdhsa_kernel
"""
    return head + a.text() + tail

if __name__ == "__main__":
    opts = dict(kv.split("=", 1) for kv in sys.argv[2:])
    open(sys.argv[1], "w").write(gen(opts))
```

```python
import sys

NAME = "standalone__paged_block_table_kv_radixattention__decode"

class Asm:
    def __init__(self):
        self.lines = []
    def __call__(self, s="", c=None):
        s = s.strip()
        self.lines.append("    " + s + (f"    ; {c}" if c else ""))
    def label(self, n):
        self.lines.append(n + ":")
    def c(self, s):
        self.lines.append("    ; " + s)
    def text(self):
        return "\n".join(self.lines) + "\n"

KV_BYTES = 1280 * 32768
WS_ML = 2 << 20
WS_AR = WS_ML + 65536
WS_EP = WS_AR + 32768
NEG = "0xf149f2ca"
DPP = "row_mask:0xf bank_mask:0xf"

def gen(opts):
    def pol(k, d):
        return opts.get(k, d).replace("+", " ").replace("def", "")
    def flag(k, d):
        return opts.get(k, d) == "1"
    POL = opts.get("pol", "nt")
    KPOL, VPOL = pol("kpol", POL), pol("vpol", POL)
    OPOL = pol("opol", "def")
    PERM = opts.get("perm", "10543276")
    STAMP = flag("stamp", "0")
    PRIO = flag("prio", "1")
    PREW = flag("prew", "1")
    EARLY = flag("early", "1")
    PREML = flag("preml", "1")
    FORCE = opts.get("force", "")

    a = Asm()
    INV = 131072
    MX = INV + 1024
    LS = MX + 512
    FLG = LS + 512
    QL = FLG + 256
    LDS_BYTES = QL + 4096
    ARS = int(opts.get("ars", "4"))
    CHKPOS = opts.get("chkpos", "pre")
    BSPEC = flag("bspec", "1")
    LATEBAR = flag("latebar", "0")
    WARM = flag("warm", "1")
    CNT = INV + 62 * 16
    RS = 528

    vLane, vG, vN, vVo0, vVo1, vM, vL, vC = 1, 2, 3, 4, 5, 6, 7, 8
    vB4 = 9
    vKs = 10
    vKr = 14
    vT = 18
    vS = 28
    vBias = 44
    vP = 60
    vQ = 68
    vAcc = 84
    vK = 116
    vV = 180
    vOw, vOr, vWo, vMw, vTag, vF, vFa = 244, 245, 246, 247, 248, 249, 250
    vX = 252
    NVGPR = 256
    vChk = vBias + 8

    sK, sV, sQ, sWS = 20, 24, 28, 32
    sN, sNB, sNF = 36, 40, 44
    sH, sI, sW, sWb = 48, 49, 50, 51
    sP, sR, sLc = 52, 56, 60
    sU, sRnd, sSelLo, sSelHi, sSpecBad, sEp = 64, 65, 66, 67, 68, 69
    sRm = 70
    sCm = 78
    sNEp, sXcc, sAr = 86, 87, 88
    sM0, sM1 = 90, 92
    sT = 94
    sSt = 98
    sLo, sHi, sSpin, sT0, sT3, sMode, sWok, sO0, sO1, sMl, sOut = 36, 37, 38, 39, 40, 41, 42, 43, 44, 45, 46

    def tick(idx):
        if not STAMP:
            return
        a(f"s_memrealtime s[{sSt}:{sSt+1}]")
        a("s_waitcnt lgkmcnt(0)")
        a(f"v_writelane_b32 v{vX}, s{sSt}, {idx}")
        a(f"v_writelane_b32 v{vX+1}, s{sSt+1}, {idx}")
    def flush_ticks():
        a("s_mov_b64 exec, 0xffff")
        a(f"s_lshl_b32 s{sSt}, s2, 3")
        a(f"s_add_u32 s{sSt}, s{sSt}, s{sW}")
        a(f"s_lshl_b32 s{sSt}, s{sSt}, 7")
        a(f"s_add_u32 s{sSt}, s{sSt}, {16<<20}")
        a(f"v_mbcnt_lo_u32_b32 v{vX+2}, -1, 0")
        a(f"v_lshlrev_b32 v{vX+2}, 3, v{vX+2}")
        a(f"v_add_u32 v{vX+2}, s{sSt}, v{vX+2}")
        a(f"v_cmp_ne_u32 vcc, 0, v{vX}")
        a("s_and_b64 exec, exec, vcc")
        a(f"buffer_store_dwordx2 v[{vX}:{vX+1}], v{vX+2}, s[{sWS}:{sWS+3}], 0 offen")

    def srd(d, p, nbytes):
        a(f"s_mov_b32 s{d}, s{p}")
        a(f"s_and_b32 s{d+1}, s{p+1}, 0xffff")
        a(f"s_mov_b32 s{d+2}, {nbytes}")
        a(f"s_mov_b32 s{d+3}, 0x20000")
    def load_k(k):
        a(f"s_add_u32 m0, s{sWb}, {k*4096}")
        a(f"s_mov_b32 s{sK+2}, s{sR+k}")
        for q in range(4):
            a(f"buffer_load_dwordx4 v{vKs+q}, s[{sK}:{sK+3}], s{sP+k} offen offset:{q*1024} {KPOL} lds")
    def load_v(k):
        a(f"s_mov_b32 s{sV+2}, s{sR+k}")
        for i in range(4):
            r = vV + 16 * k + 4 * i
            a(f"buffer_load_dwordx4 v[{r}:{r+3}], v{vVo0 + (i>>1)}, s[{sV}:{sV+3}], s{sP+k} offen offset:{2048*(i&1)} {VPOL}")
    def pop(k):
        a(f"s_ff1_i32_b32 s{sT}, s{sU}", "next candidate of this wave (-1: none)")
        a(f"s_bitset0_b32 s{sU}, s{sT}")
        a(f"s_add_u32 s{sT+1}, s{sT}, 8")
        a(f"s_and_b32 s{sT+2}, s{sT+1}, 0x38")
        a(f"s_sub_u32 s{sT+2}, s{sI}, s{sT+2}")
        a(f"s_and_b32 s{sT+2}, s{sT+2}, 31")
        a(f"s_lshl_b32 s{sP+k}, s{sT+1}, 5")
        a(f"s_add_u32 s{sP+k}, s{sP+k}, s{sT+2}")
        a(f"s_lshl_b32 s{sP+k}, s{sP+k}, 15")
        a(f"s_lshl_b32 s{sLc+k}, s{sT+1}, 4")
        a(f"s_cmp_lt_i32 s{sT}, 0")
        a(f"s_cselect_b32 s{sR+k}, 0, {KV_BYTES}")
        a(f"s_cselect_b32 s{sLc+k}, {63*16}, s{sLc+k}")
    def make_tag(dst, vu, tmp):
        a(f"s_lshr_b32 s{sT}, s{sEp}, 8")
        a(f"s_add_u32 s{sT}, s{sT}, 0x5a")
        a(f"v_mad_u32_u24 v{dst}, v{vu}, 37, s{sEp}")
        a(f"v_mad_u32_u24 v{tmp}, v{vu}, 59, s{sT}")
        a(f"s_mov_b32 s{sT}, 0x0c0c0400")
        a(f"v_perm_b32 v{dst}, v{tmp}, v{dst}, s{sT}")
    def xreduce(op, v, t):
        a(f"v_mov_b32 v{t}, v{v}")
        a("s_nop 1")
        a(f"v_permlane32_swap_b32 v{v}, v{t}")
        a("s_nop 0")
        a(f"{op} v{v}, v{v}, v{t}")
        a(f"v_mov_b32 v{t}, v{v}")
        a("s_nop 1")
        a(f"v_permlane16_swap_b32 v{v}, v{t}")
        a("s_nop 0")
        a(f"{op} v{v}, v{v}, v{t}")
    a.label(f"{NAME}_kernel")
    a("s_cmp_ge_u32 s2, 256")
    a("s_cbranch_scc1 L_end")
    a("s_load_dwordx16 s[4:19], s[0:1], 0")
    if STAMP:
        a(f"v_mov_b32 v{vX}, 0")
        a(f"v_mov_b32 v{vX+1}, 0")
        a(f"s_memrealtime s[{sSt+2}:{sSt+3}]")
    a(f"v_lshrrev_b32 v{vT}, 6, v0")
    a(f"v_and_b32 v{vLane}, 63, v0")
    a(f"v_readfirstlane_b32 s{sW}, v{vT}")
    if PERM == "01234567":
        a(f"s_and_b32 s{sH}, s2, 7")
    else:
        a(f"s_lshl_b32 s{sH}, s2, 2")
        a(f"s_lshr_b32 s{sH}, {hex(int(''.join(reversed(PERM)), 16))}, s{sH}")
        a(f"s_and_b32 s{sH}, s{sH}, 7", "kv head")
    a(f"s_lshr_b32 s{sI}, s2, 3", "workgroup index inside the head")
    if FORCE == "late":
        a(f"s_cmp_lg_u32 s{sI}, 5")
        a("s_cbranch_scc1 L_notlate")
        a("s_movk_i32 s3, 200")
        a.label("L_latespin")
        a("s_sleep 8")
        a("s_sub_u32 s3, s3, 1")
        a("s_cmp_lg_u32 s3, 0")
        a("s_cbranch_scc1 L_latespin")
        a.label("L_notlate")
    if opts.get("cw", "1") == "1":
        a("s_getpc_b64 s[90:91]")
        a.label("L_pc")
        a(f"v_lshlrev_b32 v{vT+8}, 4, v0")
        a(f"v_min_u32 v{vT+8}, (L_codeend - L_pc - 4), v{vT+8}")
        a(f"global_load_dword v{vT+9}, v{vT+8}, s[90:91]", "kernel text -> L2 (value unused)")
    a(f"v_lshrrev_b32 v{vG}, 4, v{vLane}")
    a(f"v_and_b32 v{vN}, 15, v{vLane}")
    a(f"v_lshlrev_b32 v{vT+1}, 2, v0")
    a(f"v_lshlrev_b32 v{vT+2}, 4, v{vLane}")
    a(f"v_add_u32 v{vT+2}, {INV}, v{vT+2}")
    for r in range(4):
        a(f"v_mov_b32 v{vS+r}, 0")
    a(f"ds_write_b128 v{vT+2}, v[{vS}:{vS+3}]", "clear the inverse map")
    a(f"s_lshl_b32 s{sT}, s{sH}, 8")
    a(f"s_lshl_b32 s{sWb}, s{sW}, 14")
    a(f"v_xor_b32 v{vT+3}, v{vN}, v{vG}")
    a(f"v_lshlrev_b32 v{vT+3}, 4, v{vT+3}")
    a(f"v_lshlrev_b32 v{vT+4}, 11, v{vG}")
    a(f"v_add_u32 v{vT+4}, s{sT}, v{vT+4}")
    for q in range(4):
        if q == 0:
            a(f"v_add_u32 v{vKs}, v{vT+3}, v{vT+4}")
        else:
            a(f"v_xor_b32 v{vKs+q}, {64*q}, v{vT+3}")
            a(f"v_add_u32 v{vT+4}, {8192-1024}, v{vT+4}")
            a(f"v_add_u32 v{vKs+q}, v{vKs+q}, v{vT+4}")
    a(f"v_lshlrev_b32 v{vWo}, 13, v{vG}")
    a(f"v_lshl_add_u32 v{vWo}, v{vN}, 4, v{vWo}")
    a(f"v_add_u32 v{vVo0}, s{sT}, v{vWo}")
    a(f"v_add_u32 v{vVo1}, 4096, v{vVo0}")
    a(f"v_lshrrev_b32 v{vT+5}, 2, v{vN}")
    a(f"s_lshl_b32 s{sT+1}, s{sW}, 6")
    a(f"v_xor_b32 v{vT+6}, s{sT+1}, v{vT+3}")
    a(f"v_lshl_add_u32 v{vT+6}, v{vG}, 8, v{vT+6}")
    a(f"s_lshl_b32 s{sT+1}, s{sH}, 10")
    a(f"s_lshl_b32 s{sT+2}, s{sW}, 13")
    a(f"s_add_u32 s{sT+1}, s{sT+1}, s{sT+2}")
    a(f"s_lshl_b32 s{sT+2}, s{sW}, 10")
    a(f"s_add_u32 m0, s{sT+2}, {QL}")
    a(f"s_lshl_b32 s{sP}, s{sW}, 5")
    a(f"s_add_u32 s{sP}, s{sP}, s{sI}")
    a(f"s_lshl_b32 s{sP}, s{sP}, 15", "first block of this wave: physical block 32*w + i")
    a(f"s_lshl_b32 s{sLc}, s{sW}, 4")
    a(f"s_mov_b32 s{sR}, {KV_BYTES}")
    a(f"s_mov_b32 s{sK+3}, 0x20000")
    a(f"s_mov_b32 s{sV+3}, 0x20000")
    a(f"s_mov_b32 s{sQ+2}, 32768")
    a(f"s_mov_b32 s{sQ+3}, 0x20000")
    a(f"s_lshl_b32 s{sT+3}, s{sH}, 7")
    a(f"s_add_u32 s{sT+3}, s{sT+3}, {WS_EP}")
    a("s_waitcnt lgkmcnt(0)")
    a("s_add_u32 s10, s10, 4096")
    a("s_addc_u32 s11, s11, 0")
    for b in range(4):
        a(f"global_load_dword v{vBias+b}, v{vT+1}, s[10:11] offset:{b*2048-4096}")
    a(f"s_load_dwordx4 s[{sN}:{sN+3}], s[12:13], 0")
    a(f"s_load_dword s{sEp}, s[18:19], s{sT+3}")
    a(f"s_mov_b32 s{sK}, s6")
    a(f"s_and_b32 s{sK+1}, s7, 0xffff")
    a(f"s_mov_b32 s{sV}, s8")
    a(f"s_and_b32 s{sV+1}, s9, 0xffff")
    a(f"s_mov_b32 s{sQ}, s4")
    a(f"s_and_b32 s{sQ+1}, s5, 0xffff")
    a(f"s_cmp_ge_u32 s{sW}, 4")
    if not LATEBAR:
        a("s_barrier")
    a("s_cbranch_scc1 L_bspec")
    if PRIO:
        a("s_setprio 2")
    a(f"buffer_load_dwordx4 v{vT+6}, s[{sQ}:{sQ+3}], s{sT+1} offen lds", "four query rows -> LDS")
    load_k(0)
    load_v(0)
    if BSPEC:
        a("s_branch L_nospec")
    a.label("L_bspec")
    if BSPEC:
        load_k(0)
    a.label("L_nospec")
    if STAMP:
        a(f"v_writelane_b32 v{vX}, s{sSt+2}, 0")
        a(f"v_writelane_b32 v{vX+1}, s{sSt+3}, 0")
    tick(1)
    srd(sWS, 18, 1 << 28)
    a(f"s_mov_b32 s{sSelLo}, 0x05040100")
    a(f"s_mov_b32 s{sSelHi}, 0x07060302")
    a(f"s_lshr_b32 s{sRnd}, s{sW}, 2", "0: first round of an A-wave, 1: B-wave, 2: later round of an A-wave")
    a(f"v_lshlrev_b32 v{vT+4}, 8, v{vN}")
    a(f"v_add_u32 v{vT+4}, s{sWb}, v{vT+4}")
    for j in range(4):
        if j == 0:
            a(f"v_add_u32 v{vKr}, v{vT+3}, v{vT+4}")
        else:
            a(f"v_xor_b32 v{vKr+j}, {64*j}, v{vT+3}")
            a(f"v_add_u32 v{vKr+j}, v{vKr+j}, v{vT+4}")
    a(f"v_lshlrev_b32 v{vB4}, 2, v{vT+5}")
    a(f"v_add_u32 v{vB4}, {INV}, v{vB4}")
    a(f"v_mov_b32 v{vM}, {NEG}")
    a(f"v_mov_b32 v{vL}, 0")
    a(f"v_mov_b32 v{vFa}, {FLG}")
    a(f"v_mov_b32 v{vF}, 0")
    a(f"v_mov_b32 v{vT+8}, 0")
    a(f"v_mul_u32_u24 v{vOw}, {RS}, v{vN}")
    a(f"v_lshl_add_u32 v{vOw}, v{vG}, 7, v{vOw}")
    a(f"v_add_u32 v{vOw}, s{sWb}, v{vOw}")
    a(f"s_and_b32 s{sT+1}, s{sW}, 3")
    a(f"s_mul_i32 s{sT}, s{sT+1}, {2*RS}")
    a(f"s_add_u32 s{sT}, s{sT}, 0x10000")
    a(f"v_lshrrev_b32 v{vOr}, 5, v{vLane}")
    a(f"v_add_u32 v{vOr}, v{vOr}, v{vLane}")
    a(f"v_lshlrev_b32 v{vOr}, 4, v{vOr}")
    a(f"v_add_u32 v{vOr}, s{sT}, v{vOr}")
    a(f"s_lshl_b32 s{sT}, s{sH}, 3")
    a(f"s_add_u32 s{sT}, s{sT}, s{sT+1}")
    a(f"s_lshl_b32 s{sT}, s{sT}, 15")
    a(f"s_lshl_b32 s{sT+1}, s{sI}, 8")
    a(f"s_add_u32 s{sT}, s{sT}, s{sT+1}")
    a(f"v_add_u32 v{vWo}, s{sT}, v{vWo}")
    a(f"s_lshl_b32 s{sT}, s{sW}, 2")
    a(f"s_add_u32 s{sT}, s{sT}, {MX}")
    a(f"v_lshlrev_b32 v{vMw}, 5, v{vN}")
    a(f"v_add_u32 v{vMw}, s{sT}, v{vMw}")
    a(f"s_getreg_b32 s{sXcc}, hwreg(HW_REG_XCC_ID, 0, 4)")
    a(f"s_lshl_b32 s{sAr}, s{sH}, {5 + ARS}")
    a(f"s_add_u32 s{sAr}, s{sAr}, {WS_AR}")
    a("s_waitcnt lgkmcnt(0)")
    a(f"s_add_u32 s{sEp}, s{sEp}, 1", "hand-off epoch of this launch")
    a(f"s_not_b32 s{sNEp}, s{sEp}")
    make_tag(vTag, vN, vT + 4)
    a(f"v_mov_b32 v{vC}, 0x3e0293ee", "log2(e)/sqrt(128)")
    for b in range(4):
        a(f"s_min_i32 s{sT}, s{sN+b}, 0x2000")
        a(f"s_cmp_lt_i32 s{sN+b}, 1")
        a(f"s_cselect_b32 s{sN+b}, 0x2000, s{sT}")
        a(f"s_cselect_b32 s{sT}, {hex(0x000f000f << (4*b))}, 0")
        if b == 0:
            a(f"s_mov_b32 s{sCm}, s{sT}")
        else:
            a(f"s_or_b32 s{sCm}, s{sCm}, s{sT}")
        a(f"s_add_u32 s{sNB+b}, s{sN+b}, 15")
        a(f"s_lshr_b32 s{sNB+b}, s{sNB+b}, 4")
        a(f"s_lshr_b32 s{sNF+b}, s{sN+b}, 4")
    a(f"s_mov_b32 s{sCm+1}, s{sCm}")
    a(f"v_cndmask_b32 v{vC}, v{vC}, 0, s[{sCm}:{sCm+1}]", "ctx <= 0: every position masked -> uniform weights")
    a(f"s_and_b32 s{sT}, s{sN}, 15")
    for b in range(1, 4):
        a(f"s_and_b32 s{sT+1}, s{sN+b}, 15")
        a(f"s_lshl_b32 s{sT+1}, s{sT+1}, {4*b}")
        a(f"s_or_b32 s{sT}, s{sT}, s{sT+1}")
    a(f"v_and_b32 v{vT+4}, 12, v{vN}")
    a(f"v_lshrrev_b32 v{vT+4}, v{vT+4}, s{sT}")
    a(f"v_and_b32 v{vT+4}, 15, v{vT+4}")
    a(f"v_lshlrev_b32 v{vT+5}, 2, v{vG}")
    a(f"v_sub_u32 v{vT+4}, v{vT+4}, v{vT+5}")
    for r in range(4):
        a(f"v_cmp_lt_i32 s[{sRm+2*r}:{sRm+2*r+1}], {r}, v{vT+4}")
    a(f"v_mov_b32 v{vT+7}, 0x10000")
    a(f"s_movk_i32 s{sT+2}, 1280")
    if LATEBAR:
        a("s_barrier")
    a("s_waitcnt vmcnt(8)")
    a(f"s_cmp_lt_u32 s{sW}, 4")
    a("s_cbranch_scc1 L_tbl")
    a(f"s_waitcnt vmcnt({4 if BSPEC else 0})")
    a.label("L_tbl")
    tick(2)
    for b in range(4):
        p = vBias + b
        a(f"v_lshrrev_b32 v{vT+4}, 5, v{p}")
        a(f"v_and_b32 v{vT+5}, 0x38, v{vT+4}")
        a(f"v_add_u32 v{vT+5}, v{vT+5}, v{p}")
        a(f"v_and_b32 v{vT+5}, 31, v{vT+5}")
        a(f"v_cmp_gt_u32 vcc, s{sNF+b}, v0")
        a(f"v_cmp_eq_u32 s[{sCm}:{sCm+1}], s{sI}, v{vT+5}")
        a(f"v_cmp_gt_u32 s[{sCm+2}:{sCm+3}], s{sNB+b}, v0")
        a(f"v_cmp_gt_u32 s[{sCm+4}:{sCm+5}], s{sT+2}, v{p}")
        a(f"v_cndmask_b32 v{vT+5}, v{vT+7}, 1, vcc")
        a(f"v_lshlrev_b32 v{vT+4}, 4, v{vT+4}")
        a(f"s_and_b64 s[{sCm}:{sCm+1}], s[{sCm}:{sCm+1}], s[{sCm+2}:{sCm+3}]")
        a(f"v_add_u32 v{vT+4}, {INV + 4*b}, v{vT+4}")
        a(f"s_and_b64 exec, s[{sCm}:{sCm+1}], s[{sCm+4}:{sCm+5}]")
        a(f"ds_add_u32 v{vT+4}, v{vT+5}")
        a("s_mov_b64 exec, -1")
    a("s_waitcnt lgkmcnt(0)")
    a("s_barrier")
    a(f"ds_read_b128 v[{vS}:{vS+3}], v{vT+2}")
    a(f"s_sub_u32 s{sT}, {QL}, s{sWb}")
    for j in range(4):
        a(f"v_add_u32 v{vP+j}, s{sT}, v{vKr+j}")
        a(f"ds_read_b128 v[{vQ+4*j}:{vQ+4*j+3}], v{vP+j}")
    a("s_waitcnt lgkmcnt(4)")
    a(f"v_or3_b32 v{vS}, v{vS}, v{vS+1}, v{vS+2}")
    a(f"v_or_b32 v{vS}, v{vS}, v{vS+3}")
    a(f"v_cmp_ne_u32 vcc, 0, v{vS}")
    a("s_nop 0")
    a(f"s_bitcmp0_b32 vcc_lo, s{sW}")
    a(f"s_cselect_b32 s{sSpecBad}, 1, 0")
    a(f"s_lshr_b64 s[{sCm}:{sCm+1}], vcc, 8")
    a(f"v_mbcnt_lo_u32_b32 v{vT+4}, s{sCm}, 0")
    a(f"v_cmp_gt_u32 vcc, 24, v{vT+4}")
    a(f"v_and_b32 v{vT+5}, 3, v{vT+4}")
    a(f"v_and_b32 v{vT+4}, 7, v{vT+4}")
    a(f"v_cndmask_b32 v{vT+4}, v{vT+5}, v{vT+4}, vcc")
    a(f"v_cmp_eq_u32 vcc, s{sW}, v{vT+4}")
    a("s_nop 0")
    a(f"s_and_b32 s{sU}, vcc_lo, s{sCm}")
    tick(3)
    a(f"s_cmp_lt_u32 s{sW}, 4")
    a("s_cbranch_scc1 L_a0")
    a(f"s_cmp_eq_u32 s{sSpecBad}, 0")
    a(f"s_cselect_b32 s{sR}, s{sR}, 0")
    if PRIO:
        a("s_setprio 1")
    if not BSPEC:
        load_k(0)
    a.label("L_a0")
    a(f"s_cmp_lg_u32 s{sW}, 0")
    a("s_cbranch_scc1 L_round")
    a.c("arrival mark of this workgroup")
    a(f"s_lshl_b32 s{sT}, s{sI}, {ARS}")
    a(f"v_mov_b32 v{vS+9}, s{sT}")
    a(f"v_mov_b32 v{vS+12}, s{sEp}")
    a(f"v_mov_b32 v{vS+13}, s{sNEp}")
    a(f"v_mov_b32 v{vS+14}, s{sXcc}")
    a("s_mov_b64 exec, 1")
    a(f"buffer_store_dwordx3 v[{vS+12}:{vS+14}], v{vS+9}, s[{sWS}:{sWS+3}], s{sAr} offen sc1")
    a("s_mov_b64 exec, -1")

    a.label("L_round")
    for k in range(1, 4):
        pop(k)
        load_k(k)
    tick(4)
    for k in range(4):
        a(f"v_add_u32 v{vT+k}, s{sLc+k}, v{vB4}")
        a(f"ds_read_b32 v{vT+k}, v{vT+k}")
    a(f"s_cmp_lg_u32 s{sRnd}, 0")
    a("s_cbranch_scc1 L_noinit")
    for r in range(32):
        a(f"v_mov_b32 v{vAcc+r}, 0")
    a.label("L_noinit")
    a("s_waitcnt lgkmcnt(0)")
    for k in range(4):
        a(f"v_and_b32 v{vT+4}, 0xffff, v{vT+k}")
        a(f"v_lshrrev_b32 v{vT+5}, 16, v{vT+k}")
        a(f"v_add_u32 v{vT+5}, v{vT+5}, v{vT+4}")
        a(f"v_cvt_f32_u32 v{vT+4}, v{vT+4}")
        a(f"v_cvt_f32_u32 v{vT+5}, v{vT+5}")
        a(f"v_log_f32 v{vT+4}, v{vT+4}")
        a(f"v_log_f32 v{vT+5}, v{vT+5}")
        a("s_nop 0")
        for r in range(4):
            a(f"v_cndmask_b32 v{vBias+4*k+r}, v{vT+4}, v{vT+5}, s[{sRm+2*r}:{sRm+2*r+1}]")
    for k in range(4):
        a(f"s_waitcnt vmcnt({12 - 4*k})")
        for j in range(4):
            r = vK + 16 * k + 4 * j
            a(f"ds_read_b128 v[{r}:{r+3}], v{vKr+j} offset:{k*4096}")
        if k > 0:
            kk = k - 1
            a("s_waitcnt lgkmcnt(4)")
            for j in range(4):
                r = vK + 16 * kk + 4 * j
                c = "0" if j == 0 else f"v[{vS+4*kk}:{vS+4*kk+3}]"
                a(f"v_mfma_f32_16x16x32_bf16 v[{vS+4*kk}:{vS+4*kk+3}], v[{r}:{r+3}], v[{vQ+4*j}:{vQ+4*j+3}], {c}")
    for j in range(4):
        r = vK + 48 + 4 * j
        c = "0" if j == 0 else f"v[{vS+12}:{vS+15}]"
        a(f"s_waitcnt lgkmcnt({3-j})")
        a(f"v_mfma_f32_16x16x32_bf16 v[{vS+12}:{vS+15}], v[{r}:{r+3}], v[{vQ+4*j}:{vQ+4*j+3}], {c}")
    a(f"s_cmp_eq_u32 s{sSpecBad}, 0")
    a("s_cbranch_scc1 L_specok")
    for r in range(4):
        a(f"v_mov_b32 v{vS+r}, 0")
    for r in range(16):
        a(f"v_mov_b32 v{vV+r}, 0")
    a(f"s_mov_b32 s{sSpecBad}, 0")
    a.label("L_specok")
    for e in range(16):
        a(f"v_fma_f32 v{vS+e}, v{vS+e}, v{vC}, v{vBias+e}")
    a(f"v_max3_f32 v{vT}, v{vS}, v{vS+1}, v{vS+2}")
    a(f"v_max3_f32 v{vT+1}, v{vS+3}, v{vS+4}, v{vS+5}")
    a(f"v_max3_f32 v{vT}, v{vT}, v{vS+6}, v{vS+7}")
    a(f"v_max3_f32 v{vT+1}, v{vT+1}, v{vS+8}, v{vS+9}")
    a(f"v_max3_f32 v{vT}, v{vT}, v{vS+10}, v{vS+11}")
    a(f"v_max3_f32 v{vT+1}, v{vT+1}, v{vS+12}, v{vS+13}")
    a(f"v_max3_f32 v{vT}, v{vT}, v{vS+14}, v{vS+15}")
    a(f"v_max3_f32 v{vT}, v{vT}, v{vT+1}, v{vM}")
    xreduce("v_max_f32", vT, vT + 1)
    a(f"s_cmp_ge_u32 s{sW}, 4")
    a(f"ds_write_b32 v{vMw}, v{vT}")
    a(f"v_and_b32 v{vT+2}, 0xffffffe0, v{vMw}")
    tick(13)
    a("s_cbranch_scc1 L_bx")
    if PRIO:
        a("s_setprio 0")
    def chk():
        a(f"s_cmp_lg_u32 s{sW}, 0")
        a("s_cbranch_scc1 L_nochk")
        a(f"v_and_b32 v{vF}, 31, v{vLane}")
        a(f"v_lshlrev_b32 v{vF}, {ARS}, v{vF}")
        a(f"buffer_load_dwordx3 v[{vChk}:{vChk+2}], v{vF}, s[{sWS}:{sWS+3}], s{sAr} offen sc1")
        a.label("L_nochk")
    if CHKPOS == "pre":
        chk()
    for k in range(1, 4):
        load_v(k)
    if CHKPOS == "post":
        chk()
    a(f"s_cmp_lg_u32 s{sU}, 0")
    a("s_cbranch_scc1 L_own")
    a("s_waitcnt lgkmcnt(0)")
    a("s_barrier", "X: row maxima of all waves are in LDS")
    a("s_branch L_wgmax")
    a.label("L_bx")
    a("s_waitcnt lgkmcnt(0)")
    a("s_barrier", "X")
    for k in range(4):
        load_v(k)
    a.label("L_wgmax")
    tick(14)
    a(f"ds_read_b128 v[{vBias}:{vBias+3}], v{vT+2}")
    a(f"ds_read_b128 v[{vBias+4}:{vBias+7}], v{vT+2} offset:16")
    a("s_waitcnt lgkmcnt(0)")
    a(f"v_max3_f32 v{vT}, v{vBias}, v{vBias+1}, v{vBias+2}")
    a(f"v_max3_f32 v{vT+1}, v{vBias+3}, v{vBias+4}, v{vBias+5}")
    a(f"v_max3_f32 v{vT}, v{vT}, v{vBias+6}, v{vBias+7}")
    a(f"v_max_f32 v{vT}, v{vT}, v{vT+1}")
    a.label("L_own")
    a(f"s_cmp_lg_u32 s{sRnd}, 2")
    a("s_cbranch_scc1 L_join")
    a(f"v_sub_f32 v{vT+2}, v{vM}, v{vT}")
    a(f"v_exp_f32 v{vT+2}, v{vT+2}")
    a("s_nop 0")
    a(f"v_mul_f32 v{vL}, v{vL}, v{vT+2}")
    for r in range(0, 32, 2):
        a(f"v_pk_mul_f32 v[{vAcc+r}:{vAcc+r+1}], v[{vAcc+r}:{vAcc+r+1}], v[{vT+2}:{vT+3}] op_sel_hi:[1,0]")
    a.label("L_join")
    a(f"v_mov_b32 v{vM}, v{vT}")
    for e in range(16):
        a(f"v_sub_f32 v{vS+e}, v{vS+e}, v{vT}")
    for e in range(16):
        a(f"v_exp_f32 v{vS+e}, v{vS+e}")
    for e in range(8):
        a(f"v_cvt_pk_bf16_f32 v{vP+e}, v{vS+2*e}, v{vS+2*e+1}")
    for e in range(0, 16, 2):
        a(f"v_add_f32 v{vS+e}, v{vS+e}, v{vS+e+1}")
    for e in range(0, 16, 4):
        a(f"v_add_f32 v{vS+e}, v{vS+e}, v{vS+e+2}")
    a(f"v_add_f32 v{vS}, v{vS}, v{vS+4}")
    a(f"v_add_f32 v{vS+8}, v{vS+8}, v{vS+12}")
    a(f"v_add_f32 v{vS}, v{vS}, v{vS+8}")
    a(f"v_add_f32 v{vL}, v{vL}, v{vS}")
    a(f"v_mov_b32 v{vT}, v{vL}")
    xreduce("v_add_f32", vT, vT + 1)
    a(f"v_subrev_u32 v{vT+4}, 0x10000, v{vOw}", "partner slot")
    a(f"s_cmp_lt_u32 s{sW}, 4")
    a(f"ds_write_b32 v{vMw}, v{vT} offset:512")
    a("s_cbranch_scc1 L_pv")
    a("s_waitcnt lgkmcnt(0)")
    a("s_barrier", "X2: A-wave accumulators, row sums and the mode word are in LDS")
    for j in range(8):
        a(f"ds_read_b128 v[{vAcc+4*j}:{vAcc+4*j+3}], v{vT+4} offset:{j*16}")
    a(f"ds_read_b32 v{vF}, v{vFa}")
    a.label("L_pv")
    tick(5)
    for t in range(2):
        vt = vK + 32 * t
        for p in range(4):
            rem = 15 - (8 * t + 2 * p + 1)
            a(f"s_waitcnt vmcnt({rem})")
            r0 = vV + 32 * t + 8 * p
            r1 = r0 + 4
            for w in range(4):
                a(f"v_perm_b32 v{vt + 4*(2*w) + p}, v{r1+w}, v{r0+w}, s{sSelLo}")
                a(f"v_perm_b32 v{vt + 4*(2*w+1) + p}, v{r1+w}, v{r0+w}, s{sSelHi}")
        if t == 0:
            a("s_waitcnt lgkmcnt(0)")
        for j in range(8):
            D = f"v[{vAcc+4*j}:{vAcc+4*j+3}]"
            a(f"v_mfma_f32_16x16x32_bf16 {D}, v[{vt+4*j}:{vt+4*j+3}], v[{vP+4*t}:{vP+4*t+3}], {D}")
        if t == 0:
            a(f"v_readfirstlane_b32 s{sMode}, v{vF}")
            a(f"s_mov_b32 s{sT0}, 0x07060500")
            a(f"s_mov_b32 s{sT3}, 0x07060501")
            a(f"s_mov_b32 s{sO1}, {4*32768}")
            a(f"v_mov_b32 v{vT}, {CNT}")
            a(f"v_mov_b32 v{vT+1}, 1")
    a(f"s_cmp_eq_u32 s{sU}, 0")
    a("s_cbranch_scc0 L_more")
    tick(6)
    for j in range(8):
        a(f"ds_write_b128 v{vOw}, v[{vAcc+4*j}:{vAcc+4*j+3}] offset:{j*16}")
    a(f"s_cmp_lt_u32 s{sW}, 4")
    a("s_cbranch_scc1 L_atail")
    R0 = vK
    a("s_mov_b64 exec, 1")
    a(f"ds_add_rtn_u32 v{vT+1}, v{vT}, v{vT+1}")
    a("s_waitcnt lgkmcnt(0)")
    a(f"v_cmp_eq_u32 vcc, 3, v{vT+1}")
    a("s_cbranch_vccnz L_go")
    a.label("L_bspin")
    a(f"ds_read_b32 v{vT+1}, v{vT}")
    a("s_waitcnt lgkmcnt(0)")
    a(f"v_cmp_eq_u32 vcc, 4, v{vT+1}")
    a("s_cbranch_vccz L_bspin")
    a.label("L_go")
    a("s_mov_b64 exec, -1")
    tick(7)
    for hh in range(2):
        for w in range(4):
            a(f"ds_read_b128 v[{R0+16*hh+4*w}:{R0+16*hh+4*w+3}], v{vOr} offset:{w*16384 + hh*8*RS}")
    a(f"s_bitcmp1_b32 s{sMode}, 0")
    a("s_cbranch_scc1 L_slowo")
    def bsum(sfx):
        for hh in range(2):
            R = R0 + 16 * hh
            a(f"s_waitcnt lgkmcnt({6 - 4*hh})")
            a(f"v_pk_add_f32 v[{R}:{R+1}], v[{R}:{R+1}], v[{R+4}:{R+5}]")
            a(f"v_pk_add_f32 v[{R+2}:{R+3}], v[{R+2}:{R+3}], v[{R+6}:{R+7}]")
            a(f"s_waitcnt lgkmcnt({4 - 4*hh})")
            a(f"v_pk_add_f32 v[{R+8}:{R+9}], v[{R+8}:{R+9}], v[{R+12}:{R+13}]")
            a(f"v_pk_add_f32 v[{R+10}:{R+11}], v[{R+10}:{R+11}], v[{R+14}:{R+15}]")
            a(f"v_pk_add_f32 v[{R}:{R+1}], v[{R}:{R+1}], v[{R+8}:{R+9}]")
            a(f"v_pk_add_f32 v[{R+2}:{R+3}], v[{R+2}:{R+3}], v[{R+10}:{R+11}]")
            a(f"v_perm_b32 v{R}, v{R}, v{vTag}, s{sT0}")
            a(f"v_perm_b32 v{R+3}, v{R+3}, v{vTag}, s{sT3}")
            a(f"buffer_store_dwordx4 v[{R}:{R+3}], v{vWo}, s[{sWS}:{sWS+3}], {'0' if hh == 0 else 's%d' % sO1} offen {sfx}")
    bsum("")
    tick(8)
    a("s_branch L_fin" if STAMP else "s_endpgm")
    a.label("L_slowo")
    bsum("sc1")
    a("s_branch L_fin")
    a.label("L_atail")
    a(f"s_cmp_lg_u32 s{sW}, 0")
    a("s_cbranch_scc1 L_modedone")
    a(f"s_lshl_b32 s{sMode}, s{sI}, 8")
    a(f"s_add_u32 s{sT}, s{sI}, 1")
    a(f"s_lshl_b32 s{sT}, s{sT}, 16")
    a(f"s_or_b32 s{sMode}, s{sMode}, s{sT}")
    a(f"s_mov_b32 s{sSpin}, 0")
    a.label("L_look")
    if FORCE == "abandon":
        a(f"s_bitcmp1_b32 s{sI}, 0")
        a(f"s_cselect_b32 s{sT}, 0, -1")
        a(f"v_and_b32 v{vChk}, s{sT}, v{vChk}")
        a(f"v_and_b32 v{vChk+1}, s{sT}, v{vChk+1}")
    if FORCE == "all":
        a(f"v_or_b32 v{vChk+2}, 0x100, v{vChk+2}")
    a(f"v_cmp_ne_u32 vcc, s{sEp}, v{vChk}")
    a(f"v_cmp_ne_u32 s[{sCm}:{sCm+1}], s{sNEp}, v{vChk+1}")
    a(f"v_cmp_ne_u32 s[{sCm+2}:{sCm+3}], s{sXcc}, v{vChk+2}")
    a(f"v_cmp_le_u32 s[{sCm+4}:{sCm+5}], 64, v{vChk+2}")
    a(f"s_or_b64 vcc, vcc, s[{sCm}:{sCm+1}]")
    a("s_cbranch_scc1 L_missing")
    a(f"s_cmp_eq_u64 s[{sCm+2}:{sCm+3}], 0")
    a("s_cbranch_scc1 L_modeset", "all 32 workgroups of this head run on this XCD")
    a(f"s_or_b32 s{sMode}, s{sMode}, 1")
    a(f"s_cmp_eq_u64 s[{sCm+4}:{sCm+5}], 0")
    a("s_cbranch_scc1 L_modeset")
    a(f"s_mov_b32 s{sMode}, 0x200001", "somebody left: finalise every slice")
    a("s_branch L_modeset")
    a.label("L_missing")
    a(f"s_add_u32 s{sSpin}, s{sSpin}, 1")
    a(f"s_cmp_ge_u32 s{sSpin}, 64")
    a("s_cbranch_scc1 L_leave")
    a(f"buffer_load_dwordx3 v[{vChk}:{vChk+2}], v{vF}, s[{sWS}:{sWS+3}], s{sAr} offen sc1")
    a("s_waitcnt vmcnt(0)")
    a("s_branch L_look")
    a.label("L_leave")
    a.c("a workgroup of this head has not started yet: leave a mark, look again, then go or stay")
    a(f"s_lshl_b32 s{sT}, s{sI}, {ARS}")
    a(f"v_mov_b32 v{vT}, s{sT}")
    a(f"v_mov_b32 v{vS}, s{sEp}")
    a(f"v_mov_b32 v{vS+1}, s{sNEp}")
    a(f"v_mov_b32 v{vS+2}, 0x100")
    a("s_mov_b64 exec, 1")
    a(f"buffer_store_dwordx3 v[{vS}:{vS+2}], v{vT}, s[{sWS}:{sWS+3}], s{sAr} offen sc1")
    a("s_mov_b64 exec, -1")
    a("s_waitcnt vmcnt(0)")
    a(f"buffer_load_dwordx3 v[{vChk}:{vChk+2}], v{vF}, s[{sWS}:{sWS+3}], s{sAr} offen sc1")
    a("s_waitcnt vmcnt(0)")
    a(f"v_cmp_ne_u32 vcc, s{sEp}, v{vChk}")
    a(f"v_cmp_ne_u32 s[{sCm}:{sCm+1}], s{sNEp}, v{vChk+1}")
    a("s_nop 0")
    a(f"s_or_b64 vcc, vcc, s[{sCm}:{sCm+1}]")
    a(f"s_cselect_b32 s{sMode}, 1, 0x200001")
    a.label("L_modeset")
    a(f"v_mov_b32 v{vF}, s{sMode}")
    a(f"ds_write_b32 v{vFa}, v{vF}")
    a.label("L_modedone")
    vOa, vMa, vOut, vTagC = vT + 6, vT + 7, vT + 8, vT + 5
    a(f"v_lshrrev_b32 v{vT}, 2, v{vLane}")
    a(f"v_lshlrev_b32 v{vMa}, 4, v{vT}", "c*16")
    a(f"v_and_b32 v{vT+1}, 3, v{vLane}")
    a(f"s_lshl_b32 s{sT+1}, s{sW}, 2")
    a(f"v_add_u32 v{vT+2}, s{sT+1}, v{vT+1}", "u")
    a(f"v_lshlrev_b32 v{vOa}, 8, v{vT}")
    a(f"v_lshl_add_u32 v{vOa}, v{vT+2}, 4, v{vOa}", "c*256 + u*16")
    make_tag(vTagC, vT + 2, vT + 3)
    a(f"s_lshr_b32 s{sT}, s{sW}, 1")
    a(f"s_lshl_b32 s{sT}, s{sT}, 6")
    a(f"s_and_b32 s{sT+1}, s{sW}, 1")
    a(f"s_lshl_b32 s{sT+1}, s{sT+1}, 3")
    a(f"s_add_u32 s{sT}, s{sT}, s{sT+1}")
    a(f"v_lshl_add_u32 v{vOut}, v{vT+1}, 1, s{sT}")
    a(f"v_and_b32 v{vT}, 1, v{vG}")
    a(f"v_lshl_add_u32 v{vOut}, v{vT}, 5, v{vOut}")
    a(f"v_lshrrev_b32 v{vT}, 1, v{vG}")
    a(f"v_lshl_add_u32 v{vOut}, v{vT}, 4, v{vOut}")
    srd(sQ, 14, 32768)
    a(f"s_lshl_b32 s{sT}, s{sH}, 13")
    a(f"s_lshl_b32 s{sT+1}, s{sI}, 4")
    a(f"s_add_u32 s{sT}, s{sT}, s{sT+1}")
    a(f"s_add_u32 s{sT}, s{sT}, {WS_ML}")
    a(f"v_lshlrev_b32 v{vT+1}, 9, v{vN}")
    a(f"v_add_u32 v{vT+1}, s{sT}, v{vT+1}", "own (max, sum) granule of row n")
    a(f"v_and_b32 v{vT+2}, 0xffffffe0, v{vMw}")
    a(f"v_mov_b32 v{vS}, v{vM}")
    a(f"v_mov_b32 v{vS+2}, s{sEp}")
    a(f"v_mov_b32 v{vS+3}, s{sNEp}")
    FM = vQ
    FO = vV
    def slice_setup():
        a(f"s_lshl_b32 s{sT}, s{sH}, 5")
        a(f"s_add_u32 s{sT}, s{sT}, s{sLo}")
        a(f"s_lshl_b32 s{sO0}, s{sT}, 13")
        a(f"s_add_u32 s{sO1}, s{sO0}, 4096")
        a(f"s_lshr_b32 s{sMl}, s{sT}, 1")
        a(f"s_lshl_b32 s{sMl}, s{sMl}, 9")
        a(f"s_add_u32 s{sMl}, s{sMl}, {WS_ML}")
        a(f"s_lshr_b32 s{sOut}, s{sLo}, 3")
        a(f"s_lshl_b32 s{sOut}, s{sOut}, 13")
        a(f"s_and_b32 s{sT}, s{sLo}, 7")
        a(f"s_lshl_b32 s{sT}, s{sT}, 7")
        a(f"s_add_u32 s{sOut}, s{sOut}, s{sT}")
        a(f"s_lshl_b32 s{sT}, s{sH}, 10")
        a(f"s_add_u32 s{sOut}, s{sOut}, s{sT}")
    def ml_loads():
        a(f"buffer_load_dwordx4 v[{FM}:{FM+3}], v{vMa}, s[{sWS}:{sWS+3}], s{sMl} offen sc1")
        a(f"buffer_load_dwordx4 v[{FM+4}:{FM+7}], v{vMa}, s[{sWS}:{sWS+3}], s{sMl} offen offset:256 sc1")
    LPOL = pol("lpol", "sc1")
    def o_loads():
        a(f"buffer_load_dwordx4 v[{FO}:{FO+3}], v{vOa}, s[{sWS}:{sWS+3}], s{sO0} offen {LPOL}")
        a(f"buffer_load_dwordx4 v[{FO+4}:{FO+7}], v{vOa}, s[{sWS}:{sWS+3}], s{sO1} offen {LPOL}")
    a(f"s_mov_b32 s{sSpin}, 0")
    PRE2 = False
    if PRE2:
        a(f"s_mov_b32 s{sLo}, s{sI}")
        slice_setup()
        o_loads()
        ml_loads()
    a("s_waitcnt lgkmcnt(0)")
    a("s_barrier", "X2")
    a(f"ds_read_b32 v{vF}, v{vFa}")
    a(f"ds_read_b128 v[{vS+4}:{vS+7}], v{vT+2} offset:512")
    a(f"ds_read_b128 v[{vS+8}:{vS+11}], v{vT+2} offset:528")
    a("s_waitcnt lgkmcnt(0)")
    a(f"v_readfirstlane_b32 s{sMode}, v{vF}")
    for st in (4, 2):
        for e in range(st):
            a(f"v_add_f32 v{vS+4+e}, v{vS+4+e}, v{vS+4+e+st}")
    a(f"v_add_f32 v{vS+1}, v{vS+4}, v{vS+5}")
    a(f"s_lshl_b32 s{sT}, s{sW}, 2")
    a(f"s_lshl_b64 exec, 15, s{sT}", "each A-wave publishes four rows")
    a(f"s_bitcmp1_b32 s{sMode}, 0")
    a("s_cbranch_scc1 L_mlslow")
    a(f"buffer_store_dwordx4 v[{vS}:{vS+3}], v{vT+1}, s[{sWS}:{sWS+3}], 0 offen")
    a("s_branch L_mldone")
    a.label("L_mlslow")
    a(f"buffer_store_dwordx4 v[{vS}:{vS+3}], v{vT+1}, s[{sWS}:{sWS+3}], 0 offen sc1")
    a.label("L_mldone")
    a("s_mov_b64 exec, -1")
    a(f"s_bfe_u32 s{sLo}, s{sMode}, 0x80008")
    a(f"s_lshr_b32 s{sHi}, s{sMode}, 16")
    a(f"s_mov_b32 s{sT3}, 0x0c0c0400")
    a(f"s_cmp_ge_u32 s{sLo}, s{sHi}")
    a("s_cbranch_scc1 L_fin")
    if PRE2:
        a(f"s_cmp_eq_u32 s{sLo}, s{sI}")
        a("s_cbranch_scc1 L_mlpoll")
    a.label("L_slice")
    slice_setup()
    a(f"s_mov_b64 s[{sM0}:{sM0+1}], -1")
    a(f"s_mov_b64 s[{sM1}:{sM1+1}], -1")
    def o_masked():
        a(f"s_wqm_b64 exec, s[{sM0}:{sM0+1}]")
        a(f"buffer_load_dwordx4 v[{FO}:{FO+3}], v{vOa}, s[{sWS}:{sWS+3}], s{sO0} offen sc1")
        a(f"s_wqm_b64 exec, s[{sM1}:{sM1+1}]")
        a(f"buffer_load_dwordx4 v[{FO+4}:{FO+7}], v{vOa}, s[{sWS}:{sWS+3}], s{sO1} offen sc1")
        a("s_mov_b64 exec, -1")
    def o_check():
        a(f"v_perm_b32 v{vT+2}, v{FO+3}, v{FO}, s{sT3}")
        a(f"v_perm_b32 v{vT+3}, v{FO+7}, v{FO+4}, s{sT3}")
        a(f"v_cmp_ne_u32 s[{sM0}:{sM0+1}], v{vT+2}, v{vTagC}")
        a(f"v_cmp_ne_u32 s[{sM1}:{sM1+1}], v{vT+3}, v{vTagC}")
    a.c("poll (max, sum) granules and, meanwhile, the 64-byte pieces that do not carry this launch's tag yet")
    a.label("L_mlpoll")
    o_masked()
    ml_loads()
    a(f"s_add_u32 s{sSpin}, s{sSpin}, 1")
    a(f"s_cmp_ge_u32 s{sSpin}, 0x400000")
    a("s_cbranch_scc1 L_fin")
    a("s_waitcnt vmcnt(2)")
    o_check()
    a("s_waitcnt vmcnt(0)")
    a(f"v_cmp_ne_u32 vcc, s{sEp}, v{FM+2}")
    a(f"v_cmp_ne_u32 s[{sCm}:{sCm+1}], s{sNEp}, v{FM+3}")
    a(f"v_cmp_ne_u32 s[{sCm+2}:{sCm+3}], s{sEp}, v{FM+6}")
    a(f"v_cmp_ne_u32 s[{sCm+4}:{sCm+5}], s{sNEp}, v{FM+7}")
    a(f"v_max_f32 v{vT}, v{FM}, v{FM+4}")
    a(f"s_or_b64 vcc, vcc, s[{sCm}:{sCm+1}]")
    a(f"s_or_b64 vcc, vcc, s[{sCm+2}:{sCm+3}]")
    a(f"s_or_b64 vcc, vcc, s[{sCm+4}:{sCm+5}]")
    a("s_cbranch_scc1 L_mlpoll")
    o_masked()
    a.label("L_w")
    a(f"v_max_f32_dpp v{vT}, v{vT}, v{vT} row_ror:4 {DPP}")
    a("s_nop 1")
    a(f"v_max_f32_dpp v{vT}, v{vT}, v{vT} row_ror:8 {DPP}")
    xreduce("v_max_f32", vT, vT + 1)
    a(f"v_sub_f32 v{FM}, v{FM}, v{vT}")
    a(f"v_sub_f32 v{FM+4}, v{FM+4}, v{vT}")
    a(f"v_exp_f32 v{FM}, v{FM}")
    a(f"v_exp_f32 v{FM+4}, v{FM+4}")
    a(f"v_mul_f32 v{vT}, v{FM}, v{FM+1}")
    a(f"v_fmac_f32 v{vT}, v{FM+4}, v{FM+5}")
    a("s_nop 1")
    a(f"v_add_f32_dpp v{vT}, v{vT}, v{vT} row_ror:4 {DPP}")
    a("s_nop 1")
    a(f"v_add_f32_dpp v{vT}, v{vT}, v{vT} row_ror:8 {DPP}")
    xreduce("v_add_f32", vT, vT + 1)
    a(f"v_rcp_f32 v{vT}, v{vT}")
    a("s_nop 0")
    a(f"v_mul_f32 v{FM}, v{FM}, v{vT}")
    a(f"v_mul_f32 v{FM+4}, v{FM+4}, v{vT}")
    tick(9)
    FA = vP
    a("s_branch L_owait")
    a.label("L_opoll")
    o_masked()
    a(f"s_add_u32 s{sSpin}, s{sSpin}, 1")
    a(f"s_cmp_ge_u32 s{sSpin}, 0x400000")
    a("s_cbranch_scc1 L_fin")
    a.label("L_owait")
    a("s_waitcnt vmcnt(0)")
    o_check()
    a(f"v_pk_mul_f32 v[{FA}:{FA+1}], v[{FO}:{FO+1}], v[{FM}:{FM+1}] op_sel_hi:[1,0]")
    a(f"v_pk_mul_f32 v[{FA+2}:{FA+3}], v[{FO+2}:{FO+3}], v[{FM}:{FM+1}] op_sel_hi:[1,0]")
    a(f"s_or_b64 vcc, s[{sM0}:{sM0+1}], s[{sM1}:{sM1+1}]")
    a("s_cbranch_scc1 L_opoll")
    a.label("L_ok")
    a(f"v_pk_fma_f32 v[{FA}:{FA+1}], v[{FO+4}:{FO+5}], v[{FM+4}:{FM+5}], v[{FA}:{FA+1}] op_sel_hi:[1,0,1]")
    a(f"v_pk_fma_f32 v[{FA+2}:{FA+3}], v[{FO+6}:{FO+7}], v[{FM+4}:{FM+5}], v[{FA+2}:{FA+3}] op_sel_hi:[1,0,1]")
    a(f"s_add_u32 s{sLo}, s{sLo}, 1")
    a(f"v_permlane32_swap_b32 v{FA}, v{FA+1}")
    a(f"v_permlane32_swap_b32 v{FA+2}, v{FA+3}")
    a(f"v_add_f32 v{FA}, v{FA}, v{FA+1}")
    a(f"v_add_f32 v{FA+2}, v{FA+2}, v{FA+3}")
    a("s_nop 1")
    a(f"v_permlane16_swap_b32 v{FA}, v{FA+2}")
    a(f"s_cmp_lt_u32 s{sHi}, 32")
    a(f"v_add_f32 v{FA}, v{FA}, v{FA+2}")
    a("s_nop 1")
    a(f"v_add_f32_dpp v{FA}, v{FA}, v{FA} row_ror:4 {DPP}")
    a("s_nop 1")
    a(f"v_add_f32_dpp v{FA}, v{FA}, v{FA} row_ror:8 {DPP}")
    a("s_mov_b32 exec_lo, 0x000f000f")
    a("s_mov_b32 exec_hi, 0x000f000f")
    a(f"v_cvt_pk_bf16_f32 v{FA}, v{FA}, v{FA}")
    a(f"buffer_store_short v{FA}, v{vOut}, s[{sQ}:{sQ+3}], s{sOut} offen {OPOL}")
    if STAMP:
        a("s_mov_b64 exec, -1")
        tick(10)
        a("s_cbranch_scc1 L_fin")
    else:
        a("s_cbranch_scc0 L_next")
        a("s_endpgm")
        a.label("L_next")
    a("s_mov_b64 exec, -1")
    a(f"s_cmp_lt_u32 s{sLo}, s{sHi}")
    a("s_cbranch_scc1 L_slice")
    a.label("L_epoch")
    a.c("every workgroup of this head has read the epoch word: advance it for the next launch")
    a(f"s_lshl_b32 s{sT}, s{sH}, 7")
    a(f"s_add_u32 s{sT}, s{sT}, {WS_EP}")
    a(f"v_mov_b32 v{vT}, s{sT}")
    a(f"v_mov_b32 v{vT+1}, s{sEp}")
    a("s_mov_b64 exec, 1")
    a(f"buffer_store_dword v{vT+1}, v{vT}, s[{sWS}:{sWS+3}], 0 offen")
    a.label("L_fin")
    if STAMP:
        a("s_mov_b64 exec, -1")
        a("s_waitcnt vmcnt(0)")
        tick(11)
        a(f"v_writelane_b32 v{vX+1}, s{sSpin}, 12")
        a(f"v_writelane_b32 v{vX}, 1, 12")
        flush_ticks()
    a.label("L_end")
    a("s_endpgm")
    a.label("L_more")
    pop(0)
    load_k(0)
    load_v(0)
    a(f"s_mov_b32 s{sRnd}, 2")
    a("s_branch L_round")
    a.label("L_codeend")

    head = f"""; Paged (block-table) GQA decode attention.
; @launch grid=(256,1,1) block=(512,1,1) lds={LDS_BYTES}
.amdgcn_target "amdgcn-amd-amdhsa--gfx950"
.text
.globl {NAME}_kernel
.p2align 8
.type {NAME}_kernel,@function
"""
    tail = f""".section .rodata,"a"
.p2align 6
.amdhsa_kernel {NAME}_kernel
  .amdhsa_next_free_vgpr {NVGPR}
  .amdhsa_next_free_sgpr 102
  .amdhsa_accum_offset {NVGPR}
  .amdhsa_group_segment_fixed_size 0
  .amdhsa_kernarg_size 64
  .amdhsa_user_sgpr_count 2
  .amdhsa_user_sgpr_kernarg_segment_ptr 1
  .amdhsa_system_sgpr_workgroup_id_x 1
.end_amdhsa_kernel
"""
    return head + a.text() + tail

if __name__ == "__main__":
    opts = dict(kv.split("=", 1) for kv in sys.argv[2:])
    open(sys.argv[1], "w").write(gen(opts))
```

```python
import sys

NAME = "standalone__paged_block_table_kv_radixattention__decode"

class Asm:
    def __init__(self):
        self.lines = []
    def __call__(self, s="", c=None):
        s = s.strip()
        self.lines.append("    " + s + (f"    ; {c}" if c else ""))
    def label(self, n):
        self.lines.append(n + ":")
    def c(self, s):
        self.lines.append("    ; " + s)
    def text(self):
        return "\n".join(self.lines) + "\n"

KV_BYTES = 1280 * 32768
WS_ML = 2 << 20
WS_AR = WS_ML + 65536
WS_EP = WS_AR + 32768
NEG = "0xf149f2ca"
DPP = "row_mask:0xf bank_mask:0xf"

HEADER = """; Paged (block-table) GQA decode attention, B=4 H=32 Hkv=8 D=128, 1280 physical blocks of 16 tokens.
;
; and whether as a partial last block) in LDS and loads every referenced block once for all 4 sequences x 4 heads
; Hand-off stores are plain when all 32 workgroups of the head were seen on this XCD, write-through otherwise;
; a workgroup that cannot see all its peers running leaves its slice to the last starter (no co-residency needed).
"""

def gen(opts):
    def pol(k, d):
        return opts.get(k, d).replace("+", " ").replace("def", "")
    def flag(k, d):
        return opts.get(k, d) == "1"
    POL = opts.get("pol", "nt")
    KPOL, VPOL = pol("kpol", POL), pol("vpol", POL)
    OPOL = pol("opol", "def")
    PERM = opts.get("perm", "01274653")
    STAMP = flag("stamp", "0")
    LITE = flag("lite", "0")
    FORCE = opts.get("force", "")
    L = int(opts.get("l", "7"))
    WP = opts.get("wp", "")
    WPD = int(opts.get("wpd", "1"))
    WF = opts.get("wf", "6")
    SLOW = int(opts.get("slow", "0x62"), 0)
    if "cmask" in opts:
        SLOW = sum(1 << int(PERM[c]) for c in range(8) if (int(opts["cmask"], 0) >> c) & 1)
    IL = int(opts.get("il", "13"))
    IP = int(opts.get("ip", "54"))
    IS = int(opts.get("is", "63"))
    NTB = 3
    CHKB = int(opts.get("chkb", "5"))
    CW = flag("cw", "1")
    ARS = 4

    a = Asm()
    INV = 0
    KL = 1024
    C1 = 2048
    C2, C3, C4, C0, CQ, FLG = C1 + 4, C1 + 8, C1 + 12, C1 + 16, C1 + 20, C1 + 32
    ZENT = C1 + 64
    MX = 3072
    LS = MX + 256
    QL = 4096
    KB = 8192
    LDS_BYTES = KB + 131072
    RS = 528
    POFF = 16384
    AOFF = POFF + 4096

    vA, vG, vN = 1, 2, 3
    vT = 4
    vX16, vZ = 14, 15
    vPa, vL16 = 16, 17
    vP = 20
    vKs = 36
    vKr = 40
    vM, vL, vC, vB4, vMx, vMw, vKl, vLane = 44, 45, 46, 47, 48, 49, 50, 51
    vW = 52
    vQ = 60
    vS = 76
    vTb = 76
    vInc = 84
    vKf = 108
    vOa, vMa, vOut, vTagC = 144, 145, 146, 147
    FM, FO, FA = 148, 156, 164
    vVo0, vVo1, vWo, vOw, vOr, vOr2, vSig, vSa = 40, 41, 42, 43, 44, 45, 46, 47
    vTag, vF = 18, 19
    vAcc = 48
    vV = 80
    vVt = 144
    vX = 144 + 32 * NTB
    NVGPR = vX + 8 if STAMP else vX

    sK, sV, sQ, sWS = 20, 24, 28, 32
    sN = 36
    sH, sI, sW, sWl, sWb = 48, 49, 50, 51, 52
    sU, sRnd, sMore, sBad, sEp, sNEp, sXcc, sAr = 53, 54, 55, 56, 57, 58, 59, 60
    sSelLo, sSelHi, sExp = 61, 62, 63
    sRm = 64
    sCm = 72
    sP, sR = 80, 4
    sM0, sM1 = 88, 90
    sT = 92
    sLc, sKb = 96, 97
    sSt = 98
    sLo, sHi, sSpin, sT0, sT3, sMode, sO0, sO1, sMl, sOut = 36, 37, 38, 39, 40, 41, 42, 43, 44, 45

    def tick(idx):
        if not STAMP or (LITE and idx not in (8, 10, 11)):
            return
        a(f"s_memrealtime s[{sSt}:{sSt+1}]")
        a("s_waitcnt lgkmcnt(0)")
        a(f"v_writelane_b32 v{vX}, s{sSt}, {idx}")
        a(f"v_writelane_b32 v{vX+1}, s{sSt+1}, {idx}")
    def first_tick():
        if STAMP:
            a(f"v_mov_b32 v{vX}, 0")
            a(f"v_mov_b32 v{vX+1}, 0")
            a(f"v_writelane_b32 v{vX}, s{sSt+2}, 0")
            a(f"v_writelane_b32 v{vX+1}, s{sSt+3}, 0")
    def k_load(k, q):
        a(f"buffer_load_dwordx4 v{vKs+q}, s[{sK}:{sK+3}], s{sP+k} offen offset:{q*1024} {KPOL} lds")
    def v_load(k, i):
        r = vV + 16 * (k & 3) + 4 * i
        a(f"buffer_load_dwordx4 v[{r}:{r+3}], v{vVo0 + (i>>1)}, s[{sV}:{sV+3}], s{sP+k} offen offset:{2048*(i&1)} {VPOL}")
    def pop_lc():
        a(f"s_ff1_i32_b32 s{sT}, s{sU}", "next candidate (-1: none)")
        a(f"s_bitset0_b32 s{sU}, s{sT}")
        a(f"s_lshl_b32 s{sLc}, s{sT}, 4")
        a(f"s_addk_i32 s{sLc}, 128")
        a(f"s_cmp_lt_i32 s{sT}, 0")
        a(f"s_cselect_b32 s{sLc}, {ZENT}, s{sLc}")
    def pop(k):
        a(f"s_ff1_i32_b32 s{sT}, s{sU}", "next candidate (-1: none)")
        a(f"s_bitset0_b32 s{sU}, s{sT}")
        a(f"s_add_u32 s{sT+1}, s{sT}, 8")
        a(f"s_and_b32 s{sT+2}, s{sT+1}, 0x38")
        a(f"s_sub_u32 s{sT+2}, s{sI}, s{sT+2}")
        a(f"s_and_b32 s{sT+2}, s{sT+2}, 31")
        a(f"s_lshl_b32 s{sP+k}, s{sT+1}, 5")
        a(f"s_add_u32 s{sP+k}, s{sP+k}, s{sT+2}")
        a(f"s_lshl_b32 s{sP+k}, s{sP+k}, 15")
        a(f"s_cmp_lt_i32 s{sT}, 0")
        a(f"s_cselect_b32 s{sR+k}, 0, {KV_BYTES}")
    def make_tag(dst, vu, tmp):
        a(f"s_lshr_b32 s{sT}, s{sEp}, 8")
        a(f"s_addk_i32 s{sT}, 0x5a")
        a(f"v_mad_u32_u24 v{dst}, v{vu}, 37, s{sEp}")
        a(f"v_mad_u32_u24 v{tmp}, v{vu}, 59, s{sT}")
        a(f"s_mov_b32 s{sT}, 0x0c0c0400")
        a(f"v_perm_b32 v{dst}, v{tmp}, v{dst}, s{sT}")
    def xreduce(op, v, t):
        a(f"v_mov_b32 v{t}, v{v}")
        a("s_nop 1")
        a(f"v_permlane32_swap_b32 v{v}, v{t}")
        a("s_nop 0")
        a(f"{op} v{v}, v{v}, v{t}")
        a(f"v_mov_b32 v{t}, v{v}")
        a("s_nop 1")
        a(f"v_permlane16_swap_b32 v{v}, v{t}")
        a("s_nop 0")
        a(f"{op} v{v}, v{v}, v{t}")
    def signal(cnt, t):
        a(f"v_mov_b32 v{t}, 1")
        a("s_mov_b64 exec, 1")
        a(f"ds_add_u32 v{vZ}, v{t} offset:{cnt}")
        a("s_mov_b64 exec, -1")
    def spin(cnt, t, label, exp):
        a.label(label)
        a(f"ds_read_b32 v{t}, v{vZ} offset:{cnt}")
        a("s_waitcnt lgkmcnt(0)")
        a(f"v_cmp_gt_u32 vcc, {exp}, v{t}")
        a(f"s_cbranch_vccnz {label}")
    def list_read():
        a(f"ds_read_b32 v{vP+4}, v{vZ} offset:{C0}")
        a(f"ds_read_b128 v[{vP}:{vP+3}], v{vL16}")
    def get_list(lbl):
        a("s_waitcnt lgkmcnt(0)")
        a(f"v_cmp_gt_u32 vcc, 4, v{vP+4}")
        a(f"s_cbranch_vccz {lbl}_ok", "the map was read after the counter showed it complete")
        a.label(f"{lbl}_again")
        list_read()
        a("s_waitcnt lgkmcnt(0)")
        a(f"v_cmp_gt_u32 vcc, 4, v{vP+4}")
        a(f"s_cbranch_vccnz {lbl}_again")
        a.label(f"{lbl}_ok")
        a(f"v_or3_b32 v{vP}, v{vP}, v{vP+1}, v{vP+2}")
        a(f"v_or_b32 v{vP}, v{vP}, v{vP+3}")
        a(f"v_cmp_ne_u32 vcc, 0, v{vP}")
        a("s_nop 0")
        a(f"s_lshr_b64 s[{sCm}:{sCm+1}], vcc, 8")
        a(f"v_mbcnt_lo_u32_b32 v{vT+4}, s{sCm}, 0")
        a(f"s_lshr_b32 s{sBad}, vcc_lo, s{sWl}")
        a(f"v_and_b32 v{vT+4}, 3, v{vT+4}")
        a(f"v_cmp_eq_u32 vcc, s{sWl}, v{vT+4}")
        a(f"s_andn2_b32 s{sBad}, 0x11, s{sBad}", "bit0 / bit4: first / second static block is not referenced")
        a(f"s_bcnt1_i32_b32 s{sMore}, s{sCm}")
        a(f"s_and_b32 s{sU}, vcc_lo, s{sCm}")
    def common_init():
        a(f"s_lshl_b32 s{sT}, s{sH}, 7")
        a(f"s_add_u32 s{sT}, s{sT}, {WS_EP}")
        a(f"s_load_dword s{sEp}, s[18:19], s{sT}")
        a(f"s_mov_b32 s{sWS}, s18")
        a(f"s_mov_b32 s{sWS+1}, s19")
        a(f"s_mov_b32 s{sWS+2}, {1 << 28}")
        a(f"s_mov_b32 s{sWS+3}, 0x20000")
        a(f"v_mov_b32 v{vZ}, 0")
        a(f"v_and_b32 v{vL16}, 0x3f0, v{vA}")
        a(f"s_add_u32 s{sT}, s{sWb}, {POFF}")
        a(f"v_add_u32 v{vPa}, s{sT}, v{vL16}")
        a(f"s_mov_b32 s{sExp}, 4")

    a.label(f"{NAME}_kernel")
    a(f"s_load_dwordx2 s[{sK}:{sK+1}], s[0:1], 8")
    a("s_load_dwordx16 s[4:19], s[0:1], 0")
    if STAMP:
        a(f"s_memrealtime s[{sSt+2}:{sSt+3}]")
    a(f"v_lshlrev_b32 v{vA}, 4, v0")
    if CW:
        a("s_getpc_b64 s[96:97]")
        a.label("L_pc")
        a(f"global_load_dword v{vP+15}, v{vA}, s[96:97] offset:104", "kernel text -> L2 (value unused)")
    a("s_cmpk_ge_u32 s2, 256")
    a("s_cbranch_scc1 L_end")
    a(f"v_readfirstlane_b32 s{sW}, v0")
    for r in range(4):
        a(f"v_mov_b32 v{vP+r}, 0")
    a(f"ds_write_b128 v{vA}, v[{vP}:{vP+3}]", "clear map, flags and counters")
    if PERM == "01234567":
        a(f"s_and_b32 s{sH}, s2, 7", "kv head")
    elif PERM == "70123456":
        a(f"s_sub_u32 s{sH}, s2, 1")
        a(f"s_and_b32 s{sH}, s{sH}, 7", "kv head")
    else:
        a(f"s_lshl_b32 s{sH}, s2, 2")
        a(f"s_lshr_b32 s{sH}, {hex(int(''.join(reversed(PERM)), 16))}, s{sH}")
        a(f"s_and_b32 s{sH}, s{sH}, 7", "kv head")
    a(f"s_lshr_b32 s{sI}, s2, 3", "workgroup index inside the head")
    if FORCE == "late":
        a(f"s_cmp_lg_u32 s{sI}, 5")
        a("s_cbranch_scc1 L_notlate")
        a("s_movk_i32 s3, 400")
        a.label("L_latespin")
        a("s_sleep 8")
        a("s_sub_u32 s3, s3, 1")
        a("s_cmp_lg_u32 s3, 0")
        a("s_cbranch_scc1 L_latespin")
        a.label("L_notlate")
    a(f"v_bfe_u32 v{vG}, v0, 4, 2")
    a(f"v_and_b32 v{vN}, 15, v0")
    a(f"s_lshr_b32 s{sW}, s{sW}, 6")
    a(f"v_xor_b32 v{vX16}, v{vN}, v{vG}")
    a(f"s_and_b32 s{sWl}, s{sW}, 3")
    a(f"v_lshlrev_b32 v{vX16}, 4, v{vX16}")
    a(f"s_lshl_b32 s{sT+3}, s{sH}, 8")
    a(f"v_lshl_add_u32 v{vKs}, v{vG}, 11, v{vX16}")
    a(f"s_lshl_b32 s{sP}, s{sWl}, 5")
    a(f"v_add_u32 v{vKs}, s{sT+3}, v{vKs}")
    a(f"s_add_u32 s{sP}, s{sP}, s{sI}")
    a(f"s_lshl_b32 s{sP}, s{sP}, 15", "first block of a wave pair: physical block 32*w + i")
    a(f"s_lshl_b32 s{sWb}, s{sWl}, 15")
    a(f"s_addk_i32 s{sWb}, {KB}")
    a(f"s_mov_b32 m0, s{sWb}")
    a(f"s_mov_b32 s{sK+2}, {KV_BYTES}")
    a(f"s_mov_b32 s{sK+3}, 0x20000")
    a(f"s_cmp_lt_u32 s{sW}, 4")
    a("s_waitcnt lgkmcnt(0)")
    a("s_cbranch_scc1 L_notable")
    a(f"global_load_dwordx4 v[{vTb}:{vTb+3}], v{vA}, s[10:11] offset:-4096")
    a(f"global_load_dwordx4 v[{vTb+4}:{vTb+7}], v{vA}, s[10:11]")
    a(f"s_load_dwordx4 s[{sN}:{sN+3}], s[12:13], 0")
    a.label("L_notable")
    a("s_barrier")
    a("s_cbranch_scc0 L_cmain")

    if STAMP and not LITE:
        a(f"s_memrealtime s[{sSt}:{sSt+1}]")
    k_load(0, 0)
    for q in range(1, 4):
        a(f"v_xor_b32 v{vKs+q}, {64*q}, v{vKs}")
        a(f"v_add_u32 v{vKs+q}, {q*(8192-1024)}, v{vKs+q}")
        k_load(0, q)
    a("s_setprio 1")
    a(f"s_add_u32 s{sP+1}, s{sP}, {128*32768}", "second static block: 32*(w+4) + i")
    a(f"s_mov_b32 s{sV}, s8")
    a(f"s_mov_b32 s{sV+1}, s9")
    a(f"s_mov_b32 s{sV+3}, s{sK+3}")
    a(f"s_mov_b32 s{sR}, s{sK+2}")
    a(f"s_mov_b32 s{sR+1}, s{sK+2}")
    a(f"s_mov_b32 s{sRnd}, 0")
    a(f"v_lshlrev_b32 v{vWo}, 13, v{vG}")
    a(f"v_lshl_add_u32 v{vWo}, v{vN}, 4, v{vWo}")
    a(f"v_add_u32 v{vVo0}, s{sT+3}, v{vWo}")
    a(f"v_add_u32 v{vVo1}, 4096, v{vVo0}")
    if WF:
        a(f"s_lshr_b32 s{sT}, {SLOW}, s{sH}")
        a(f"s_bitcmp0_b32 s{sT}, 0")
        a(f"s_cselect_b64 s[{sM1}:{sM1+1}], -1, 0")
    a.label("L_vround")
    def vcc_mode():
        if WF:
            a(f"s_mov_b64 vcc, s[{sM1}:{sM1+1}]")
    vcc_mode()

    def perm1(pr, idx):
        t, p = pr >> 2, pr & 3
        vt = vVt + 32 * (t % NTB)
        r0 = vV + 32 * (t & 1) + 8 * p
        w = idx >> 1
        a(f"v_perm_b32 v{vt + 4*idx + p}, v{r0+4+w}, v{r0+w}, s{sSelHi if idx & 1 else sSelLo}")
    def mfma1(t, j):
        vt = vVt + 32 * (t % NTB)
        D = f"v[{vAcc+4*j}:{vAcc+4*j+3}]"
        a(f"v_mfma_f32_16x16x32_bf16 {D}, v[{vt+4*j}:{vt+4*j+3}], v[{vP+4*t}:{vP+4*t+3}], {D}")
    def p_read():
        a(f"ds_read_b32 v{vT+2}, v{vZ} offset:{C2}")
        for t in range(4):
            a(f"ds_read_b128 v[{vP+4*t}:{vP+4*t+3}], v{vPa} offset:{t*1024}")
        a(f"ds_read_b32 v{vF}, v{vZ} offset:{FLG}")
        a(f"ds_read_b32 v{vT}, v{vPa} offset:{AOFF - POFF}")
    def fetch_p():
        tick(13)
        a("s_waitcnt lgkmcnt(0)")
        a(f"v_cmp_gt_u32 vcc, s{sExp}, v{vT+2}")
        a("s_cbranch_vccnz L_pagain")
        a.label("L_pok")
        a(f"s_cmp_lg_u32 s{sRnd}, 0")
        a(f"v_readfirstlane_b32 s{sMode}, v{vF}")
        a("s_cbranch_scc1 L_resc")
        a.label("L_noresc")
        vcc_mode()
        tick(5)
    seq = [("K", k, q) for k in (0, 1) for q in range(4)] + [("V", k, q) for k in (0, 1) for q in range(4)]
    seq += [("K", k, q) for k in range(2, 8) for q in range(4)] + [("V", k, q) for k in range(2, 8) for q in range(4)]
    pos = {x: i for i, x in enumerate(seq)}
    st = {"pairs": 0, "tiles": 0, "p": False, "kl": 0, "list": False, "popped": 2, "init": False}
    def pair_done_at(pr):
        return pos[("V", pr >> 1, 2 * (pr & 1) + 1)]
    def retire(complete, final=False):
        while st["init"] and st["kl"] < 8 and pos[("K", st["kl"], 3)] <= complete:
            a(f"v_add_u32 v{vSig}, 1, v{vSig}")
            a(f"ds_write_b32 v{vSa}, v{vSig}", "K block landed")
            st["kl"] += 1
        n = 0
        while st["list"] and st["pairs"] < 15 and pair_done_at(st["pairs"]) <= complete and (final or n < 1):
            pr = st["pairs"]; t = pr >> 2
            if t - st["tiles"] >= NTB:
                assert st["p"]
                for j in range(8):
                    mfma1(st["tiles"], j)
                st["tiles"] += 1
            if pr < 4:
                a(f"s_bitcmp1_b32 s{sBad}, {4*(pr>>1)}")
                a(f"s_cbranch_scc1 L_vbad{pr}")
                a.label(f"L_vgood{pr}")
            for idx in range(8):
                perm1(pr, idx)
            st["pairs"] += 1; n += 1
        if n == 0 or final:
            m = 0
            while st["p"] and st["tiles"] < (st["pairs"] >> 2) and (final or m < 1):
                for j in range(8):
                    mfma1(st["tiles"], j)
                st["tiles"] += 1; m += 1
    best = -1
    for i, (kind, k, q) in enumerate(seq):
        if i < 4:
            continue
        W = L
        if WP and i >= L:
            W = int(WP[(i // WPD) % len(WP)], 16)
        if q == 0:
            assert k < st["popped"]
            if kind == "K":
                a(f"s_add_u32 m0, s{sWb}, {k*4096}")
                a(f"s_mov_b32 s{sK+2}, s{sR+k}")
            else:
                a(f"s_mov_b32 s{sV+2}, s{sR+k}")
        if i >= L:
            a(f"s_waitcnt vmcnt({W-1})")
            best = max(best, i - W)
        if WF:
            Wf = int(WF[(i // WPD) % len(WF)], 16)
            if Wf < W and i >= Wf and st["init"]:
                a(f"s_cbranch_vccz L_nw{i}")
                a(f"s_waitcnt vmcnt({Wf-1})")
                a.label(f"L_nw{i}")
        if kind == "K":
            k_load(k, q)
        else:
            assert k < 4 or st["pairs"] > 2 * (k - 4) + (q >> 1), (i, st)
            v_load(k, q)
        if i == L:
            tick(2)
        if i == min(L - 1, IL - 2):
            a.c("set-up work, hidden behind the first loads")
            a(f"s_cmp_lg_u32 s{sRnd}, 0")
            a("s_cbranch_scc1 L_vinit")
            first_tick()
            if STAMP and not LITE:
                a("s_waitcnt lgkmcnt(0)")
                a(f"v_writelane_b32 v{vX}, s{sSt}, 9")
                a(f"v_writelane_b32 v{vX+1}, s{sSt+1}, 9")
            common_init()
            a(f"v_mov_b32 v{vSig}, 0")
            a(f"v_lshrrev_b32 v{vSa}, 2, v{vA}")
            a(f"v_add_u32 v{vSa}, {KL}, v{vSa}")
            a(f"s_mov_b32 s{sSelLo}, 0x05040100")
            a(f"s_mov_b32 s{sSelHi}, 0x07060302")
            a(f"v_mul_u32_u24 v{vOw}, {RS}, v{vN}")
            a(f"v_lshl_add_u32 v{vOw}, v{vG}, 7, v{vOw}")
            a(f"v_add_u32 v{vOw}, s{sWb}, v{vOw}")
            a(f"s_mul_i32 s{sT}, s{sWl}, {2*RS}")
            a(f"s_addk_i32 s{sT}, {KB}")
            a(f"v_lshrrev_b32 v{vOr}, 1, v{vG}")
            a(f"v_lshl_add_u32 v{vOr}, v{vOr}, 4, v{vL16}")
            a(f"v_add_u32 v{vOr}, s{sT}, v{vOr}")
            a(f"v_add_u32 v{vOr2}, 0x10000, v{vOr}")
            a(f"s_lshl_b32 s{sT}, s{sH}, 3")
            a(f"s_add_u32 s{sT}, s{sT}, s{sWl}")
            a(f"s_lshl_b32 s{sT}, s{sT}, 15")
            a(f"s_lshl_b32 s{sT+1}, s{sI}, 8")
            a(f"s_add_u32 s{sT}, s{sT}, s{sT+1}")
            a(f"v_add_u32 v{vWo}, s{sT}, v{vWo}")
            for r in range(32):
                a(f"v_mov_b32 v{vAcc+r}, 0")
            a(f"s_mov_b32 s{sT0}, 0x07060500")
            a(f"s_mov_b32 s{sT3}, 0x07060501")
            a(f"s_mov_b32 s{sO1}, {4*32768}")
            a.label("L_vinit")
            st["init"] = True
        if i == IL - 1:
            list_read()
        elif i == IL:
            a(f"s_cmp_lg_u32 s{sRnd}, 0")
            a("s_cbranch_scc1 L_vlist")
            tick(14)
            get_list("L_sl")
            a(f"s_add_u32 s{sEp}, s{sEp}, 1")
            make_tag(vTag, vN, vT + 4)
            tick(3)
            vcc_mode()
            a.label("L_vlist")
            st["list"] = True
        elif st["list"] and st["popped"] < 8 and (i + 2 >= pos[("K", st["popped"], 0)] or q == 1):
            pop(st["popped"]); st["popped"] += 1
        if i == 39:
            tick(4)
        if i == IS:
            signal(C4, vT + 3)
        if i == IP:
            fetch_p(); st["p"] = True
        elif i != IL:
            retire(best)
        if i == IP - 1:
            p_read()
    tick(15)
    a(f"v_mov_b32 v{vT+1}, 1")
    retire(best, final=True)
    while st["pairs"] < 15:
        c = pair_done_at(st["pairs"])
        a(f"s_waitcnt vmcnt({63 - c})")
        if IS == 100 + (63 - c):
            signal(C4, vT + 3); st["sig"] = True
        retire(c, final=True)
    assert st["kl"] == 8 and st["tiles"] == 3
    if IS == 101:
        a("s_waitcnt vmcnt(1)")
        signal(C4, vT + 3); st["sig"] = True
    assert IS < 64 or st.get("sig")
    a("s_waitcnt vmcnt(0)")
    def owrite(j):
        a(f"ds_write_b128 v{vOw}, v[{vAcc+4*j}:{vAcc+4*j+3}] offset:{j*16}")
    for op in "p0 p1 p2 p3 M0 M1 p4 p5 M2 M3 p6 p7 M4 M5 W0 M6 W1 M7 W2 W3 c W4 W5 n W6 n W7".split():
        if op[0] == "p":
            perm1(15, int(op[1]))
        elif op[0] == "M":
            mfma1(3, int(op[1]))
        elif op[0] == "W":
            owrite(int(op[1]))
        elif op == "c":
            a(f"s_cmp_gt_u32 s{sMore}, 24")
        else:
            a("s_nop 0")
    a("s_cbranch_scc1 L_vmore")
    R0 = vV
    a("s_mov_b64 exec, 1")
    a(f"ds_add_rtn_u32 v{vT+1}, v{vZ}, v{vT+1} offset:{C3}")
    tick(6)
    a("s_waitcnt lgkmcnt(0)")
    a(f"v_cmp_eq_u32 vcc, 3, v{vT+1}")
    a("s_cbranch_vccnz L_go")
    spin(C3, vT + 1, "L_s3", "4")
    a.label("L_go")
    a("s_mov_b64 exec, -1")
    tick(7)
    for hh in range(2):
        for w in range(4):
            a(f"ds_read_b128 v[{R0+16*hh+4*w}:{R0+16*hh+4*w+3}], v{vOr if w < 2 else vOr2} offset:{(w&1)*32768 + hh*8*RS}")
    a(f"s_bitcmp1_b32 s{sMode}, 0")
    a("s_cbranch_scc1 L_slowo")
    def bsum(sfx):
        for hh in range(2):
            R = R0 + 16 * hh
            a(f"s_waitcnt lgkmcnt({6 - 4*hh})")
            a(f"v_pk_add_f32 v[{R}:{R+1}], v[{R}:{R+1}], v[{R+4}:{R+5}]")
            a(f"v_pk_add_f32 v[{R+2}:{R+3}], v[{R+2}:{R+3}], v[{R+6}:{R+7}]")
            a(f"s_waitcnt lgkmcnt({4 - 4*hh})")
            a(f"v_pk_add_f32 v[{R+8}:{R+9}], v[{R+8}:{R+9}], v[{R+12}:{R+13}]")
            a(f"v_pk_add_f32 v[{R+10}:{R+11}], v[{R+10}:{R+11}], v[{R+14}:{R+15}]")
            a(f"v_pk_add_f32 v[{R}:{R+1}], v[{R}:{R+1}], v[{R+8}:{R+9}]")
            a(f"v_pk_add_f32 v[{R+2}:{R+3}], v[{R+2}:{R+3}], v[{R+10}:{R+11}]")
            a(f"v_perm_b32 v{R}, v{R}, v{vTag}, s{sT0}")
            a(f"v_perm_b32 v{R+3}, v{R+3}, v{vTag}, s{sT3}")
            a(f"buffer_store_dwordx4 v[{R}:{R+3}], v{vWo}, s[{sWS}:{sWS+3}], {'0' if hh == 0 else 's%d' % sO1} offen {sfx}")
    bsum("")
    tick(8)
    a("s_branch L_fin" if STAMP else "s_endpgm")

    a.label("L_cmain")
    first_tick()
    a(f"v_mov_b32 v{vZ}, 0")
    a(f"v_lshrrev_b32 v{vT+8}, 2, v{vA}")
    a(f"v_and_b32 v{vKl}, 0x3ff, v{vT+8}")
    a(f"v_add_u32 v{vKl}, {KL}, v{vKl}")
    a(f"v_and_b32 v{vT+8}, 0x1fc, v{vT+8}", "first of this thread's four table columns")
    a(f"s_lshr_b32 s{sT}, s{sWl}, 1")
    a(f"s_lshl_b32 s{sT}, s{sT}, 2")
    a(f"v_mov_b32 v{vT+7}, s{sT}")
    a("s_waitcnt lgkmcnt(0)")
    tick(1)
    for b in range(4):
        a(f"s_min_i32 s{sT}, s{sN+b}, 0x2000")
        a(f"s_cmp_lt_i32 s{sN+b}, 1")
        a(f"s_cselect_b32 s{sN+b}, 0x2000, s{sT}", "context length clamped to 1..8192 (<= 0: all positions, equal scores)")
        a(f"s_cselect_b32 s{sT}, {hex(0x000f000f << (4*b))}, 0")
        if b == 0:
            a(f"s_mov_b32 s{sM0}, s{sT}")
        else:
            a(f"s_or_b32 s{sM0}, s{sM0}, s{sT}")
    a.c("increment per (sequence, column): 1 full block, 0x10000 partial last block, 0 beyond the context")
    for hh in range(2):
        a(f"s_cmp_lt_u32 s{sWl}, 2")
        a(f"s_cselect_b32 s{sT}, s{sN+2*hh}, s{sN+2*hh+1}")
        a(f"s_lshr_b32 s{sT+1}, s{sT}, 4")
        a(f"v_sub_u32 v{vT+4}, s{sT+1}, v{vT+8}")
        a(f"s_and_b32 s{sT}, s{sT}, 15")
        a(f"s_cselect_b32 s{sT}, 0x10000, 0")
        a(f"v_mov_b32 v{vT+5}, s{sT}")
        for e in range(4):
            a(f"v_cmp_eq_i32 s[{sCm+2*e}:{sCm+2*e+1}], {e}, v{vT+4}")
        for e in range(4):
            a(f"v_cmp_lt_i32 s[{sRm+2*e}:{sRm+2*e+1}], {e}, v{vT+4}")
        for e in range(4):
            a(f"v_cndmask_b32 v{vInc+4*hh+e}, 0, v{vT+5}, s[{sCm+2*e}:{sCm+2*e+1}]")
        for e in range(4):
            a(f"v_cndmask_b32 v{vInc+4*hh+e}, v{vInc+4*hh+e}, 1, s[{sRm+2*e}:{sRm+2*e+1}]")
    a(f"s_movk_i32 s{sT+2}, 0x3f0")
    a.c("inverse page map restricted to this workgroup's physical blocks")
    for hh in range(2):
        a(f"s_waitcnt vmcnt({1 - hh})")
        if hh == 0:
            tick(2)
        for e in range(4):
            p = vTb + 4 * hh + e
            t = vT + 4 + (e & 1)
            a(f"v_lshrrev_b32 v{t}, 8, v{p}")
            a(f"v_lshl_add_u32 v{t}, v{t}, 3, v{p}")
            a(f"v_lshrrev_b32 v{p}, 1, v{p}")
            a(f"v_and_b32 v{t}, 31, v{t}")
            a(f"v_and_or_b32 v{p}, v{p}, s{sT+2}, v{vT+7}")
            a(f"v_cmpx_eq_u32 vcc, s{sI}, v{t}")
            a(f"ds_add_u32 v{p}, v{vInc+4*hh+e} offset:{INV + 8*hh}")
            a("s_mov_b64 exec, -1")
    signal(C0, vT + 4)
    tick(14)
    a(f"s_mov_b32 s{sQ}, s4")
    a(f"s_mov_b32 s{sQ+1}, s5")
    a(f"s_mov_b32 s{sQ+2}, 32768")
    a(f"s_mov_b32 s{sQ+3}, 0x20000")
    a(f"s_lshl_b32 s{sT+1}, s{sWl}, 6")
    a(f"v_xor_b32 v{vT+6}, s{sT+1}, v{vX16}")
    a(f"v_lshl_add_u32 v{vT+6}, v{vG}, 8, v{vT+6}")
    a(f"s_lshl_b32 s{sT+1}, s{sH}, 10")
    a(f"s_lshl_b32 s{sT+2}, s{sWl}, 13")
    a(f"s_add_u32 s{sT+1}, s{sT+1}, s{sT+2}")
    a(f"s_lshl_b32 s{sT+2}, s{sWl}, 10")
    a(f"s_add_u32 m0, s{sT+2}, {QL}")
    common_init()
    a(f"buffer_load_dwordx4 v{vT+6}, s[{sQ}:{sQ+3}], s{sT+1} offen lds", "four query rows -> LDS")
    if CW:
        a(f"v_add_u32 v{vT+5}, {4096+104}, v{vA}")
        a(f"v_min_u32 v{vT+5}, (L_codeend - L_pc - 4), v{vT+5}")
        a(f"global_load_dword v{FA+7}, v{vT+5}, s[96:97]", "rest of the kernel text -> L2")
    a(f"v_lshrrev_b32 v{vLane}, 4, v{vL16}")
    a(f"v_lshlrev_b32 v{vT+4}, 8, v{vN}")
    a(f"v_add_u32 v{vT+4}, s{sWb}, v{vT+4}")
    for j in range(4):
        if j == 0:
            a(f"v_add_u32 v{vKr}, v{vX16}, v{vT+4}")
        else:
            a(f"v_xor_b32 v{vKr+j}, {64*j}, v{vKr}")
    a(f"v_and_b32 v{vB4}, 12, v{vN}")
    a(f"v_mov_b32 v{vM}, {NEG}")
    a(f"v_mov_b32 v{vL}, 0")
    a(f"v_lshlrev_b32 v{vMx}, 4, v{vN}")
    a(f"v_add_u32 v{vMx}, {MX}, v{vMx}")
    a(f"s_lshl_b32 s{sT}, s{sWl}, 2")
    a(f"v_add_u32 v{vMw}, s{sT}, v{vMx}")
    a(f"s_mov_b32 s{sM0+1}, s{sM0}")
    a(f"v_mov_b32 v{vC}, 0x3e0293ee", "log2(e)/sqrt(128)")
    a(f"v_cndmask_b32 v{vC}, v{vC}, 0, s[{sM0}:{sM0+1}]")
    a(f"s_and_b32 s{sT}, s{sN}, 15")
    for b in range(1, 4):
        a(f"s_and_b32 s{sT+1}, s{sN+b}, 15")
        a(f"s_lshl_b32 s{sT+1}, s{sT+1}, {4*b}")
        a(f"s_or_b32 s{sT}, s{sT}, s{sT+1}")
    a(f"v_lshrrev_b32 v{vT+4}, v{vB4}, s{sT}")
    a(f"v_and_b32 v{vT+4}, 15, v{vT+4}")
    a(f"v_lshlrev_b32 v{vT+5}, 2, v{vG}")
    a(f"v_sub_u32 v{vT+4}, v{vT+4}, v{vT+5}")
    for r in range(4):
        a(f"v_cmp_lt_i32 s[{sRm+2*r}:{sRm+2*r+1}], {r}, v{vT+4}", "token 4g+r inside the partial last block" if r == 0 else None)
    a(f"v_and_b32 v{vOa}, 0x1f0, v{vL16}", "arrival granule of workgroup lane&31")
    a(f"s_mov_b32 s{sKb}, 1")
    list_read()
    get_list("L_cl")
    tick(3)
    a(f"s_waitcnt vmcnt({1 if CW else 0})", "Q rows have landed")
    signal(CQ, vT + 4)
    a(f"s_add_u32 s{sEp}, s{sEp}, 1", "hand-off epoch of this launch")
    a(f"s_not_b32 s{sNEp}, s{sEp}")
    a(f"s_getreg_b32 s{sXcc}, hwreg(HW_REG_XCC_ID, 0, 4)")
    a(f"s_lshl_b32 s{sAr}, s{sH}, {5 + ARS}")
    a(f"s_add_u32 s{sAr}, s{sAr}, {WS_AR}")
    a(f"s_cmp_lg_u32 s{sW}, 4")
    a("s_cbranch_scc1 L_noarr")
    a.c("arrival mark of this workgroup")
    a(f"s_lshl_b32 s{sT}, s{sI}, {ARS}")
    a(f"v_mov_b32 v{vT}, s{sT}")
    a(f"v_mov_b32 v{vS+16}, s{sEp}")
    a(f"v_mov_b32 v{vS+17}, s{sNEp}")
    a(f"v_mov_b32 v{vS+18}, s{sXcc}")
    a("s_mov_b64 exec, 1")
    a(f"buffer_store_dwordx3 v[{vS+16}:{vS+18}], v{vT}, s[{sWS}:{sWS+3}], s{sAr} offen sc1")
    a("s_mov_b64 exec, -1")
    a.label("L_noarr")
    spin(CQ, vT + 4, "L_sq", "4")

    def finish(b):
        if b < 2:
            a(f"s_bitcmp1_b32 s{sBad}, {4*b}")
            a(f"s_cbranch_scc0 L_good{b}")
            for r in range(4):
                a(f"v_mov_b32 v{vS+4*b+r}, 0")
            a.label(f"L_good{b}")
        a(f"v_and_b32 v{vT+4}, 0xffff, v{vW+b}")
        a(f"v_lshrrev_b32 v{vT+5}, 16, v{vW+b}")
        a(f"v_add_u32 v{vT+5}, v{vT+5}, v{vT+4}")
        a(f"v_cvt_f32_u32 v{vT+4}, v{vT+4}")
        a(f"v_cvt_f32_u32 v{vT+5}, v{vT+5}")
        a(f"v_log_f32 v{vT+4}, v{vT+4}")
        a(f"v_log_f32 v{vT+5}, v{vT+5}")
        a("s_nop 0")
        for r in range(4):
            a(f"v_cndmask_b32 v{vT+6+r}, v{vT+4}, v{vT+5}, s[{sRm+2*r}:{sRm+2*r+1}]")
        for r in range(4):
            a(f"v_fma_f32 v{vS+4*b+r}, v{vS+4*b+r}, v{vC}, v{vT+6+r}")
        src = vM if b == 0 else vT
        a(f"v_max3_f32 v{vT}, v{src}, v{vS+4*b}, v{vS+4*b+1}")
        a(f"v_max3_f32 v{vT}, v{vT}, v{vS+4*b+2}, v{vS+4*b+3}")
    def qk(b):
        f = vKf + 16 * (b & 1)
        for j in range(4):
            a(f"ds_read_b128 v[{f+4*j}:{f+4*j+3}], v{vKr+j} offset:{b*4096}")
        for j in range(4):
            c = "0" if j == 0 else f"v[{vS+4*b}:{vS+4*b+3}]"
            a(f"s_waitcnt lgkmcnt({3-j})")
            a(f"v_mfma_f32_16x16x32_bf16 v[{vS+4*b}:{vS+4*b+3}], v[{f+4*j}:{f+4*j+3}], v[{vQ+4*j}:{vQ+4*j+3}], {c}")
        if b < 2:
            a("s_nop 5")
        finish(b)
    def wread(k):
        a(f"v_add_u32 v{vW+k}, s{sLc}, v{vB4}")
        a(f"ds_read_b32 v{vW+k}, v{vW+k}")

    a(f"s_lshl_b32 s{sLc}, s{sWl}, 4")
    a(f"v_add_u32 v{vW}, s{sLc}, v{vB4}")
    a(f"ds_read_b32 v{vW+1}, v{vW} offset:64")
    a(f"ds_read_b32 v{vW}, v{vW}")
    a(f"s_sub_u32 s{sT}, s{sWb}, {QL}")
    for j in range(4):
        a(f"v_subrev_u32 v{vT+j}, s{sT}, v{vKr+j}")
        a(f"ds_read_b128 v[{vQ+4*j}:{vQ+4*j+3}], v{vT+j}")
    a.label("L_kround")
    for k in range(2, 8):
        pop_lc()
        wread(k)
    a.c("scores: scale, add log2(multiplicity) of the (block, sequence) pair (-inf when masked), running max")
    for b in range(8):
        a.label(f"L_kw{b}")
        a(f"ds_read_b32 v{vT+1}, v{vKl}")
        a("s_waitcnt lgkmcnt(0)")
        a(f"v_cmp_gt_u32 vcc, s{sKb}, v{vT+1}")
        a(f"s_cbranch_vccnz L_kw{b}")
        a(f"s_add_u32 s{sKb}, s{sKb}, 1")
        qk(b)
        if b == CHKB:
            a(f"s_cmp_lg_u32 s{sW}, 4")
            a("s_cbranch_scc1 L_nochk")
            a("s_waitcnt vmcnt(0)")
            a(f"buffer_load_dwordx3 v[{FO}:{FO+2}], v{vOa}, s[{sWS}:{sWS+3}], s{sAr} offen sc1")
            a.label("L_nochk")
    tick(4)
    xreduce("v_max_f32", vT, vT + 1)
    a(f"ds_write_b32 v{vMw}, v{vT}")
    signal(C1, vT + 1)
    tick(13)
    a.c("wave 4 decides how this workgroup hands its partial results over")
    a.c("mode word: bit0 = write-through stores, bits 8..15 first slice, bits 16..23 end slice")
    a(f"s_cmp_lg_u32 s{sW}, 4")
    a("s_cbranch_scc1 L_decided")
    a(f"s_lshl_b32 s{sMode}, s{sI}, 8")
    a(f"s_add_u32 s{sT}, s{sI}, 1")
    a(f"s_lshl_b32 s{sT}, s{sT}, 16")
    a(f"s_or_b32 s{sMode}, s{sMode}, s{sT}")
    a(f"s_mov_b32 s{sSpin}, 0")
    a.label("L_look")
    a("s_waitcnt vmcnt(0)")
    if FORCE == "abandon":
        a(f"s_bitcmp1_b32 s{sI}, 0")
        a(f"s_cselect_b32 s{sT}, 0, -1")
        a(f"v_and_b32 v{FO}, s{sT}, v{FO}")
        a(f"v_and_b32 v{FO+1}, s{sT}, v{FO+1}")
    if FORCE == "all":
        a(f"v_or_b32 v{FO+2}, 0x100, v{FO+2}")
    a(f"v_cmp_ne_u32 vcc, s{sEp}, v{FO}")
    a(f"v_cmp_ne_u32 s[{sCm}:{sCm+1}], s{sNEp}, v{FO+1}")
    a(f"v_cmp_ne_u32 s[{sCm+2}:{sCm+3}], s{sXcc}, v{FO+2}")
    a(f"v_cmp_le_u32 s[{sCm+4}:{sCm+5}], 64, v{FO+2}")
    a(f"s_or_b64 vcc, vcc, s[{sCm}:{sCm+1}]")
    a(f"s_or_b64 s[{sCm+2}:{sCm+3}], s[{sCm+2}:{sCm+3}], vcc")
    a("s_cbranch_scc1 L_notfast")
    a.label("L_modeset")
    a(f"v_mov_b32 v{vT+1}, s{sMode}")
    a(f"ds_write_b32 v{vZ}, v{vT+1} offset:{FLG}")
    a.label("L_decided")
    spin(C1, vT + 1, "L_s1", f"s{sExp}")
    a(f"ds_read_b128 v[{vT+4}:{vT+7}], v{vMx}")
    a("s_waitcnt lgkmcnt(0)")
    a(f"v_max3_f32 v{vT}, v{vT+4}, v{vT+5}, v{vT+6}")
    a(f"v_max_f32 v{vT}, v{vT}, v{vT+7}", "workgroup-wide row maximum")
    a(f"v_sub_f32 v{vT+2}, v{vM}, v{vT}")
    a(f"v_exp_f32 v{vT+2}, v{vT+2}")
    a(f"v_mov_b32 v{vM}, v{vT}")
    for e in range(0, 32, 2):
        a(f"v_pk_add_f32 v[{vS+e}:{vS+e+1}], v[{vS+e}:{vS+e+1}], v[{vT}:{vT+1}] op_sel_hi:[1,0] neg_lo:[0,1] neg_hi:[0,1]")
    a(f"v_mul_f32 v{vL}, v{vL}, v{vT+2}")
    a(f"ds_write_b32 v{vPa}, v{vT+2} offset:{AOFF - POFF}")
    for t in range(4):
        for e in range(8):
            a(f"v_exp_f32 v{vS+8*t+e}, v{vS+8*t+e}")
        for e in range(4):
            a(f"v_cvt_pk_bf16_f32 v{vP+4*t+e}, v{vS+8*t+2*e}, v{vS+8*t+2*e+1}")
        a(f"ds_write_b128 v{vPa}, v[{vP+4*t}:{vP+4*t+3}] offset:{t*1024}")
    for stp in (16, 8, 4, 2):
        for e in range(0, stp, 2):
            a(f"v_pk_add_f32 v[{vS+e}:{vS+e+1}], v[{vS+e}:{vS+e+1}], v[{vS+e+stp}:{vS+e+stp+1}]")
    a(f"v_add_f32 v{vS}, v{vS}, v{vS+1}")
    a(f"v_add_f32 v{vL}, v{vL}, v{vS}")
    a(f"v_mov_b32 v{vT}, v{vL}")
    xreduce("v_add_f32", vT, vT + 1)
    a(f"ds_write_b32 v{vMw}, v{vT} offset:{LS - MX}")
    signal(C2, vT + 1)
    tick(5)
    a(f"s_cmp_gt_u32 s{sMore}, 24")
    a("s_cbranch_scc1 L_kmore")

    a(f"s_lshl_b32 s{sT}, s{sH}, 13")
    a(f"s_lshl_b32 s{sT+1}, s{sI}, 4")
    a(f"s_add_u32 s{sT}, s{sT}, s{sT+1}")
    a(f"s_add_u32 s{sT}, s{sT}, {WS_ML}")
    a(f"v_lshlrev_b32 v{vT+4}, 9, v{vN}")
    a(f"v_add_u32 v{vT+4}, s{sT}, v{vT+4}", "own (max, sum) granule of row n")
    a(f"v_mov_b32 v{vS}, v{vM}")
    a(f"v_mov_b32 v{vS+2}, s{sEp}")
    a(f"v_mov_b32 v{vS+3}, s{sNEp}")
    spin(C2, vT + 1, "L_s2", f"s{sExp}")
    a(f"ds_read_b32 v{vT}, v{vZ} offset:{FLG}")
    a(f"ds_read_b128 v[{vS+4}:{vS+7}], v{vMx} offset:{LS - MX}")
    a("s_waitcnt lgkmcnt(0)")
    a(f"v_readfirstlane_b32 s{sMode}, v{vT}")
    a(f"v_add_f32 v{vS+4}, v{vS+4}, v{vS+5}")
    a(f"v_add_f32 v{vS+6}, v{vS+6}, v{vS+7}")
    a(f"v_add_f32 v{vS+1}, v{vS+4}, v{vS+6}")
    a(f"s_lshl_b32 s{sT}, s{sWl}, 2")
    a(f"s_lshl_b64 exec, 15, s{sT}", "each compute wave publishes four rows")
    a(f"s_bitcmp1_b32 s{sMode}, 0")
    a("s_cbranch_scc1 L_mlslow")
    a(f"buffer_store_dwordx4 v[{vS}:{vS+3}], v{vT+4}, s[{sWS}:{sWS+3}], 0 offen")
    a.label("L_mldone")
    a("s_mov_b64 exec, -1")
    a(f"v_lshrrev_b32 v{vT}, 2, v{vLane}")
    a(f"v_lshlrev_b32 v{vMa}, 4, v{vT}", "c*16")
    a(f"v_and_b32 v{vT+1}, 3, v{vLane}")
    a(f"v_add_u32 v{vT+2}, s{sT}, v{vT+1}", "unit u = 4*w + (lane&3)")
    a(f"v_lshlrev_b32 v{vOa}, 8, v{vT}")
    a(f"v_lshl_add_u32 v{vOa}, v{vT+2}, 4, v{vOa}", "c*256 + u*16")
    make_tag(vTagC, vT + 2, vT + 3)
    a(f"s_mov_b32 s{sT3}, s{sT}")
    a(f"s_movk_i32 s{sT0}, 0xff00")
    a(f"s_lshr_b32 s{sT}, s{sWl}, 1")
    a(f"s_lshl_b32 s{sT}, s{sT}, 6")
    a(f"s_and_b32 s{sT+1}, s{sWl}, 1")
    a(f"s_lshl_b32 s{sT+1}, s{sT+1}, 3")
    a(f"s_add_u32 s{sT}, s{sT}, s{sT+1}")
    a(f"v_lshl_add_u32 v{vOut}, v{vT+1}, 1, s{sT}")
    a(f"v_and_b32 v{vT}, 1, v{vG}")
    a(f"v_lshl_add_u32 v{vOut}, v{vT}, 5, v{vOut}")
    a(f"v_lshrrev_b32 v{vT}, 1, v{vG}")
    a(f"v_lshl_add_u32 v{vOut}, v{vT}, 4, v{vOut}")
    a(f"s_mov_b32 s{sQ}, s14", "output descriptor (same size as q)")
    a(f"s_mov_b32 s{sQ+1}, s15")
    a(f"s_mov_b32 s{sSpin}, 0")
    a(f"s_bfe_u32 s{sLo}, s{sMode}, 0x80008")
    a(f"s_lshr_b32 s{sHi}, s{sMode}, 16")
    a(f"s_cmp_ge_u32 s{sLo}, s{sHi}")
    a("s_cbranch_scc1 L_fin")
    a.label("L_slice")
    a(f"s_lshl_b32 s{sT}, s{sH}, 5")
    a(f"s_add_u32 s{sT}, s{sT}, s{sLo}")
    a(f"s_lshl_b32 s{sO0}, s{sT}, 13")
    a(f"s_add_u32 s{sO1}, s{sO0}, 4096")
    a(f"s_lshr_b32 s{sMl}, s{sT}, 1")
    a(f"s_lshl_b32 s{sMl}, s{sMl}, 9")
    a(f"s_add_u32 s{sMl}, s{sMl}, {WS_ML}")
    a(f"s_lshr_b32 s{sOut}, s{sLo}, 3")
    a(f"s_lshl_b32 s{sOut}, s{sOut}, 13")
    a(f"s_and_b32 s{sT}, s{sLo}, 7")
    a(f"s_lshl_b32 s{sT}, s{sT}, 7")
    a(f"s_add_u32 s{sOut}, s{sOut}, s{sT}")
    a(f"s_lshl_b32 s{sT}, s{sH}, 10")
    a(f"s_add_u32 s{sOut}, s{sOut}, s{sT}")
    a(f"s_mov_b64 s[{sM0}:{sM0+1}], -1")
    a(f"s_mov_b64 s[{sM1}:{sM1+1}], -1")
    def o_masked():
        a(f"s_wqm_b64 exec, s[{sM0}:{sM0+1}]")
        a(f"buffer_load_dwordx4 v[{FO}:{FO+3}], v{vOa}, s[{sWS}:{sWS+3}], s{sO0} offen sc1")
        a(f"s_wqm_b64 exec, s[{sM1}:{sM1+1}]")
        a(f"buffer_load_dwordx4 v[{FO+4}:{FO+7}], v{vOa}, s[{sWS}:{sWS+3}], s{sO1} offen sc1")
        a("s_mov_b64 exec, -1")
    def o_check():
        a(f"v_perm_b32 v{vT+2}, v{FO+3}, v{FO}, s{sT3}")
        a(f"v_perm_b32 v{vT+3}, v{FO+7}, v{FO+4}, s{sT3}")
        a(f"v_cmp_ne_u32 s[{sM0}:{sM0+1}], v{vT+2}, v{vTagC}")
        a(f"v_cmp_ne_u32 s[{sM1}:{sM1+1}], v{vT+3}, v{vTagC}")
    def ml_loads():
        a(f"buffer_load_dwordx4 v[{FM}:{FM+3}], v{vMa}, s[{sWS}:{sWS+3}], s{sMl} offen sc1")
        a(f"buffer_load_dwordx4 v[{FM+4}:{FM+7}], v{vMa}, s[{sWS}:{sWS+3}], s{sMl} offen offset:256 sc1")
    MLMODE = opts.get("mlmode", "late")
    if MLMODE == "late":
        ml_loads()
        if opts.get("c4n", "4") != "4":
            a(f"s_sub_u32 s{sT}, s{sExp}, {4 - int(opts['c4n'])}")
            spin(C4, vT + 1, "L_s4", f"s{sT}")
        else:
            spin(C4, vT + 1, "L_s4", f"s{sExp}")
    a.c("poll the (max, sum) granules and the 64-byte pieces that do not carry this launch's tag yet")
    a.label("L_mlpoll")
    ml_loads()
    if MLMODE == "late":
        o_masked()
    a(f"s_add_u32 s{sSpin}, s{sSpin}, 1")
    a(f"s_cmp_ge_u32 s{sSpin}, 0x400000")
    a("s_cbranch_scc1 L_fin")
    a(f"s_waitcnt vmcnt({2 if MLMODE == 'late' else 0})")
    a(f"v_cmp_ne_u32 vcc, s{sEp}, v{FM+2}")
    a(f"v_cmp_ne_u32 s[{sCm}:{sCm+1}], s{sNEp}, v{FM+3}")
    a(f"v_cmp_ne_u32 s[{sCm+2}:{sCm+3}], s{sEp}, v{FM+6}")
    a(f"v_cmp_ne_u32 s[{sCm+4}:{sCm+5}], s{sNEp}, v{FM+7}")
    a(f"v_max_f32 v{vT}, v{FM}, v{FM+4}")
    a(f"s_or_b64 vcc, vcc, s[{sCm}:{sCm+1}]")
    a(f"s_or_b64 vcc, vcc, s[{sCm+2}:{sCm+3}]")
    a(f"s_or_b64 vcc, vcc, s[{sCm+4}:{sCm+5}]")
    if MLMODE == "late":
        a("s_cbranch_scc0 L_w")
        a("s_waitcnt vmcnt(0)")
        o_check()
        a("s_branch L_mlpoll")
        a.label("L_w")
    else:
        a("s_cbranch_scc1 L_mlpoll")
    a(f"v_max_f32_dpp v{vT}, v{vT}, v{vT} row_ror:4 {DPP}")
    a("s_nop 1")
    a(f"v_max_f32_dpp v{vT}, v{vT}, v{vT} row_ror:8 {DPP}")
    xreduce("v_max_f32", vT, vT + 1)
    a(f"v_sub_f32 v{FM}, v{FM}, v{vT}")
    a(f"v_sub_f32 v{FM+4}, v{FM+4}, v{vT}")
    a(f"v_exp_f32 v{FM}, v{FM}")
    a(f"v_exp_f32 v{FM+4}, v{FM+4}")
    a(f"v_mul_f32 v{vT}, v{FM}, v{FM+1}")
    a(f"v_fmac_f32 v{vT}, v{FM+4}, v{FM+5}")
    a("s_nop 1")
    a(f"v_add_f32_dpp v{vT}, v{vT}, v{vT} row_ror:4 {DPP}")
    a("s_nop 1")
    a(f"v_add_f32_dpp v{vT}, v{vT}, v{vT} row_ror:8 {DPP}")
    xreduce("v_add_f32", vT, vT + 1)
    a(f"v_rcp_f32 v{vT}, v{vT}")
    a("s_nop 0")
    a(f"v_mul_f32 v{FM}, v{FM}, v{vT}")
    a(f"v_mul_f32 v{FM+4}, v{FM+4}, v{vT}", "normalised weights of contributors c and 16+c")
    tick(9)
    if MLMODE == "late":
        a("s_branch L_owait")
    else:
        spin(C4, vT + 1, "L_s4", f"s{sExp}")
    a.label("L_opoll")
    o_masked()
    a(f"s_add_u32 s{sSpin}, s{sSpin}, 1")
    a(f"s_cmp_ge_u32 s{sSpin}, 0x400000")
    a("s_cbranch_scc1 L_fin")
    a.label("L_owait")
    a("s_waitcnt vmcnt(0)")
    o_check()
    a(f"v_and_b32 v{FA}, s{sT0}, v{FO}", "drop the tag bytes")
    a(f"v_and_b32 v{FA+3}, s{sT0}, v{FO+3}")
    a(f"s_or_b64 vcc, s[{sM0}:{sM0+1}], s[{sM1}:{sM1+1}]")
    a("s_cbranch_scc1 L_opoll")
    a(f"v_and_b32 v{FO+4}, s{sT0}, v{FO+4}")
    a(f"v_and_b32 v{FO+7}, s{sT0}, v{FO+7}")
    a(f"v_mul_f32 v{FA}, v{FA}, v{FM}")
    a(f"v_mul_f32 v{FA+1}, v{FO+1}, v{FM}")
    a(f"v_mul_f32 v{FA+2}, v{FO+2}, v{FM}")
    a(f"v_mul_f32 v{FA+3}, v{FA+3}, v{FM}")
    a(f"v_pk_fma_f32 v[{FA}:{FA+1}], v[{FO+4}:{FO+5}], v[{FM+4}:{FM+5}], v[{FA}:{FA+1}] op_sel_hi:[1,0,1]")
    a(f"v_pk_fma_f32 v[{FA+2}:{FA+3}], v[{FO+6}:{FO+7}], v[{FM+4}:{FM+5}], v[{FA+2}:{FA+3}] op_sel_hi:[1,0,1]")
    a(f"s_add_u32 s{sLo}, s{sLo}, 1")
    a(f"v_permlane32_swap_b32 v{FA}, v{FA+1}")
    a(f"v_permlane32_swap_b32 v{FA+2}, v{FA+3}")
    a(f"v_add_f32 v{FA}, v{FA}, v{FA+1}")
    a(f"v_add_f32 v{FA+2}, v{FA+2}, v{FA+3}")
    a("s_nop 1")
    a(f"v_permlane16_swap_b32 v{FA}, v{FA+2}")
    a(f"s_cmp_lt_u32 s{sHi}, 32")
    a(f"v_add_f32 v{FA}, v{FA}, v{FA+2}")
    a("s_nop 1")
    a(f"v_add_f32_dpp v{FA}, v{FA}, v{FA} row_ror:4 {DPP}")
    a("s_nop 1")
    a(f"v_add_f32_dpp v{FA}, v{FA}, v{FA} row_ror:8 {DPP}")
    a("s_mov_b32 exec_lo, 0x000f000f")
    a("s_mov_b32 exec_hi, 0x000f000f")
    a(f"v_cvt_pk_bf16_f32 v{FA}, v{FA}, v{FA}")
    a(f"buffer_store_short v{FA}, v{vOut}, s[{sQ}:{sQ+3}], s{sOut} offen {OPOL}")
    if STAMP:
        a("s_mov_b64 exec, -1")
        tick(10)
        a("s_cbranch_scc1 L_fin")
    else:
        a("s_cbranch_scc0 L_next")
        a("s_endpgm")
        a.label("L_next")
    a("s_mov_b64 exec, -1")
    a(f"s_cmp_lt_u32 s{sLo}, s{sHi}")
    a("s_cbranch_scc1 L_slice")
    a.c("every workgroup of this head has read the epoch word: advance it for the next launch")
    a(f"s_lshl_b32 s{sT}, s{sH}, 7")
    a(f"s_add_u32 s{sT}, s{sT}, {WS_EP}")
    a(f"v_mov_b32 v{vT}, s{sT}")
    a(f"v_mov_b32 v{vT+1}, s{sEp}")
    a("s_mov_b64 exec, 1")
    a(f"buffer_store_dword v{vT+1}, v{vT}, s[{sWS}:{sWS+3}], 0 offen")
    a.label("L_fin")
    if STAMP:
        a("s_mov_b64 exec, -1")
        a("s_waitcnt vmcnt(0)")
        tick(11)
        a("s_mov_b64 exec, 0xffff")
        a(f"s_lshl_b32 s{sSt}, s2, 3")
        a(f"s_add_u32 s{sSt}, s{sSt}, s{sW}")
        a(f"s_lshl_b32 s{sSt}, s{sSt}, 7")
        a(f"s_add_u32 s{sSt}, s{sSt}, {16<<20}")
        a(f"v_mbcnt_lo_u32_b32 v{vX+2}, -1, 0")
        a(f"v_lshlrev_b32 v{vX+2}, 3, v{vX+2}")
        a(f"v_add_u32 v{vX+2}, s{sSt}, v{vX+2}")
        a(f"v_cmp_ne_u32 vcc, 0, v{vX}")
        a("s_and_b64 exec, exec, vcc")
        a(f"buffer_store_dwordx2 v[{vX}:{vX+1}], v{vX+2}, s[{sWS}:{sWS+3}], 0 offen")
    a.label("L_end")
    a("s_endpgm")

    a.label("L_mlslow")
    a(f"buffer_store_dwordx4 v[{vS}:{vS+3}], v{vT+4}, s[{sWS}:{sWS+3}], 0 offen sc1")
    a("s_branch L_mldone")
    a.label("L_slowo")
    bsum("sc1")
    a("s_branch L_fin")
    a.label("L_notfast")
    a("s_cbranch_vccnz L_missing")
    a(f"s_or_b32 s{sMode}, s{sMode}, 1", "peers on another XCD: write-through hand-off")
    a(f"s_cmp_eq_u64 s[{sCm+4}:{sCm+5}], 0")
    a("s_cbranch_scc1 L_modeset")
    a(f"s_mov_b32 s{sMode}, 0x200001", "somebody left: finalise every slice")
    a("s_branch L_modeset")
    a.label("L_missing")
    a(f"s_add_u32 s{sSpin}, s{sSpin}, 1")
    a(f"s_cmp_ge_u32 s{sSpin}, 64")
    a("s_cbranch_scc1 L_leave")
    a(f"buffer_load_dwordx3 v[{FO}:{FO+2}], v{vOa}, s[{sWS}:{sWS+3}], s{sAr} offen sc1")
    a("s_branch L_look")
    a.label("L_leave")
    a.c("a workgroup of this head has not started yet: leave a mark, look again, then go or stay")
    a(f"s_lshl_b32 s{sT}, s{sI}, {ARS}")
    a(f"v_mov_b32 v{vT+1}, s{sT}")
    a(f"v_mov_b32 v{vT+4}, s{sEp}")
    a(f"v_mov_b32 v{vT+5}, s{sNEp}")
    a(f"v_mov_b32 v{vT+6}, 0x100")
    a("s_mov_b64 exec, 1")
    a(f"buffer_store_dwordx3 v[{vT+4}:{vT+6}], v{vT+1}, s[{sWS}:{sWS+3}], s{sAr} offen sc1")
    a("s_mov_b64 exec, -1")
    a("s_waitcnt vmcnt(0)")
    a(f"buffer_load_dwordx3 v[{FO}:{FO+2}], v{vOa}, s[{sWS}:{sWS+3}], s{sAr} offen sc1")
    a("s_waitcnt vmcnt(0)")
    a(f"v_cmp_ne_u32 vcc, s{sEp}, v{FO}")
    a(f"v_cmp_ne_u32 s[{sCm}:{sCm+1}], s{sNEp}, v{FO+1}")
    a("s_nop 0")
    a(f"s_or_b64 vcc, vcc, s[{sCm}:{sCm+1}]")
    a(f"s_cselect_b32 s{sMode}, 1, 0x200001")
    a("s_branch L_modeset")
    for pr in range(4):
        a.label(f"L_vbad{pr}")
        for r in range(8):
            a(f"v_mov_b32 v{vV+8*pr+r}, 0")
        a(f"s_branch L_vgood{pr}")
    a.label("L_pagain")
    p_read()
    a("s_waitcnt lgkmcnt(0)")
    a(f"v_cmp_gt_u32 vcc, s{sExp}, v{vT+2}")
    a("s_cbranch_vccnz L_pagain")
    a("s_branch L_pok")
    a.label("L_resc")
    for r in range(0, 32, 2):
        a(f"v_pk_mul_f32 v[{vAcc+r}:{vAcc+r+1}], v[{vAcc+r}:{vAcc+r+1}], v[{vT}:{vT+1}] op_sel_hi:[1,0]")
    a("s_nop 0")
    a("s_branch L_noresc")
    a.label("L_kmore")
    a("s_waitcnt lgkmcnt(0)")
    a("s_barrier", "second round (more than 32 referenced blocks): the streamers are done with this round's P")
    a(f"s_mov_b32 s{sMore}, 0")
    a(f"s_mov_b32 s{sBad}, 0")
    a(f"s_mov_b32 s{sExp}, 8")
    for k in range(2):
        pop_lc()
        wread(k)
    a("s_branch L_kround")
    a.label("L_vmore")
    a("s_waitcnt lgkmcnt(0)")
    a("s_barrier")
    a(f"s_mov_b32 s{sMore}, 0")
    a(f"s_mov_b32 s{sBad}, 0")
    a(f"s_mov_b32 s{sRnd}, 1")
    a(f"s_mov_b32 s{sExp}, 8")
    for k in range(2):
        pop(k)
    a(f"s_mov_b32 m0, s{sWb}")
    a(f"s_mov_b32 s{sK+2}, s{sR}")
    for q in range(4):
        k_load(0, q)
    a("s_branch L_vround")
    if CW:
        a.lines.append(".if (. - L_pc) < (8192 + 104)")
        a.lines.append(".fill ((8192 + 104 - (. - L_pc)) / 4), 4, 0xbf810000")
        a.lines.append(".endif")
        a.label("L_codeend")

    head = HEADER + f"""; @launch grid=(256,1,1) block=(512,1,1) lds={LDS_BYTES}
.amdgcn_target "amdgcn-amd-amdhsa--gfx950"
.text
.globl {NAME}_kernel
.p2align 8
.type {NAME}_kernel,@function
"""
    tail = f""".section .rodata,"a"
.p2align 6
.amdhsa_kernel {NAME}_kernel
  .amdhsa_next_free_vgpr {NVGPR}
  .amdhsa_next_free_sgpr 102
  .amdhsa_accum_offset {NVGPR}
  .amdhsa_group_segment_fixed_size 0
  .amdhsa_kernarg_size 64
  .amdhsa_user_sgpr_count 2
  .amdhsa_user_sgpr_kernarg_segment_ptr 1
  .amdhsa_system_sgpr_workgroup_id_x 1
.end_amdhsa_kernel
"""
    return head + a.text() + tail

if __name__ == "__main__":
    opts = dict(kv.split("=", 1) for kv in sys.argv[2:])
    open(sys.argv[1], "w").write(gen(opts))
```

```python
import sys

NAME = "standalone__paged_block_table_kv_radixattention__decode"

class Asm:
    def __init__(self):
        self.lines = []
    def __call__(self, s="", c=None):
        s = s.strip()
        self.lines.append("    " + s + (f"    ; {c}" if c else ""))
    def label(self, n):
        self.lines.append(n + ":")
    def c(self, s):
        self.lines.append("    ; " + s)
    def text(self):
        return "\n".join(self.lines) + "\n"

KV_BYTES = 1280 * 32768
WS_ML = 2 << 20
WS_AR = WS_ML + 65536
WS_EP = WS_AR + 32768
NEG = "0xf149f2ca"
DPP = "row_mask:0xf bank_mask:0xf"

HEADER = """; Paged (block-table) GQA decode attention, B=4 H=32 Hkv=8 D=128, 1280 physical blocks of 16 tokens.
;
; and whether as a partial last block) in LDS and loads every referenced block once for all 4 sequences x 4 heads
; Hand-off stores are plain when all 32 workgroups of the head were seen on this XCD, write-through otherwise;
; a workgroup that cannot see all its peers running leaves its slice to the last starter (no co-residency needed).
"""

def gen(opts):
    def pol(k, d):
        return opts.get(k, d).replace("+", " ").replace("def", "")
    def flag(k, d):
        return opts.get(k, d) == "1"
    POL = opts.get("pol", "nt")
    KPOL, VPOL = pol("kpol", POL), pol("vpol", POL)
    OPOL = pol("opol", "def")
    PERM = opts.get("perm", "01274653")
    STAMP = flag("stamp", "0")
    LITE = flag("lite", "0")
    FORCE = opts.get("force", "")
    W = int(opts.get("w", "28"))
    WF = int(opts.get("wf", "26"))
    SLOW = int(opts.get("slow", "0x62"), 0)
    if "cmask" in opts:
        SLOW = sum(1 << int(PERM[c]) for c in range(8) if (int(opts["cmask"], 0) >> c) & 1)
    EV = int(opts.get("ev", "4"))
    IPA = int(opts.get("ipa", "28"))
    CHKB = int(opts.get("chkb", "5"))
    CW = flag("cw", "1")
    ARS = 4

    a = Asm()
    INV = 0
    KL = 1024
    C1 = 2048
    C2, C3, C4, C0, CQ, FLG = C1 + 4, C1 + 8, C1 + 12, C1 + 16, C1 + 20, C1 + 32
    ZENT = C1 + 64
    MX = 3072
    LS = MX + 256
    QL = 4096
    KB = 8192
    LDS_BYTES = KB + 131072
    PB = KB
    AL = MX + 512

    vA, vG, vN = 1, 2, 3
    vT = 4
    vX16, vZ = 14, 15
    vPa, vL16 = 16, 17
    vP = 20
    vKs = 36
    vKr = 40
    vM, vL, vC, vB4, vMx, vMw, vKl, vLane = 44, 45, 46, 47, 48, 49, 50, 51
    vW = 52
    vQ = 60
    vS = 76
    vTb = 76
    vInc = 84
    vKf = 108
    vOa, vMa, vOut, vTagC = 144, 145, 146, 147
    FM, FO, FA = 148, 156, 164
    vVo0, vVo1, vWo, vSig, vSa, vList = 40, 41, 42, 43, 44, 45
    vTag, vF = 18, 19
    vAcc = 48
    vV = 80
    vVt = 208
    vX = 240
    NVGPR = vX + 8 if STAMP else vX

    sK, sV, sQ, sWS = 20, 24, 28, 32
    sN = 36
    sH, sI, sW, sWl, sWb = 48, 49, 50, 51, 52
    sU, sRnd, sMore, sBad, sEp, sNEp, sXcc, sAr = 53, 54, 55, 56, 57, 58, 59, 60
    sSelLo, sSelHi, sExp = 61, 62, 63
    sRm = 64
    sCm = 72
    sP, sVal, sKVB = 80, 84, 86
    sM0, sM1 = 88, 90
    sT = 92
    sLc, sKb = 96, 97
    sJ = 64
    sSt = 98
    sLo, sHi, sSpin, sT0, sT3, sMode, sO0, sO1, sMl, sOut, sMl1 = 36, 37, 38, 39, 40, 41, 42, 43, 44, 45, 46

    def tick(idx):
        if not STAMP or (LITE and idx not in (8, 10, 11)):
            return
        a(f"s_memrealtime s[{sSt}:{sSt+1}]")
        a("s_waitcnt lgkmcnt(0)")
        a(f"v_writelane_b32 v{vX}, s{sSt}, {idx}")
        a(f"v_writelane_b32 v{vX+1}, s{sSt+1}, {idx}")
    def first_tick():
        if STAMP:
            a(f"v_mov_b32 v{vX}, 0")
            a(f"v_mov_b32 v{vX+1}, 0")
            a(f"v_writelane_b32 v{vX}, s{sSt+2}, 0")
            a(f"v_writelane_b32 v{vX+1}, s{sSt+3}, 0")
    def k_load(slot, q):
        a(f"buffer_load_dwordx4 v{vKs+q}, s[{sK}:{sK+3}], s{sP+slot} offen offset:{q*1024} {KPOL} lds")
    def v_load(k, slot, i):
        r = vV + 16 * (k & 7) + 4 * i
        a(f"buffer_load_dwordx4 v[{r}:{r+3}], v{vVo0 + (i>>1)}, s[{sV}:{sV+3}], s{sP+slot} offen offset:{2048*(i&1)} {VPOL}")
    def pop_lc():
        a(f"s_ff1_i32_b32 s{sT}, s{sU}", "next candidate (-1: none)")
        a(f"s_bitset0_b32 s{sU}, s{sT}")
        a(f"s_lshl_b32 s{sLc}, s{sT}, 4")
        a(f"s_addk_i32 s{sLc}, 128")
        a(f"s_cmp_lt_i32 s{sT}, 0")
        a(f"s_cselect_b32 s{sLc}, {ZENT}, s{sLc}")
    def make_tag(dst, vu, tmp):
        a(f"s_lshr_b32 s{sT}, s{sEp}, 8")
        a(f"s_addk_i32 s{sT}, 0x5a")
        a(f"v_mad_u32_u24 v{dst}, v{vu}, 37, s{sEp}")
        a(f"v_mad_u32_u24 v{tmp}, v{vu}, 59, s{sT}")
        a(f"s_mov_b32 s{sT}, 0x0c0c0400")
        a(f"v_perm_b32 v{dst}, v{tmp}, v{dst}, s{sT}")
    def xreduce(op, v, t):
        a(f"v_mov_b32 v{t}, v{v}")
        a("s_nop 1")
        a(f"v_permlane32_swap_b32 v{v}, v{t}")
        a("s_nop 0")
        a(f"{op} v{v}, v{v}, v{t}")
        a(f"v_mov_b32 v{t}, v{v}")
        a("s_nop 1")
        a(f"v_permlane16_swap_b32 v{v}, v{t}")
        a("s_nop 0")
        a(f"{op} v{v}, v{v}, v{t}")
    def signal(cnt, t):
        a(f"v_mov_b32 v{t}, 1")
        a("s_mov_b64 exec, 1")
        a(f"ds_add_u32 v{vZ}, v{t} offset:{cnt}")
        a("s_mov_b64 exec, -1")
    def spin(cnt, t, label, exp):
        a.label(label)
        if "spl" in opts:
            a(f"s_sleep {opts['spl']}")
        a(f"ds_read_b32 v{t}, v{vZ} offset:{cnt}")
        a("s_waitcnt lgkmcnt(0)")
        a(f"v_cmp_gt_u32 vcc, {exp}, v{t}")
        a(f"s_cbranch_vccnz {label}")
    def list_read():
        a(f"ds_read_b32 v{vP+4}, v{vZ} offset:{C0}")
        a(f"ds_read_b128 v[{vP}:{vP+3}], v{vL16}")
    def get_list(lbl):
        a("s_waitcnt lgkmcnt(0)")
        a(f"v_cmp_gt_u32 vcc, 4, v{vP+4}")
        a(f"s_cbranch_vccz {lbl}_ok", "the map was read after the counter showed it complete")
        a.label(f"{lbl}_again")
        list_read()
        a("s_waitcnt lgkmcnt(0)")
        a(f"v_cmp_gt_u32 vcc, 4, v{vP+4}")
        a(f"s_cbranch_vccnz {lbl}_again")
        a.label(f"{lbl}_ok")
        a(f"v_or3_b32 v{vP}, v{vP}, v{vP+1}, v{vP+2}")
        a(f"v_or_b32 v{vP}, v{vP}, v{vP+3}")
        a(f"v_cmp_ne_u32 vcc, 0, v{vP}")
        a("s_nop 0")
        a(f"s_lshr_b64 s[{sCm}:{sCm+1}], vcc, 8")
        a(f"s_bcnt1_i32_b32 s{sMore}, s{sCm}")
    def common_init():
        a(f"s_lshl_b32 s{sT}, s{sH}, 7")
        a(f"s_add_u32 s{sT}, s{sT}, {WS_EP}")
        a(f"s_load_dword s{sEp}, s[18:19], s{sT}")
        a(f"s_mov_b32 s{sWS}, s18")
        a(f"s_mov_b32 s{sWS+1}, s19")
        a(f"s_mov_b32 s{sWS+2}, {1 << 28}")
        a(f"s_mov_b32 s{sWS+3}, 0x20000")
        a(f"v_mov_b32 v{vZ}, 0")
        a(f"v_and_b32 v{vL16}, 0x3f0, v{vA}")
        a(f"s_mov_b32 s{sExp}, 4")

    a.label(f"{NAME}_kernel")
    a(f"s_load_dwordx2 s[{sK}:{sK+1}], s[0:1], 8")
    a("s_load_dwordx16 s[4:19], s[0:1], 0")
    if STAMP:
        a(f"s_memrealtime s[{sSt+2}:{sSt+3}]")
    a(f"v_lshlrev_b32 v{vA}, 4, v0")
    if CW:
        a(f"v_lshlrev_b32 v{vG}, 5, v0")
        a("s_getpc_b64 s[96:97]")
        a.label("L_pc")
        a(f"global_load_dword v{vP+15}, v{vG}, s[96:97] offset:100", "kernel text -> L2 (value unused)")
    a("s_cmpk_ge_u32 s2, 256")
    a("s_cbranch_scc1 L_end")
    a(f"v_readfirstlane_b32 s{sW}, v0")
    for r in range(4):
        a(f"v_mov_b32 v{vP+r}, 0")
    a(f"ds_write_b128 v{vA}, v[{vP}:{vP+3}]", "clear map, flags and counters")
    if PERM == "01234567":
        a(f"s_and_b32 s{sH}, s2, 7", "kv head")
    elif PERM == "70123456":
        a(f"s_sub_u32 s{sH}, s2, 1")
        a(f"s_and_b32 s{sH}, s{sH}, 7", "kv head")
    else:
        a(f"s_lshl_b32 s{sH}, s2, 2")
        a(f"s_lshr_b32 s{sH}, {hex(int(''.join(reversed(PERM)), 16))}, s{sH}")
        a(f"s_and_b32 s{sH}, s{sH}, 7", "kv head")
    a(f"s_lshr_b32 s{sI}, s2, 3", "workgroup index inside the head")
    if FORCE == "late":
        a(f"s_cmp_lg_u32 s{sI}, 5")
        a("s_cbranch_scc1 L_notlate")
        a("s_movk_i32 s3, 400")
        a.label("L_latespin")
        a("s_sleep 8")
        a("s_sub_u32 s3, s3, 1")
        a("s_cmp_lg_u32 s3, 0")
        a("s_cbranch_scc1 L_latespin")
        a.label("L_notlate")
    a(f"v_bfe_u32 v{vG}, v0, 4, 2")
    a(f"v_and_b32 v{vN}, 15, v0")
    a(f"s_lshr_b32 s{sW}, s{sW}, 6")
    a(f"v_xor_b32 v{vX16}, v{vN}, v{vG}")
    a(f"s_and_b32 s{sWl}, s{sW}, 3")
    a(f"v_lshlrev_b32 v{vX16}, 4, v{vX16}")
    a(f"s_lshl_b32 s{sT+3}, s{sH}, 8")
    a(f"v_lshl_add_u32 v{vKs}, v{vG}, 11, v{vX16}")
    a(f"s_lshl_b32 s{sP}, s{sI}, 15", "static blocks: physical 32*n + i, n = 0..7")
    a(f"v_add_u32 v{vKs}, s{sT+3}, v{vKs}")
    a(f"s_movk_i32 m0, {KB}")
    a(f"s_mov_b32 s{sK+2}, {KV_BYTES}")
    a(f"s_mov_b32 s{sK+3}, 0x20000")
    a(f"s_cmp_lt_u32 s{sW}, 4")
    a("s_waitcnt lgkmcnt(0)")
    a("s_cbranch_scc1 L_notable")
    a(f"global_load_dwordx4 v[{vTb}:{vTb+3}], v{vA}, s[10:11] offset:-4096")
    a(f"global_load_dwordx4 v[{vTb+4}:{vTb+7}], v{vA}, s[10:11]")
    a(f"s_load_dwordx4 s[{sN}:{sN+3}], s[12:13], 0")
    a.label("L_notable")
    a(f"s_cmp_eq_u32 s{sW}, 0")
    a("s_barrier")
    a("s_cbranch_scc0 L_other")

    if STAMP and not LITE:
        a(f"s_memrealtime s[{sSt}:{sSt+1}]")
    k_load(0, 0)
    for q in range(1, 4):
        a(f"v_xor_b32 v{vKs+q}, {64*q}, v{vKs}")
        a(f"v_add_u32 v{vKs+q}, {q*(8192-1024)}, v{vKs+q}")
        k_load(0, q)
    a("s_setprio 2")
    a(f"v_lshlrev_b32 v{vList}, 16, v{vA}", "lane n: n * 32 blocks")
    a(f"v_add_u32 v{vList}, s{sP}, v{vList}")
    a(f"s_mov_b32 s{sKVB}, s{sK+2}")
    a(f"s_mov_b64 s[{sVal}:{sVal+1}], -1")
    a(f"s_mov_b32 s{sRnd}, 0")
    a(f"s_add_u32 s{sP+1}, s{sP}, {32*32768}")
    a.label("L_vround")
    def vcc_mode():
        if WF < W:
            a(f"s_mov_b64 vcc, s[{sM1}:{sM1+1}]")
    def perm1(pr, idx):
        p = pr & 3
        r0 = vV + 8 * (pr & 15)
        w = idx >> 1
        a(f"v_perm_b32 v{vVt + 4*idx + p}, v{r0+4+w}, v{r0+w}, s{sSelHi if idx & 1 else sSelLo}")
    def mfma1(t, j):
        D = f"v[{vAcc+4*j}:{vAcc+4*j+3}]"
        pp = vP + 4 * (t & 1)
        a(f"v_mfma_f32_16x16x32_bf16 {D}, v[{vVt+4*j}:{vVt+4*j+3}], v[{pp}:{pp+3}], {D}")
    def ptile_read(t):
        pp = vP + 4 * (t & 1)
        a(f"ds_read_b128 v[{pp}:{pp+3}], v{vL16} offset:{PB + t*1024}")
    def p_read(hf):
        a(f"ds_read_b32 v{vT+2}, v{vZ} offset:{C2}")
        ptile_read(8 * hf)
        a(f"ds_read_b32 v{vT}, v{vSa} offset:{AL - KL + 256*hf}")
        if hf:
            a(f"ds_read_b32 v{vF}, v{vZ} offset:{FLG}")
    def fetch_p(hf):
        tick(13 if hf else 7)
        a("s_waitcnt lgkmcnt(0)")
        a(f"v_cmp_gt_u32 vcc, s{sExp}, v{vT+2}")
        a(f"s_cbranch_vccnz L_pagain{hf}")
        a.label(f"L_pok{hf}")
        a(f"s_add_u32 s{sExp}, s{sExp}, 4")
        if hf:
            a(f"v_readfirstlane_b32 s{sMode}, v{vF}")
        for r in range(0, 32, 2):
            a(f"v_pk_mul_f32 v[{vAcc+r}:{vAcc+r+1}], v[{vAcc+r}:{vAcc+r+1}], v[{vT}:{vT+1}] op_sel_hi:[1,0]")
        vcc_mode()
        if hf:
            tick(5)
    blocks = [("K", k) for k in range(8)] + [("V", k) for k in range(EV)] + [("K", k) for k in range(8, 32)] + [("V", k) for k in range(EV, 32)]
    bpos = {x: i for i, x in enumerate(blocks)}
    NL = 4 * len(blocks)
    IL = 4 * bpos[("K", 8)] - 6
    st = {"pairs": 0, "kl": 0, "list": False, "init": False, "p": 0, "pr": 0}
    def pair_done_at(pr):
        return 4 * bpos[("V", pr >> 1)] + 2 * (pr & 1) + 1
    def do_pair(pr):
        t = pr >> 2
        if pr < 2 * EV:
            a(f"s_bitcmp0_b32 s{sVal}, {pr >> 1}")
            a(f"s_cbranch_scc1 L_vbad{pr}")
            a.label(f"L_vgood{pr}")
        if (pr & 3) == 1 and t + 1 < 16 and t + 1 != 8:
            ptile_read(t + 1)
        if pr == 30:
            p_read(1)
        for idx in range(8):
            perm1(pr, idx)
        if (pr & 3) == 3:
            if t != 0 and t != 8:
                a(f"s_waitcnt lgkmcnt({4 if t == 7 else 1})")
            for j in range(8):
                mfma1(t, j)
    def retire(complete, final=False):
        if st["init"] and st["kl"] < 32 and 4 * bpos[("K", st["kl"])] + 3 <= complete:
            n = 0
            while st["kl"] < 32 and 4 * bpos[("K", st["kl"])] + 3 <= complete:
                st["kl"] += 1; n += 1
            a(f"v_add_u32 v{vSig}, {n}, v{vSig}")
            a(f"ds_write_b32 v{vSa}, v{vSig}", "K blocks landed")
        n = 0
        while st["p"] and st["pairs"] < 63 and pair_done_at(st["pairs"]) <= complete and (final or n < 1):
            if st["pairs"] == 32:
                a("s_nop 7")
                fetch_p(1)
            do_pair(st["pairs"])
            st["pairs"] += 1; n += 1
    best = -1
    for i in range(4, NL):
        kind, k = blocks[i >> 2]; q = i & 3
        slot = (i >> 2) & 3
        if q == 0:
            a(f"s_bitcmp1_b32 s{sVal}, {k}")
            if kind == "K":
                a(f"s_cselect_b32 s{sK+2}, s{sKVB}, 0")
                a(f"s_mov_b32 m0, {KB + k*4096}")
            else:
                a(f"s_cselect_b32 s{sV+2}, s{sKVB}, 0")
            if (i >> 2) + 1 < len(blocks):
                nk = blocks[(i >> 2) + 1][1]
                assert nk < 8 or st["list"]
                a(f"v_readlane_b32 s{sP + ((slot + 1) & 3)}, v{vList}, {nk}")
        if (i & 1) == 0:
            if i + 2 > W:
                a(f"s_waitcnt vmcnt({W-2})")
                best = max(best, i + 1 - W)
            if WF < W and i + 2 > WF and st["init"] and i < NL - int(opts.get("free", "0")):
                a(f"s_cbranch_vccz L_nw{i}")
                a(f"s_waitcnt vmcnt({WF-2})")
                a.label(f"L_nw{i}")
        if kind == "K":
            k_load(slot, q)
        else:
            assert k < 8 or st["pairs"] > 2 * (k - 8) + (q >> 1), (i, st)
            v_load(k, slot, q)
        if i == min(WF, W) - 1:
            a.c("set-up work, hidden behind the first loads")
            a(f"s_cmp_lg_u32 s{sRnd}, 0")
            a("s_cbranch_scc1 L_vinit")
            first_tick()
            if STAMP and not LITE:
                a("s_waitcnt lgkmcnt(0)")
                a(f"v_writelane_b32 v{vX}, s{sSt}, 9")
                a(f"v_writelane_b32 v{vX+1}, s{sSt+1}, 9")
            common_init()
            a(f"s_mov_b32 s{sV}, s8")
            a(f"s_mov_b32 s{sV+1}, s9")
            a(f"s_mov_b32 s{sV+3}, 0x20000")
            a(f"v_lshlrev_b32 v{vVo0}, 13, v{vG}")
            a(f"v_lshl_add_u32 v{vVo0}, v{vN}, 4, v{vVo0}")
            a(f"v_add_u32 v{vVo0}, s{sT+3}, v{vVo0}")
            a(f"v_add_u32 v{vVo1}, 4096, v{vVo0}")
            a(f"v_mov_b32 v{vSig}, 0")
            a(f"v_lshrrev_b32 v{vSa}, 2, v{vA}")
            a(f"v_add_u32 v{vSa}, {KL}, v{vSa}")
            a(f"s_mov_b32 s{sSelLo}, 0x05040100")
            a(f"s_mov_b32 s{sSelHi}, 0x07060302")
            a(f"s_lshl_b32 s{sT}, s{sH}, 18")
            a(f"s_lshl_b32 s{sT+1}, s{sI}, 8")
            a(f"s_add_u32 s{sT}, s{sT}, s{sT+1}")
            a(f"v_lshlrev_b32 v{vWo}, 16, v{vG}")
            a(f"v_lshl_add_u32 v{vWo}, v{vN}, 4, v{vWo}")
            a(f"v_add_u32 v{vWo}, s{sT}, v{vWo}", "hand-off piece of slice 8*g + j: + j*8192")
            for j in range(1, 8):
                a(f"s_mov_b32 s{sJ+j}, {j*8192}")
            for r in range(32):
                a(f"v_mov_b32 v{vAcc+r}, 0")
            a(f"s_mov_b32 s{sT0}, 0x07060500")
            a(f"s_mov_b32 s{sT3}, 0x07060501")
            a.c("byte offset of candidate l = lane: (32*l + ((i - (l & 0x38)) & 31)) << 15")
            a(f"v_lshrrev_b32 v{vT+5}, 4, v{vA}")
            a(f"v_and_b32 v{vT+6}, 0x38, v{vT+5}")
            a(f"v_sub_u32 v{vT+6}, s{sI}, v{vT+6}")
            a(f"v_and_b32 v{vT+6}, 31, v{vT+6}")
            a(f"v_lshl_add_u32 v{vT+6}, v{vT+5}, 5, v{vT+6}")
            a(f"v_lshlrev_b32 v{vT+6}, 15, v{vT+6}")
            if WF < W:
                a(f"s_lshr_b32 s{sT}, {SLOW}, s{sH}")
                a(f"s_bitcmp0_b32 s{sT}, 0")
                a(f"s_cselect_b64 s[{sM1}:{sM1+1}], -1, 0")
            a.label("L_vinit")
            vcc_mode()
            st["init"] = True
        if i == W:
            tick(2)
        if i == IL - 2:
            list_read()
        elif i == IL:
            a(f"s_cmp_lg_u32 s{sRnd}, 0")
            a("s_cbranch_scc1 L_vlist")
            tick(14)
            get_list("L_sl")
            a.c("position of candidate l: l < 8 static, else 8 + rank among the referenced ones; unreferenced -> lane 63")
            a(f"s_and_b32 s{sT}, vcc_lo, 0xff")
            a(f"s_and_b32 vcc_hi, vcc_hi, 0xff")
            a(f"s_or_b32 vcc_lo, vcc_lo, 0xff")
            a(f"v_mbcnt_lo_u32_b32 v{vT+4}, vcc_lo, 0")
            a(f"v_mbcnt_hi_u32_b32 v{vT+4}, vcc_hi, v{vT+4}")
            a(f"s_bfm_b64 s[{sVal}:{sVal+1}], s{sMore}, 8")
            a(f"v_cndmask_b32 v{vT+4}, 63, v{vT+4}, vcc")
            a(f"s_or_b32 s{sBad}, s{sVal}, s{sT}")
            a(f"v_lshlrev_b32 v{vT+4}, 2, v{vT+4}")
            a(f"s_or_b32 s{sVal}, s{sVal}, 0xff")
            a(f"ds_permute_b32 v{vList}, v{vT+4}, v{vT+6}")
            a(f"s_add_u32 s{sEp}, s{sEp}, 1")
            make_tag(vTag, vN, vT + 4)
            a("s_waitcnt lgkmcnt(0)")
            tick(3)
            vcc_mode()
            a.label("L_vlist")
            st["list"] = True
        elif i == 4 * bpos[("K", 8)]:
            a(f"s_mov_b32 s{sVal}, s{sBad}", "from here on unreferenced static blocks are skipped")
        if kind == "K" and k == IPA and q == 1:
            p_read(0)
        elif kind == "K" and k == IPA and q == 3:
            fetch_p(0); st["p"] = 1
        elif (i & 1) == 1:
            retire(best)
        if i == NL - 1 - int(opts.get("sml", "48")):
            signal(C4, vT + 3)
        if i == 4 * bpos[("K", 31)] + 3:
            tick(4)
    signal(C4, vT + 3)
    tick(15)
    retire(best, final=True)
    while st["pairs"] < 63:
        c = pair_done_at(st["pairs"])
        a(f"s_waitcnt vmcnt({NL - 1 - c})")
        retire(c, final=True)
    assert st["kl"] == 32
    a(f"s_cmp_gt_u32 s{sMore}, 24")
    a("s_cbranch_scc1 L_vmore")
    a(f"s_bitcmp1_b32 s{sMode}, 0")
    a("s_cbranch_scc1 L_slowo")
    def tail(sfx):
        a("s_waitcnt vmcnt(0) lgkmcnt(0)")
        for op in "p0 p1 p2 p3 M0 M1 p4 p5 M2 M3 p6 p7 M4 M5 S0 M6 M7 S1 S2 S3 S4 S5 S6 S7".split():
            j = int(op[1])
            if op[0] == "p":
                perm1(63, j)
            elif op[0] == "M":
                mfma1(15, j)
            else:
                R = vAcc + 4 * j
                a(f"v_perm_b32 v{R}, v{R}, v{vTag}, s{sT0}")
                a(f"v_perm_b32 v{R+3}, v{R+3}, v{vTag}, s{sT3}")
                a(f"buffer_store_dwordx4 v[{R}:{R+3}], v{vWo}, s[{sWS}:{sWS+3}], {'0' if j == 0 else 's%d' % (sJ + j)} offen {sfx}")
    tail("")
    tick(8)
    a("s_branch L_fin" if STAMP else "s_endpgm")

    a.label("L_other")
    a(f"s_cmp_ge_u32 s{sW}, 4")
    a("s_cbranch_scc1 L_cmain")
    if CW:
        a(f"v_lshlrev_b32 v{vT}, 1, v{vA}")
        a(f"v_add_u32 v{vT}, {16384 + 100 - 2048}, v{vT}")
        a(f"v_min_u32 v{vT}, (L_codeend - L_pc - 4), v{vT}")
        a(f"global_load_dword v{vT+1}, v{vT}, s[96:97]", "waves 1-3: rest of the kernel text -> L2")
    a("s_endpgm")

    a.label("L_cmain")
    first_tick()
    a(f"v_mov_b32 v{vZ}, 0")
    a(f"v_lshrrev_b32 v{vT+8}, 2, v{vA}")
    a(f"v_and_b32 v{vKl}, 0xff, v{vT+8}")
    a(f"v_add_u32 v{vKl}, {KL}, v{vKl}")
    a(f"v_and_b32 v{vT+8}, 0x1fc, v{vT+8}", "first of this thread's four table columns")
    a(f"s_lshr_b32 s{sT}, s{sWl}, 1")
    a(f"s_lshl_b32 s{sT}, s{sT}, 2")
    a(f"v_mov_b32 v{vT+7}, s{sT}")
    a("s_waitcnt lgkmcnt(0)")
    tick(1)
    for b in range(4):
        a(f"s_min_i32 s{sT}, s{sN+b}, 0x2000")
        a(f"s_cmp_lt_i32 s{sN+b}, 1")
        a(f"s_cselect_b32 s{sN+b}, 0x2000, s{sT}", "context length clamped to 1..8192 (<= 0: all positions, equal scores)")
        a(f"s_cselect_b32 s{sT}, {hex(0x000f000f << (4*b))}, 0")
        if b == 0:
            a(f"s_mov_b32 s{sM0}, s{sT}")
        else:
            a(f"s_or_b32 s{sM0}, s{sM0}, s{sT}")
    a.c("increment per (sequence, column): 1 full block, 0x10000 partial last block, 0 beyond the context")
    for hh in range(2):
        a(f"s_cmp_lt_u32 s{sWl}, 2")
        a(f"s_cselect_b32 s{sT}, s{sN+2*hh}, s{sN+2*hh+1}")
        a(f"s_lshr_b32 s{sT+1}, s{sT}, 4")
        a(f"v_sub_u32 v{vT+4}, s{sT+1}, v{vT+8}")
        a(f"s_and_b32 s{sT}, s{sT}, 15")
        a(f"s_cselect_b32 s{sT}, 0x10000, 0")
        a(f"v_mov_b32 v{vT+5}, s{sT}")
        for e in range(4):
            a(f"v_cmp_eq_i32 s[{sCm+2*e}:{sCm+2*e+1}], {e}, v{vT+4}")
        for e in range(4):
            a(f"v_cmp_lt_i32 s[{sRm+2*e}:{sRm+2*e+1}], {e}, v{vT+4}")
        for e in range(4):
            a(f"v_cndmask_b32 v{vInc+4*hh+e}, 0, v{vT+5}, s[{sCm+2*e}:{sCm+2*e+1}]")
        for e in range(4):
            a(f"v_cndmask_b32 v{vInc+4*hh+e}, v{vInc+4*hh+e}, 1, s[{sRm+2*e}:{sRm+2*e+1}]")
    a(f"s_movk_i32 s{sT+2}, 0x3f0")
    a.c("inverse page map restricted to this workgroup's physical blocks")
    for hh in range(2):
        a(f"s_waitcnt vmcnt({1 - hh})")
        if hh == 0:
            tick(2)
        for e in range(4):
            p = vTb + 4 * hh + e
            t = vT + 4 + (e & 1)
            a(f"v_lshrrev_b32 v{t}, 8, v{p}")
            a(f"v_lshl_add_u32 v{t}, v{t}, 3, v{p}")
            a(f"v_lshrrev_b32 v{p}, 1, v{p}")
            a(f"v_and_b32 v{t}, 31, v{t}")
            a(f"v_and_or_b32 v{p}, v{p}, s{sT+2}, v{vT+7}")
            a(f"v_cmpx_eq_u32 vcc, s{sI}, v{t}")
            a(f"ds_add_u32 v{p}, v{vInc+4*hh+e} offset:{INV + 8*hh}")
            a("s_mov_b64 exec, -1")
    signal(C0, vT + 4)
    tick(14)
    a(f"s_mov_b32 s{sQ}, s4")
    a(f"s_mov_b32 s{sQ+1}, s5")
    a(f"s_mov_b32 s{sQ+2}, 32768")
    a(f"s_mov_b32 s{sQ+3}, 0x20000")
    a(f"s_lshl_b32 s{sT+1}, s{sWl}, 6")
    a(f"v_xor_b32 v{vT+6}, s{sT+1}, v{vX16}")
    a(f"v_lshl_add_u32 v{vT+6}, v{vG}, 8, v{vT+6}")
    a(f"s_lshl_b32 s{sT+1}, s{sH}, 10")
    a(f"s_lshl_b32 s{sT+2}, s{sWl}, 13")
    a(f"s_add_u32 s{sT+1}, s{sT+1}, s{sT+2}")
    a(f"s_lshl_b32 s{sT+2}, s{sWl}, 10")
    a(f"s_add_u32 m0, s{sT+2}, {QL}")
    common_init()
    a(f"buffer_load_dwordx4 v{vT+6}, s[{sQ}:{sQ+3}], s{sT+1} offen lds", "four query rows -> LDS")
    a(f"v_lshrrev_b32 v{vLane}, 4, v{vL16}")
    a(f"s_lshl_b32 s{sWb}, s{sWl}, 12")
    a(f"s_addk_i32 s{sWb}, {KB}")
    a(f"s_lshr_b32 s{sT}, s{sWl}, 1")
    a(f"s_lshl_b32 s{sT}, s{sT}, 10")
    a(f"s_and_b32 s{sT+1}, s{sWl}, 1")
    a(f"s_lshl_b32 s{sT+1}, s{sT+1}, 3")
    a(f"s_add_u32 s{sT}, s{sT}, s{sT+1}")
    a(f"v_add_u32 v{vPa}, s{sT}, v{vL16}", "P of position 4b+w: tile 2b + (w>>1), half w&1")
    a(f"v_lshlrev_b32 v{vT+4}, 8, v{vN}")
    a(f"v_add_u32 v{vT+4}, s{sWb}, v{vT+4}")
    for j in range(4):
        if j == 0:
            a(f"v_add_u32 v{vKr}, v{vX16}, v{vT+4}")
        else:
            a(f"v_xor_b32 v{vKr+j}, {64*j}, v{vKr}")
    a(f"v_and_b32 v{vB4}, 12, v{vN}")
    a(f"v_mov_b32 v{vM}, {NEG}")
    a(f"v_mov_b32 v{vL}, 0")
    a(f"v_lshlrev_b32 v{vMx}, 4, v{vN}")
    a(f"v_add_u32 v{vMx}, {MX}, v{vMx}")
    a(f"s_lshl_b32 s{sT}, s{sWl}, 2")
    a(f"v_add_u32 v{vMw}, s{sT}, v{vMx}")
    a(f"s_mov_b32 s{sM0+1}, s{sM0}")
    a(f"v_mov_b32 v{vC}, 0x3e0293ee", "log2(e)/sqrt(128)")
    a(f"v_cndmask_b32 v{vC}, v{vC}, 0, s[{sM0}:{sM0+1}]")
    a(f"s_and_b32 s{sT}, s{sN}, 15")
    for b in range(1, 4):
        a(f"s_and_b32 s{sT+1}, s{sN+b}, 15")
        a(f"s_lshl_b32 s{sT+1}, s{sT+1}, {4*b}")
        a(f"s_or_b32 s{sT}, s{sT}, s{sT+1}")
    a(f"v_lshrrev_b32 v{vT+4}, v{vB4}, s{sT}")
    a(f"v_and_b32 v{vT+4}, 15, v{vT+4}")
    a(f"v_lshlrev_b32 v{vT+5}, 2, v{vG}")
    a(f"v_sub_u32 v{vT+4}, v{vT+4}, v{vT+5}")
    for r in range(4):
        a(f"v_cmp_lt_i32 s[{sRm+2*r}:{sRm+2*r+1}], {r}, v{vT+4}", "token 4g+r inside the partial last block" if r == 0 else None)
    a(f"v_and_b32 v{vOa}, 0x1f0, v{vL16}", "arrival granule of workgroup lane&31")
    a(f"s_add_u32 s{sKb}, s{sWl}, 1")
    list_read()
    get_list("L_cl")
    a(f"v_mbcnt_lo_u32_b32 v{vT+4}, s{sCm}, 0")
    a(f"s_lshr_b32 s{sBad}, vcc_lo, s{sWl}")
    a(f"v_and_b32 v{vT+4}, 3, v{vT+4}")
    a(f"v_cmp_eq_u32 vcc, s{sWl}, v{vT+4}")
    a(f"s_andn2_b32 s{sBad}, 0x11, s{sBad}", "bit0 / bit4: first / second static block is not referenced")
    a(f"s_and_b32 s{sU}, vcc_lo, s{sCm}")
    tick(3)
    a("s_waitcnt vmcnt(0)", "Q rows have landed")
    signal(CQ, vT + 4)
    a(f"s_add_u32 s{sEp}, s{sEp}, 1", "hand-off epoch of this launch")
    a(f"s_not_b32 s{sNEp}, s{sEp}")
    a(f"s_getreg_b32 s{sXcc}, hwreg(HW_REG_XCC_ID, 0, 4)")
    a(f"s_lshl_b32 s{sAr}, s{sH}, {5 + ARS}")
    a(f"s_add_u32 s{sAr}, s{sAr}, {WS_AR}")
    a(f"s_cmp_lg_u32 s{sW}, 4")
    a("s_cbranch_scc1 L_noarr")
    a.c("arrival mark of this workgroup")
    a(f"s_lshl_b32 s{sT}, s{sI}, {ARS}")
    a(f"v_mov_b32 v{vT}, s{sT}")
    a(f"v_mov_b32 v{vS+16}, s{sEp}")
    a(f"v_mov_b32 v{vS+17}, s{sNEp}")
    a(f"v_mov_b32 v{vS+18}, s{sXcc}")
    a("s_mov_b64 exec, 1")
    a(f"buffer_store_dwordx3 v[{vS+16}:{vS+18}], v{vT}, s[{sWS}:{sWS+3}], s{sAr} offen sc1")
    a("s_mov_b64 exec, -1")
    a.label("L_noarr")
    spin(CQ, vT + 4, "L_sq", "4")

    def finish(b):
        if b < 2:
            a(f"s_bitcmp1_b32 s{sBad}, {4*b}")
            a(f"s_cbranch_scc0 L_good{b}")
            for r in range(4):
                a(f"v_mov_b32 v{vS+4*b+r}, 0")
            a.label(f"L_good{b}")
        wb_, b = b, b & 3
        a(f"v_and_b32 v{vT+4}, 0xffff, v{vW+wb_}")
        a(f"v_lshrrev_b32 v{vT+5}, 16, v{vW+wb_}")
        a(f"v_add_u32 v{vT+5}, v{vT+5}, v{vT+4}")
        a(f"v_cvt_f32_u32 v{vT+4}, v{vT+4}")
        a(f"v_cvt_f32_u32 v{vT+5}, v{vT+5}")
        a(f"v_log_f32 v{vT+4}, v{vT+4}")
        a(f"v_log_f32 v{vT+5}, v{vT+5}")
        a("s_nop 0")
        for r in range(4):
            a(f"v_cndmask_b32 v{vT+6+r}, v{vT+4}, v{vT+5}, s[{sRm+2*r}:{sRm+2*r+1}]")
        for r in range(4):
            a(f"v_fma_f32 v{vS+4*b+r}, v{vS+4*b+r}, v{vC}, v{vT+6+r}")
        src = vM if b == 0 else vT
        a(f"v_max3_f32 v{vT}, v{src}, v{vS+4*b}, v{vS+4*b+1}")
        a(f"v_max3_f32 v{vT}, v{vT}, v{vS+4*b+2}, v{vS+4*b+3}")
    def qk(b):
        f = vKf + 16 * (b & 1)
        sb = vS + 4 * (b & 3)
        for j in range(4):
            a(f"ds_read_b128 v[{f+4*j}:{f+4*j+3}], v{vKr+j} offset:{(b & 3)*16384}")
        for j in range(4):
            c = "0" if j == 0 else f"v[{sb}:{sb+3}]"
            a(f"s_waitcnt lgkmcnt({3-j})")
            a(f"v_mfma_f32_16x16x32_bf16 v[{sb}:{sb+3}], v[{f+4*j}:{f+4*j+3}], v[{vQ+4*j}:{vQ+4*j+3}], {c}")
        if b < 2:
            a("s_nop 5")
        finish(b)
    def wread(k):
        a(f"v_add_u32 v{vW+k}, s{sLc}, v{vB4}")
        a(f"ds_read_b32 v{vW+k}, v{vW+k}")

    a(f"s_lshl_b32 s{sLc}, s{sWl}, 4")
    a(f"v_add_u32 v{vW}, s{sLc}, v{vB4}")
    a(f"ds_read_b32 v{vW+1}, v{vW} offset:64")
    a(f"ds_read_b32 v{vW}, v{vW}")
    a(f"s_sub_u32 s{sT}, s{sWb}, {QL}")
    for j in range(4):
        a(f"v_subrev_u32 v{vT+j}, s{sT}, v{vKr+j}")
        a(f"ds_read_b128 v[{vQ+4*j}:{vQ+4*j+3}], v{vT+j}")
    a.label("L_kround")
    for k in range(2, 8):
        pop_lc()
        wread(k)
    a.c("scores: scale, add log2(multiplicity) of the (block, sequence) pair (-inf when masked), running max")
    def decide():
        a.c("wave 4 decides how this workgroup hands its partial results over")
        a.c("mode word: bit0 = write-through stores, bits 8..15 first slice, bits 16..23 end slice")
        a(f"s_cmp_lg_u32 s{sW}, 4")
        a("s_cbranch_scc1 L_decided")
        a(f"s_lshl_b32 s{sMode}, s{sI}, 8")
        a(f"s_add_u32 s{sT}, s{sI}, 1")
        a(f"s_lshl_b32 s{sT}, s{sT}, 16")
        a(f"s_or_b32 s{sMode}, s{sMode}, s{sT}")
        a(f"s_mov_b32 s{sSpin}, 0")
        a.label("L_look")
        a("s_waitcnt vmcnt(0)")
        if FORCE == "abandon":
            a(f"s_bitcmp1_b32 s{sI}, 0")
            a(f"s_cselect_b32 s{sT}, 0, -1")
            a(f"v_and_b32 v{FO}, s{sT}, v{FO}")
            a(f"v_and_b32 v{FO+1}, s{sT}, v{FO+1}")
        if FORCE == "all":
            a(f"v_or_b32 v{FO+2}, 0x100, v{FO+2}")
        a(f"v_cmp_ne_u32 vcc, s{sEp}, v{FO}")
        a(f"v_cmp_ne_u32 s[{sCm}:{sCm+1}], s{sNEp}, v{FO+1}")
        a(f"v_cmp_ne_u32 s[{sCm+2}:{sCm+3}], s{sXcc}, v{FO+2}")
        a(f"v_cmp_le_u32 s[{sCm+4}:{sCm+5}], 64, v{FO+2}")
        a(f"s_or_b64 vcc, vcc, s[{sCm}:{sCm+1}]")
        a(f"s_or_b64 s[{sCm+2}:{sCm+3}], s[{sCm+2}:{sCm+3}], vcc")
        a("s_cbranch_scc1 L_notfast")
        a.label("L_modeset")
        a(f"v_mov_b32 v{vT+1}, s{sMode}")
        a(f"ds_write_b32 v{vZ}, v{vT+1} offset:{FLG}")
        a.label("L_decided")
    for hf in range(2):
        for b in range(4 * hf, 4 * hf + 4):
            a.label(f"L_kw{b}")
            if "spl" in opts:
                a(f"s_sleep {opts['spl']}")
            a(f"ds_read_b32 v{vT+1}, v{vKl}")
            a("s_waitcnt lgkmcnt(0)")
            a(f"v_cmp_gt_u32 vcc, s{sKb}, v{vT+1}")
            a(f"s_cbranch_vccnz L_kw{b}")
            a(f"s_add_u32 s{sKb}, s{sKb}, 4")
            qk(b)
            if b == CHKB:
                a(f"s_cmp_lg_u32 s{sW}, 4")
                a("s_cbranch_scc1 L_nochk")
                a("s_waitcnt vmcnt(0)")
                a(f"buffer_load_dwordx3 v[{FO}:{FO+2}], v{vOa}, s[{sWS}:{sWS+3}], s{sAr} offen sc1")
                a.label("L_nochk")
        if hf:
            tick(4)
        xreduce("v_max_f32", vT, vT + 1)
        a(f"ds_write_b32 v{vMw}, v{vT}")
        signal(C1, vT + 1)
        for j in range(4):
            a(f"v_xor_b32 v{vKr+j}, 0x10000, v{vKr+j}", "other half of the K positions" if j == 0 else None)
        if hf:
            tick(13)
            decide()
        spin(C1, vT + 1, f"L_s1{hf}", f"s{sExp}")
        a(f"ds_read_b128 v[{vT+4}:{vT+7}], v{vMx}")
        a("s_waitcnt lgkmcnt(0)")
        a(f"v_max3_f32 v{vT}, v{vT+4}, v{vT+5}, v{vT+6}")
        a(f"v_max_f32 v{vT}, v{vT}, v{vT+7}", "workgroup-wide running row maximum")
        a(f"v_sub_f32 v{vT+2}, v{vM}, v{vT}")
        a(f"v_exp_f32 v{vT+2}, v{vT+2}")
        a(f"v_mov_b32 v{vM}, v{vT}")
        for e in range(0, 16, 2):
            a(f"v_pk_add_f32 v[{vS+e}:{vS+e+1}], v[{vS+e}:{vS+e+1}], v[{vT}:{vT+1}] op_sel_hi:[1,0] neg_lo:[0,1] neg_hi:[0,1]")
        a(f"v_mul_f32 v{vL}, v{vL}, v{vT+2}")
        a(f"ds_write_b32 v{vKl}, v{vT+2} offset:{AL - KL + 256*hf}")
        for e in range(16):
            a(f"v_exp_f32 v{vS+e}, v{vS+e}")
        for e in range(8):
            a(f"v_cvt_pk_bf16_f32 v{vP+e}, v{vS+2*e}, v{vS+2*e+1}")
        for b in range(4):
            a(f"ds_write_b64 v{vPa}, v[{vP+2*b}:{vP+2*b+1}] offset:{PB + (4*hf + b)*2048}")
        for stp in (8, 4, 2):
            for e in range(0, stp, 2):
                a(f"v_pk_add_f32 v[{vS+e}:{vS+e+1}], v[{vS+e}:{vS+e+1}], v[{vS+e+stp}:{vS+e+stp+1}]")
        a(f"v_add_f32 v{vS}, v{vS}, v{vS+1}")
        a(f"v_add_f32 v{vL}, v{vL}, v{vS}")
        if hf:
            a(f"v_mov_b32 v{vT}, v{vL}")
            xreduce("v_add_f32", vT, vT + 1)
            a(f"ds_write_b32 v{vMw}, v{vT} offset:{LS - MX}")
        signal(C2, vT + 1)
        spin(C2, vT + 1, f"L_s2{hf}", f"s{sExp}")
        a(f"s_add_u32 s{sExp}, s{sExp}, 4")
        tick(5 if hf else 6)
    a(f"s_cmp_gt_u32 s{sMore}, 24")
    a("s_cbranch_scc1 L_kmore")

    a.c("(max, sum) granules: [head][row group w][workgroup][4 rows]")
    a(f"s_lshl_b32 s{sMl}, s{sH}, 2")
    a(f"s_add_u32 s{sMl}, s{sMl}, s{sWl}")
    a(f"s_lshl_b32 s{sMl}, s{sMl}, 11")
    a(f"s_add_u32 s{sMl}, s{sMl}, {WS_ML}")
    a(f"s_lshl_b32 s{sT}, s{sI}, 6")
    a(f"s_add_u32 s{sT}, s{sT}, s{sMl}")
    a(f"v_and_b32 v{vT+4}, 0x30, v{vL16}")
    a(f"v_add_u32 v{vT+4}, s{sT}, v{vT+4}")
    a(f"v_mov_b32 v{vS}, v{vM}")
    a(f"v_mov_b32 v{vS+2}, s{sEp}")
    a(f"v_mov_b32 v{vS+3}, s{sNEp}")
    a(f"ds_read_b32 v{vT}, v{vZ} offset:{FLG}")
    a(f"ds_read_b128 v[{vS+4}:{vS+7}], v{vMx} offset:{LS - MX}")
    a("s_waitcnt lgkmcnt(0)")
    a(f"v_readfirstlane_b32 s{sMode}, v{vT}")
    a(f"v_add_f32 v{vS+4}, v{vS+4}, v{vS+5}")
    a(f"v_add_f32 v{vS+6}, v{vS+6}, v{vS+7}")
    a(f"v_add_f32 v{vS+1}, v{vS+4}, v{vS+6}")
    a(f"s_lshl_b32 s{sT}, s{sWl}, 2")
    a(f"s_lshl_b64 exec, 15, s{sT}", "each compute wave publishes four rows")
    a(f"s_bitcmp1_b32 s{sMode}, 0")
    a("s_cbranch_scc1 L_mlslow")
    a(f"buffer_store_dwordx4 v[{vS}:{vS+3}], v{vT+4}, s[{sWS}:{sWS+3}], 0 offen")
    a.label("L_mldone")
    a("s_mov_b64 exec, -1")
    a(f"v_lshrrev_b32 v{vT}, 2, v{vLane}")
    a(f"v_and_b32 v{vT+1}, 3, v{vLane}")
    a(f"v_add_u32 v{vT+2}, s{sT}, v{vT+1}", "unit u = 4*w + (lane&3)")
    a(f"v_lshlrev_b32 v{vOa}, 8, v{vT}")
    a(f"v_lshl_add_u32 v{vOa}, v{vT+2}, 4, v{vOa}", "c*256 + u*16")
    make_tag(vTagC, vT + 2, vT + 3)
    a(f"s_mov_b32 s{sT3}, s{sT}")
    a(f"s_movk_i32 s{sT0}, 0xff00")
    a(f"s_lshl_b32 s{sT}, s{sWl}, 13")
    a(f"s_lshl_b32 s{sT+1}, s{sH}, 10")
    a(f"s_add_u32 s{sT}, s{sT}, s{sT+1}")
    a(f"v_lshl_add_u32 v{vOut}, v{vT+1}, 8, s{sT}", "output row of unit u")
    a(f"v_and_b32 v{vT}, 1, v{vG}")
    a(f"v_lshl_add_u32 v{vOut}, v{vT}, 5, v{vOut}")
    a(f"v_lshrrev_b32 v{vT}, 1, v{vG}")
    a(f"v_lshl_add_u32 v{vOut}, v{vT}, 4, v{vOut}")
    a(f"s_mov_b32 s{sQ}, s14", "output descriptor (same size as q)")
    a(f"s_mov_b32 s{sQ+1}, s15")
    a(f"s_mov_b32 s{sSpin}, 0")
    a(f"s_bfe_u32 s{sLo}, s{sMode}, 0x80008")
    a(f"s_lshr_b32 s{sHi}, s{sMode}, 16")
    a(f"s_cmp_ge_u32 s{sLo}, s{sHi}")
    a("s_cbranch_scc1 L_fin")
    a.label("L_slice")
    a(f"s_lshl_b32 s{sT}, s{sH}, 5")
    a(f"s_add_u32 s{sT}, s{sT}, s{sLo}")
    a(f"s_lshl_b32 s{sO0}, s{sT}, 13")
    a(f"s_add_u32 s{sO1}, s{sO0}, 4096")
    a(f"s_lshr_b32 s{sOut}, s{sLo}, 3")
    a(f"s_lshl_b32 s{sOut}, s{sOut}, 6")
    a(f"s_and_b32 s{sT}, s{sLo}, 7")
    a(f"s_lshl_b32 s{sT}, s{sT}, 1")
    a(f"s_add_u32 s{sOut}, s{sOut}, s{sT}", "slice 8g+j: d = 32g + 8r + j")
    a(f"s_mov_b64 s[{sM0}:{sM0+1}], -1")
    a(f"s_mov_b64 s[{sM1}:{sM1+1}], -1")
    def o_masked():
        a(f"s_wqm_b64 exec, s[{sM0}:{sM0+1}]")
        a(f"buffer_load_dwordx4 v[{FO}:{FO+3}], v{vOa}, s[{sWS}:{sWS+3}], s{sO0} offen sc1")
        a(f"s_wqm_b64 exec, s[{sM1}:{sM1+1}]")
        a(f"buffer_load_dwordx4 v[{FO+4}:{FO+7}], v{vOa}, s[{sWS}:{sWS+3}], s{sO1} offen sc1")
        a("s_mov_b64 exec, -1")
    def o_check():
        a(f"v_perm_b32 v{vT+2}, v{FO+3}, v{FO}, s{sT3}")
        a(f"v_perm_b32 v{vT+3}, v{FO+7}, v{FO+4}, s{sT3}")
        a(f"v_cmp_ne_u32 s[{sM0}:{sM0+1}], v{vT+2}, v{vTagC}")
        a(f"v_cmp_ne_u32 s[{sM1}:{sM1+1}], v{vT+3}, v{vTagC}")
    def ml_loads():
        a(f"buffer_load_dwordx4 v[{FM}:{FM+3}], v{vL16}, s[{sWS}:{sWS+3}], s{sMl} offen sc1")
        a(f"buffer_load_dwordx4 v[{FM+4}:{FM+7}], v{vL16}, s[{sWS}:{sWS+3}], s{sMl} offen offset:1024 sc1")
    a(f"s_lshr_b32 s{sT+3}, s{sExp}, 3")
    a(f"s_lshl_b32 s{sT+3}, s{sT+3}, 1", "the streamer signals twice per round")
    LATE = opts.get("late", "1") == "1"
    a(f"s_sub_u32 s{sT}, s{sT+3}, {0 if LATE else 1}")
    spin(C4, vT + 1, "L_s4a", f"s{sT}")
    a.c("poll the (max, sum) granules")
    a.label("L_mlpoll")
    ml_loads()
    if LATE:
        o_masked()
    a(f"s_add_u32 s{sSpin}, s{sSpin}, 1")
    a(f"s_cmp_ge_u32 s{sSpin}, 0x400000")
    a("s_cbranch_scc1 L_fin")
    a(f"s_waitcnt vmcnt({2 if LATE else 0})")
    a(f"v_cmp_ne_u32 vcc, s{sEp}, v{FM+2}")
    a(f"v_cmp_ne_u32 s[{sCm}:{sCm+1}], s{sNEp}, v{FM+3}")
    a(f"v_cmp_ne_u32 s[{sCm+2}:{sCm+3}], s{sEp}, v{FM+6}")
    a(f"v_cmp_ne_u32 s[{sCm+4}:{sCm+5}], s{sNEp}, v{FM+7}")
    a(f"v_max_f32 v{vT}, v{FM}, v{FM+4}")
    a(f"s_or_b64 vcc, vcc, s[{sCm}:{sCm+1}]")
    a(f"s_or_b64 vcc, vcc, s[{sCm+2}:{sCm+3}]")
    a(f"s_or_b64 vcc, vcc, s[{sCm+4}:{sCm+5}]")
    if LATE:
        a("s_cbranch_scc0 L_w")
        a("s_waitcnt vmcnt(0)")
        o_check()
        a("s_branch L_mlpoll")
        a.label("L_w")
    else:
        a("s_cbranch_scc1 L_mlpoll")
    a(f"v_max_f32_dpp v{vT}, v{vT}, v{vT} row_ror:4 {DPP}")
    a("s_nop 1")
    a(f"v_max_f32_dpp v{vT}, v{vT}, v{vT} row_ror:8 {DPP}")
    xreduce("v_max_f32", vT, vT + 1)
    a(f"v_sub_f32 v{FM}, v{FM}, v{vT}")
    a(f"v_sub_f32 v{FM+4}, v{FM+4}, v{vT}")
    a(f"v_exp_f32 v{FM}, v{FM}")
    a(f"v_exp_f32 v{FM+4}, v{FM+4}")
    a(f"v_mul_f32 v{vT}, v{FM}, v{FM+1}")
    a(f"v_fmac_f32 v{vT}, v{FM+4}, v{FM+5}")
    a("s_nop 1")
    a(f"v_add_f32_dpp v{vT}, v{vT}, v{vT} row_ror:4 {DPP}")
    a("s_nop 1")
    a(f"v_add_f32_dpp v{vT}, v{vT}, v{vT} row_ror:8 {DPP}")
    xreduce("v_add_f32", vT, vT + 1)
    a(f"v_rcp_f32 v{vT}, v{vT}")
    a("s_nop 0")
    a(f"v_mul_f32 v{FM}, v{FM}, v{vT}")
    a(f"v_mul_f32 v{FM+4}, v{FM+4}, v{vT}", "normalised weights of contributors c and 16+c")
    tick(9)
    if LATE:
        a("s_branch L_owait")
    else:
        spin(C4, vT + 1, "L_s4c", f"s{sT+3}")
    a.c("poll the 64-byte pieces that do not carry this launch's tag yet")
    a.label("L_opoll")
    if "slp" in opts:
        a(f"s_sleep {opts['slp']}")
    o_masked()
    a(f"s_add_u32 s{sSpin}, s{sSpin}, 1")
    a(f"s_cmp_ge_u32 s{sSpin}, 0x400000")
    a("s_cbranch_scc1 L_fin")
    a.label("L_owait")
    a("s_waitcnt vmcnt(0)")
    o_check()
    a(f"v_and_b32 v{FA}, s{sT0}, v{FO}", "drop the tag bytes")
    a(f"v_and_b32 v{FA+3}, s{sT0}, v{FO+3}")
    a(f"s_or_b64 vcc, s[{sM0}:{sM0+1}], s[{sM1}:{sM1+1}]")
    a("s_cbranch_scc1 L_opoll")
    a(f"v_and_b32 v{FO+4}, s{sT0}, v{FO+4}")
    a(f"v_and_b32 v{FO+7}, s{sT0}, v{FO+7}")
    a(f"v_mul_f32 v{FA}, v{FA}, v{FM}")
    a(f"v_mul_f32 v{FA+1}, v{FO+1}, v{FM}")
    a(f"v_mul_f32 v{FA+2}, v{FO+2}, v{FM}")
    a(f"v_mul_f32 v{FA+3}, v{FA+3}, v{FM}")
    a(f"v_pk_fma_f32 v[{FA}:{FA+1}], v[{FO+4}:{FO+5}], v[{FM+4}:{FM+5}], v[{FA}:{FA+1}] op_sel_hi:[1,0,1]")
    a(f"v_pk_fma_f32 v[{FA+2}:{FA+3}], v[{FO+6}:{FO+7}], v[{FM+4}:{FM+5}], v[{FA+2}:{FA+3}] op_sel_hi:[1,0,1]")
    a(f"s_add_u32 s{sLo}, s{sLo}, 1")
    a(f"v_permlane32_swap_b32 v{FA}, v{FA+1}")
    a(f"v_permlane32_swap_b32 v{FA+2}, v{FA+3}")
    a(f"v_add_f32 v{FA}, v{FA}, v{FA+1}")
    a(f"v_add_f32 v{FA+2}, v{FA+2}, v{FA+3}")
    a("s_nop 1")
    a(f"v_permlane16_swap_b32 v{FA}, v{FA+2}")
    a(f"s_cmp_lt_u32 s{sHi}, 32")
    a(f"v_add_f32 v{FA}, v{FA}, v{FA+2}")
    a("s_nop 1")
    a(f"v_add_f32_dpp v{FA}, v{FA}, v{FA} row_ror:4 {DPP}")
    a("s_nop 1")
    a(f"v_add_f32_dpp v{FA}, v{FA}, v{FA} row_ror:8 {DPP}")
    a("s_mov_b32 exec_lo, 0x000f000f")
    a("s_mov_b32 exec_hi, 0x000f000f")
    a(f"v_cvt_pk_bf16_f32 v{FA}, v{FA}, v{FA}")
    a(f"buffer_store_short v{FA}, v{vOut}, s[{sQ}:{sQ+3}], s{sOut} offen {OPOL}")
    if STAMP:
        a("s_mov_b64 exec, -1")
        tick(10)
        a("s_cbranch_scc1 L_fin")
    else:
        a("s_cbranch_scc0 L_next")
        a("s_endpgm")
        a.label("L_next")
    a("s_mov_b64 exec, -1")
    a(f"s_cmp_lt_u32 s{sLo}, s{sHi}")
    a("s_cbranch_scc1 L_slice")
    a.c("every workgroup of this head has read the epoch word: advance it for the next launch")
    a(f"s_lshl_b32 s{sT}, s{sH}, 7")
    a(f"s_add_u32 s{sT}, s{sT}, {WS_EP}")
    a(f"v_mov_b32 v{vT}, s{sT}")
    a(f"v_mov_b32 v{vT+1}, s{sEp}")
    a("s_mov_b64 exec, 1")
    a(f"buffer_store_dword v{vT+1}, v{vT}, s[{sWS}:{sWS+3}], 0 offen")
    a.label("L_fin")
    if STAMP:
        a("s_mov_b64 exec, -1")
        a("s_waitcnt vmcnt(0)")
        tick(11)
        a("s_mov_b64 exec, 0xffff")
        a(f"s_lshl_b32 s{sSt}, s2, 3")
        a(f"s_add_u32 s{sSt}, s{sSt}, s{sW}")
        a(f"s_lshl_b32 s{sSt}, s{sSt}, 7")
        a(f"s_add_u32 s{sSt}, s{sSt}, {16<<20}")
        a(f"v_mbcnt_lo_u32_b32 v{vX+2}, -1, 0")
        a(f"v_lshlrev_b32 v{vX+2}, 3, v{vX+2}")
        a(f"v_add_u32 v{vX+2}, s{sSt}, v{vX+2}")
        a(f"v_cmp_ne_u32 vcc, 0, v{vX}")
        a("s_and_b64 exec, exec, vcc")
        a(f"buffer_store_dwordx2 v[{vX}:{vX+1}], v{vX+2}, s[{sWS}:{sWS+3}], 0 offen")
    a.label("L_end")
    a("s_endpgm")

    a.label("L_mlslow")
    a(f"buffer_store_dwordx4 v[{vS}:{vS+3}], v{vT+4}, s[{sWS}:{sWS+3}], 0 offen sc1")
    a("s_branch L_mldone")
    a.label("L_slowo")
    tail("sc1")
    a("s_branch L_fin")
    a.label("L_notfast")
    a("s_cbranch_vccnz L_missing")
    a(f"s_or_b32 s{sMode}, s{sMode}, 1", "peers on another XCD: write-through hand-off")
    a(f"s_cmp_eq_u64 s[{sCm+4}:{sCm+5}], 0")
    a("s_cbranch_scc1 L_modeset")
    a(f"s_mov_b32 s{sMode}, 0x200001", "somebody left: finalise every slice")
    a("s_branch L_modeset")
    a.label("L_missing")
    a(f"s_add_u32 s{sSpin}, s{sSpin}, 1")
    a(f"s_cmp_ge_u32 s{sSpin}, 64")
    a("s_cbranch_scc1 L_leave")
    a(f"buffer_load_dwordx3 v[{FO}:{FO+2}], v{vOa}, s[{sWS}:{sWS+3}], s{sAr} offen sc1")
    a("s_branch L_look")
    a.label("L_leave")
    a.c("a workgroup of this head has not started yet: leave a mark, look again, then go or stay")
    a(f"s_lshl_b32 s{sT}, s{sI}, {ARS}")
    a(f"v_mov_b32 v{vT+1}, s{sT}")
    a(f"v_mov_b32 v{vT+4}, s{sEp}")
    a(f"v_mov_b32 v{vT+5}, s{sNEp}")
    a(f"v_mov_b32 v{vT+6}, 0x100")
    a("s_mov_b64 exec, 1")
    a(f"buffer_store_dwordx3 v[{vT+4}:{vT+6}], v{vT+1}, s[{sWS}:{sWS+3}], s{sAr} offen sc1")
    a("s_mov_b64 exec, -1")
    a("s_waitcnt vmcnt(0)")
    a(f"buffer_load_dwordx3 v[{FO}:{FO+2}], v{vOa}, s[{sWS}:{sWS+3}], s{sAr} offen sc1")
    a("s_waitcnt vmcnt(0)")
    a(f"v_cmp_ne_u32 vcc, s{sEp}, v{FO}")
    a(f"v_cmp_ne_u32 s[{sCm}:{sCm+1}], s{sNEp}, v{FO+1}")
    a("s_nop 0")
    a(f"s_or_b64 vcc, vcc, s[{sCm}:{sCm+1}]")
    a(f"s_cselect_b32 s{sMode}, 1, 0x200001")
    a("s_branch L_modeset")
    for pr in range(2 * EV):
        a.label(f"L_vbad{pr}")
        for r in range(8):
            a(f"v_mov_b32 v{vV+8*pr+r}, 0")
        a(f"s_branch L_vgood{pr}")
    for hf in range(2):
        a.label(f"L_pagain{hf}")
        p_read(hf)
        a("s_waitcnt lgkmcnt(0)")
        a(f"v_cmp_gt_u32 vcc, s{sExp}, v{vT+2}")
        a(f"s_cbranch_vccnz L_pagain{hf}")
        a(f"s_branch L_pok{hf}")
    a.label("L_kmore")
    a("s_waitcnt lgkmcnt(0)")
    a("s_barrier", "second round (more than 32 referenced blocks): the streamers are done with this round's P")
    a(f"s_mov_b32 s{sMore}, 0")
    a(f"s_mov_b32 s{sBad}, 0")
    for k in range(2):
        pop_lc()
        wread(k)
    a("s_branch L_kround")
    a.label("L_vmore")
    a("s_waitcnt vmcnt(0) lgkmcnt(0)")
    for idx in range(8):
        perm1(63, idx)
    for j in range(8):
        mfma1(15, j)
    a("s_barrier")
    a(f"s_mov_b32 s{sMore}, 0")
    a(f"s_mov_b32 s{sRnd}, 1")
    a(f"s_mov_b32 s{sVal}, s{sVal+1}")
    a(f"s_mov_b32 s{sBad}, s{sVal+1}")
    a(f"v_mov_b32 v{vT+4}, v{vList}")
    a("s_nop 1")
    a(f"v_permlane32_swap_b32 v{vT+4}, v{vList}", "positions 32..63 -> lanes 0..31")
    a("s_nop 1")
    a(f"v_readlane_b32 s{sP}, v{vList}, 0")
    a(f"v_readlane_b32 s{sP+1}, v{vList}, 1")
    a(f"s_movk_i32 m0, {KB}")
    a(f"s_mov_b32 s{sK+2}, s{sKVB}")
    a("s_nop 3")
    for q in range(4):
        k_load(0, q)
    a("s_branch L_vround")
    if CW:
        a.lines.append(".if (. - L_pc) < (16384 + 100)")
        a.lines.append(".fill ((16384 + 100 - (. - L_pc)) / 4), 4, 0xbf810000")
        a.lines.append(".endif")
        a.label("L_codeend")

    head = HEADER + f"""; @launch grid=(256,1,1) block=(512,1,1) lds={LDS_BYTES}
.amdgcn_target "amdgcn-amd-amdhsa--gfx950"
.text
.globl {NAME}_kernel
.p2align 8
.type {NAME}_kernel,@function
"""
    tail = f""".section .rodata,"a"
.p2align 6
.amdhsa_kernel {NAME}_kernel
  .amdhsa_next_free_vgpr {NVGPR}
  .amdhsa_next_free_sgpr 102
  .amdhsa_accum_offset {NVGPR}
  .amdhsa_group_segment_fixed_size 0
  .amdhsa_kernarg_size 64
  .amdhsa_user_sgpr_count 2
  .amdhsa_user_sgpr_kernarg_segment_ptr 1
  .amdhsa_system_sgpr_workgroup_id_x 1
.end_amdhsa_kernel
"""
    return head + a.text() + tail

if __name__ == "__main__":
    opts = dict(kv.split("=", 1) for kv in sys.argv[2:])
    open(sys.argv[1], "w").write(gen(opts))
```

```python
import sys

NAME = "standalone__paged_block_table_kv_radixattention__decode"

class Asm:
    def __init__(self):
        self.lines = []
    def __call__(self, s="", c=None):
        s = s.strip()
        self.lines.append("    " + s + (f"    ; {c}" if c else ""))
    def label(self, n):
        self.lines.append(n + ":")
    def c(self, s):
        self.lines.append("    ; " + s)
    def text(self):
        return "\n".join(self.lines) + "\n"

KV_BYTES = 1280 * 32768
WS_ML = 2 << 20
WS_AR = WS_ML + 65536
WS_EP = WS_AR + 32768
NEG = "0xf149f2ca"
DPP = "row_mask:0xf bank_mask:0xf"

HEADER = """; Paged (block-table) GQA decode attention, B=4 H=32 Hkv=8 D=128, 1280 physical blocks of 16 tokens.
;
; and whether as a partial last block) in LDS and loads every referenced block once for all 4 sequences x 4 heads
; Hand-off stores are plain when all 32 workgroups of the head were seen on this XCD, write-through otherwise;
; a workgroup that cannot see all its peers running leaves its slice to the last starter (no co-residency needed).
"""

def gen(opts):
    def pol(k, d):
        return opts.get(k, d).replace("+", " ").replace("def", "")
    def flag(k, d):
        return opts.get(k, d) == "1"
    POL = opts.get("pol", "def")
    KPOL, VPOL = pol("kpol", POL), pol("vpol", opts.get("pol", "def"))
    OPOL = pol("opol", "def")
    PERM = opts.get("perm", "02135746")
    STAMP = flag("stamp", "0")
    LITE = flag("lite", "0")
    FORCE = opts.get("force", "")
    W = int(opts.get("w", "27"))
    WF = int(opts.get("wf", "24"))
    SLOW = int(opts.get("slow", "0x23"), 0)
    if "cmask" in opts:
        SLOW = sum(1 << int(PERM[c]) for c in range(8) if (int(opts["cmask"], 0) >> c) & 1)
    EV = int(opts.get("ev", "2"))
    IPA = int(opts.get("ipa", "28"))
    CHKB = int(opts.get("chkb", "5"))
    CW = flag("cw", "1")
    ARS = 4

    a = Asm()
    INV = 0
    KL = 1024
    C1 = 2048
    C2, C3, C4, C0, CQ, FLG = C1 + 4, C1 + 8, C1 + 12, C1 + 16, C1 + 20, C1 + 32
    ZENT = C1 + 64
    MX = 3072
    LS = MX + 256
    QL = 4096
    KB = 8192
    LDS_BYTES = KB + 131072
    PB = KB
    AL = MX + 512

    vA, vG, vN = 1, 2, 3
    vT = 4
    vX16, vZ = 14, 15
    vPa, vL16 = 16, 17
    vP = 20
    vKs = 36
    vKr = 40
    vM, vL, vC, vB4, vMx, vMw, vKl, vLane = 44, 45, 46, 47, 48, 49, 50, 51
    vW = 52
    vQ = 60
    vS = 76
    vTb = 76
    vInc = 84
    vKf = 108
    vOa, vMa, vOut, vTagC = 144, 145, 146, 147
    FM, FO, FA = 148, 156, 164
    vVo0, vVo1, vWo, vSig, vSa, vList = 40, 41, 42, 43, 44, 45
    vTag, vF = 18, 19
    vAcc = 48
    vV = 80
    vVt = 208
    vX = 240
    NVGPR = vX + 8 if STAMP else vX

    sK, sV, sQ, sWS = 20, 24, 28, 32
    sN = 36
    sH, sI, sW, sWl, sWb = 48, 49, 50, 51, 52
    sU, sRnd, sMore, sBad, sEp, sNEp, sXcc, sAr = 53, 54, 55, 56, 57, 58, 59, 60
    sSelLo, sSelHi, sExp = 61, 62, 63
    sRm = 64
    sCm = 72
    sP, sVal, sKVB = 80, 84, 86
    sM0, sM1 = 88, 90
    sT = 92
    sLc, sKb = 96, 97
    sJ = 64
    sSt = 98
    sLo, sHi, sSpin, sT0, sT3, sMode, sO0, sO1, sMl, sOut, sMl1 = 36, 37, 38, 39, 40, 41, 42, 43, 44, 45, 46

    def tick(idx):
        if not STAMP or (LITE and idx not in (8, 10, 11)):
            return
        a(f"s_memrealtime s[{sSt}:{sSt+1}]")
        a("s_waitcnt lgkmcnt(0)")
        a(f"v_writelane_b32 v{vX}, s{sSt}, {idx}")
        a(f"v_writelane_b32 v{vX+1}, s{sSt+1}, {idx}")
    def first_tick():
        if STAMP:
            a(f"v_mov_b32 v{vX}, 0")
            a(f"v_mov_b32 v{vX+1}, 0")
            a(f"v_writelane_b32 v{vX}, s{sSt+2}, 0")
            a(f"v_writelane_b32 v{vX+1}, s{sSt+3}, 0")
    def k_load(slot, q):
        a(f"buffer_load_dwordx4 v{vKs+q}, s[{sK}:{sK+3}], s{sP+slot} offen offset:{q*1024} {KPOL} lds")
    def v_load(k, slot, i):
        r = vV + 16 * (k & 7) + 4 * i
        a(f"buffer_load_dwordx4 v[{r}:{r+3}], v{vVo0 + (i>>1)}, s[{sV}:{sV+3}], s{sP+slot} offen offset:{2048*(i&1)} {VPOL}")
    def pop_lc():
        a(f"s_ff1_i32_b32 s{sT}, s{sU}", "next candidate (-1: none)")
        a(f"s_bitset0_b32 s{sU}, s{sT}")
        a(f"s_lshl_b32 s{sLc}, s{sT}, 4")
        a(f"s_addk_i32 s{sLc}, 128")
        a(f"s_cmp_lt_i32 s{sT}, 0")
        a(f"s_cselect_b32 s{sLc}, {ZENT}, s{sLc}")
    def make_tag(dst, vu, tmp):
        a(f"s_lshr_b32 s{sT}, s{sEp}, 8")
        a(f"s_addk_i32 s{sT}, 0x5a")
        a(f"v_mad_u32_u24 v{dst}, v{vu}, 37, s{sEp}")
        a(f"v_mad_u32_u24 v{tmp}, v{vu}, 59, s{sT}")
        a(f"s_mov_b32 s{sT}, 0x0c0c0400")
        a(f"v_perm_b32 v{dst}, v{tmp}, v{dst}, s{sT}")
    def xreduce(op, v, t):
        a(f"v_mov_b32 v{t}, v{v}")
        a("s_nop 1")
        a(f"v_permlane32_swap_b32 v{v}, v{t}")
        a("s_nop 0")
        a(f"{op} v{v}, v{v}, v{t}")
        a(f"v_mov_b32 v{t}, v{v}")
        a("s_nop 1")
        a(f"v_permlane16_swap_b32 v{v}, v{t}")
        a("s_nop 0")
        a(f"{op} v{v}, v{v}, v{t}")
    def signal(cnt, t):
        a(f"v_mov_b32 v{t}, 1")
        a("s_mov_b64 exec, 1")
        a(f"ds_add_u32 v{vZ}, v{t} offset:{cnt}")
        a("s_mov_b64 exec, -1")
    def spin(cnt, t, label, exp):
        a.label(label)
        if "spl" in opts:
            a(f"s_sleep {opts['spl']}")
        a(f"ds_read_b32 v{t}, v{vZ} offset:{cnt}")
        a("s_waitcnt lgkmcnt(0)")
        a(f"v_cmp_gt_u32 vcc, {exp}, v{t}")
        a(f"s_cbranch_vccnz {label}")
    def list_read():
        a(f"ds_read_b32 v{vP+4}, v{vZ} offset:{C0}")
        a(f"ds_read_b128 v[{vP}:{vP+3}], v{vL16}")
    def get_list(lbl):
        a("s_waitcnt lgkmcnt(0)")
        a(f"v_cmp_gt_u32 vcc, 4, v{vP+4}")
        a(f"s_cbranch_vccz {lbl}_ok", "the map was read after the counter showed it complete")
        a.label(f"{lbl}_again")
        list_read()
        a("s_waitcnt lgkmcnt(0)")
        a(f"v_cmp_gt_u32 vcc, 4, v{vP+4}")
        a(f"s_cbranch_vccnz {lbl}_again")
        a.label(f"{lbl}_ok")
        a(f"v_or3_b32 v{vP}, v{vP}, v{vP+1}, v{vP+2}")
        a(f"v_or_b32 v{vP}, v{vP}, v{vP+3}")
        a(f"v_cmp_ne_u32 vcc, 0, v{vP}")
        a("s_nop 0")
        a(f"s_lshr_b64 s[{sCm}:{sCm+1}], vcc, 8")
        a(f"s_bcnt1_i32_b32 s{sMore}, s{sCm}")
    def common_init():
        a(f"s_lshl_b32 s{sT}, s{sH}, 7")
        a(f"s_add_u32 s{sT}, s{sT}, {WS_EP}")
        a(f"s_load_dword s{sEp}, s[18:19], s{sT}")
        a(f"s_mov_b32 s{sWS}, s18")
        a(f"s_mov_b32 s{sWS+1}, s19")
        a(f"s_mov_b32 s{sWS+2}, {1 << 28}")
        a(f"s_mov_b32 s{sWS+3}, 0x20000")
        a(f"v_mov_b32 v{vZ}, 0")
        a(f"v_and_b32 v{vL16}, 0x3f0, v{vA}")
        a(f"s_mov_b32 s{sExp}, 4")

    a.label(f"{NAME}_kernel")
    a(f"s_load_dwordx2 s[{sK}:{sK+1}], s[0:1], 8")
    a("s_load_dwordx16 s[4:19], s[0:1], 0")
    if STAMP:
        a(f"s_memrealtime s[{sSt+2}:{sSt+3}]")
    a(f"v_lshlrev_b32 v{vA}, 4, v0")
    if CW:
        a(f"v_lshlrev_b32 v{vG}, 5, v0")
        a("s_getpc_b64 s[96:97]")
        a.label("L_pc")
        a(f"global_load_dword v{vP+15}, v{vG}, s[96:97] offset:100", "kernel text -> L2 (value unused)")
    a("s_cmpk_ge_u32 s2, 256")
    a("s_cbranch_scc1 L_end")
    a(f"v_readfirstlane_b32 s{sW}, v0")
    for r in range(4):
        a(f"v_mov_b32 v{vP+r}, 0")
    a(f"ds_write_b128 v{vA}, v[{vP}:{vP+3}]", "clear map, flags and counters")
    if PERM == "01234567":
        a(f"s_and_b32 s{sH}, s2, 7", "kv head")
    elif PERM == "70123456":
        a(f"s_sub_u32 s{sH}, s2, 1")
        a(f"s_and_b32 s{sH}, s{sH}, 7", "kv head")
    else:
        a(f"s_lshl_b32 s{sH}, s2, 2")
        a(f"s_lshr_b32 s{sH}, {hex(int(''.join(reversed(PERM)), 16))}, s{sH}")
        a(f"s_and_b32 s{sH}, s{sH}, 7", "kv head")
    a(f"s_lshr_b32 s{sI}, s2, 3", "workgroup index inside the head")
    if FORCE == "late":
        a(f"s_cmp_lg_u32 s{sI}, 5")
        a("s_cbranch_scc1 L_notlate")
        a("s_movk_i32 s3, 400")
        a.label("L_latespin")
        a("s_sleep 8")
        a("s_sub_u32 s3, s3, 1")
        a("s_cmp_lg_u32 s3, 0")
        a("s_cbranch_scc1 L_latespin")
        a.label("L_notlate")
    a(f"v_bfe_u32 v{vG}, v0, 4, 2")
    a(f"v_and_b32 v{vN}, 15, v0")
    a(f"s_lshr_b32 s{sW}, s{sW}, 6")
    a(f"v_xor_b32 v{vX16}, v{vN}, v{vG}")
    a(f"s_and_b32 s{sWl}, s{sW}, 3")
    a(f"v_lshlrev_b32 v{vX16}, 4, v{vX16}")
    a(f"s_lshl_b32 s{sT+3}, s{sH}, 8")
    a(f"v_lshl_add_u32 v{vKs}, v{vG}, 11, v{vX16}")
    a(f"s_lshl_b32 s{sP}, s{sI}, 15", "static blocks: physical 32*n + i, n = 0..7")
    a(f"v_add_u32 v{vKs}, s{sT+3}, v{vKs}")
    a(f"s_movk_i32 m0, {KB}")
    a(f"s_mov_b32 s{sK+2}, {KV_BYTES}")
    a(f"s_mov_b32 s{sK+3}, 0x20000")
    a(f"s_cmp_lt_u32 s{sW}, 4")
    a("s_waitcnt lgkmcnt(0)")
    a("s_cbranch_scc1 L_notable")
    a(f"global_load_dwordx4 v[{vTb}:{vTb+3}], v{vA}, s[10:11] offset:-4096")
    a(f"global_load_dwordx4 v[{vTb+4}:{vTb+7}], v{vA}, s[10:11]")
    a(f"s_load_dwordx4 s[{sN}:{sN+3}], s[12:13], 0")
    a.label("L_notable")
    a(f"s_cmp_eq_u32 s{sW}, 0")
    a("s_barrier")
    a("s_cbranch_scc0 L_other")

    if STAMP and not LITE:
        a(f"s_memrealtime s[{sSt}:{sSt+1}]")
    k_load(0, 0)
    for q in range(1, 4):
        a(f"v_xor_b32 v{vKs+q}, {64*q}, v{vKs}")
        a(f"v_add_u32 v{vKs+q}, {q*(8192-1024)}, v{vKs+q}")
        k_load(0, q)
    a("s_setprio 2")
    a(f"v_lshlrev_b32 v{vList}, 16, v{vA}", "lane n: n * 32 blocks")
    a(f"v_add_u32 v{vList}, s{sP}, v{vList}")
    a(f"s_mov_b32 s{sKVB}, s{sK+2}")
    a(f"s_mov_b64 s[{sVal}:{sVal+1}], -1")
    a(f"s_mov_b32 s{sRnd}, 0")
    a(f"s_add_u32 s{sP+1}, s{sP}, {32*32768}")
    a.label("L_vround")
    def vcc_mode():
        if WF < W:
            a(f"s_mov_b64 vcc, s[{sM1}:{sM1+1}]")
    def perm1(pr, idx):
        p = pr & 3
        r0 = vV + 8 * (pr & 15)
        w = idx >> 1
        a(f"v_perm_b32 v{vVt + 4*idx + p}, v{r0+4+w}, v{r0+w}, s{sSelHi if idx & 1 else sSelLo}")
    def mfma1(t, j):
        D = f"v[{vAcc+4*j}:{vAcc+4*j+3}]"
        pp = vP + 4 * (t & 1)
        a(f"v_mfma_f32_16x16x32_bf16 {D}, v[{vVt+4*j}:{vVt+4*j+3}], v[{pp}:{pp+3}], {D}")
    def ptile_read(t):
        pp = vP + 4 * (t & 1)
        a(f"ds_read_b128 v[{pp}:{pp+3}], v{vL16} offset:{PB + t*1024}")
    def p_read(hf):
        a(f"ds_read_b32 v{vT+2}, v{vZ} offset:{C2}")
        ptile_read(8 * hf)
        a(f"ds_read_b32 v{vT}, v{vSa} offset:{AL - KL + 256*hf}")
        if hf:
            a(f"ds_read_b32 v{vF}, v{vZ} offset:{FLG}")
    def fetch_p(hf):
        tick(13 if hf else 7)
        a("s_waitcnt lgkmcnt(0)")
        a(f"v_cmp_gt_u32 vcc, s{sExp}, v{vT+2}")
        a(f"s_cbranch_vccnz L_pagain{hf}")
        a.label(f"L_pok{hf}")
        a(f"s_add_u32 s{sExp}, s{sExp}, 4")
        if hf:
            a(f"v_readfirstlane_b32 s{sMode}, v{vF}")
        for r in range(0, 32, 2):
            a(f"v_pk_mul_f32 v[{vAcc+r}:{vAcc+r+1}], v[{vAcc+r}:{vAcc+r+1}], v[{vT}:{vT+1}] op_sel_hi:[1,0]")
        vcc_mode()
        if hf:
            tick(5)
    blocks = [("K", k) for k in range(8)] + [("V", k) for k in range(EV)] + [("K", k) for k in range(8, 32)] + [("V", k) for k in range(EV, 32)]
    bpos = {x: i for i, x in enumerate(blocks)}
    NL = 4 * len(blocks)
    IL = 4 * bpos[("K", 8)] - 6
    st = {"pairs": 0, "kl": 0, "list": False, "init": False, "p": 0, "pr": 0}
    def pair_done_at(pr):
        return 4 * bpos[("V", pr >> 1)] + 2 * (pr & 1) + 1
    def do_pair(pr):
        t = pr >> 2
        if pr < 2 * EV:
            a(f"s_bitcmp0_b32 s{sVal}, {pr >> 1}")
            a(f"s_cbranch_scc1 L_vbad{pr}")
            a.label(f"L_vgood{pr}")
        if (pr & 3) == 1 and t + 1 < 16 and t + 1 != 8:
            ptile_read(t + 1)
        if pr == 30:
            p_read(1)
        for idx in range(8):
            perm1(pr, idx)
        if (pr & 3) == 3:
            if t != 0 and t != 8:
                a(f"s_waitcnt lgkmcnt({4 if t == 7 else 1})")
            for j in range(8):
                mfma1(t, j)
    def retire(complete, final=False):
        if st["init"] and st["kl"] < 32 and 4 * bpos[("K", st["kl"])] + 3 <= complete:
            n = 0
            while st["kl"] < 32 and 4 * bpos[("K", st["kl"])] + 3 <= complete:
                st["kl"] += 1; n += 1
            a(f"v_add_u32 v{vSig}, {n}, v{vSig}")
            a(f"ds_write_b32 v{vSa}, v{vSig}", "K blocks landed")
        n = 0
        while st["p"] and st["pairs"] < 63 and pair_done_at(st["pairs"]) <= complete and (final or n < 1):
            if st["pairs"] == 32:
                a("s_nop 7")
                fetch_p(1)
            do_pair(st["pairs"])
            st["pairs"] += 1; n += 1
    best = -1
    for i in range(4, NL):
        kind, k = blocks[i >> 2]; q = i & 3
        slot = (i >> 2) & 3
        if q == 0:
            a(f"s_bitcmp1_b32 s{sVal}, {k}")
            if kind == "K":
                a(f"s_cselect_b32 s{sK+2}, s{sKVB}, 0")
                a(f"s_mov_b32 m0, {KB + k*4096}")
            else:
                a(f"s_cselect_b32 s{sV+2}, s{sKVB}, 0")
            if (i >> 2) + 1 < len(blocks):
                nk = blocks[(i >> 2) + 1][1]
                assert nk < 8 or st["list"]
                a(f"v_readlane_b32 s{sP + ((slot + 1) & 3)}, v{vList}, {nk}")
        if (i & 1) == 0:
            Wi = W
            for sw in opts.get("ws", "136:24,224:30").split(","):
                if sw and i >= int(sw.split(":")[0]):
                    Wi = int(sw.split(":")[1])
            if i + 2 > W:
                a(f"s_waitcnt vmcnt({Wi-2})")
                best = max(best, i + 1 - Wi)
            G4 = opts.get("g4", "0") == "1"
            if WF < W and i + 2 > WF and st["init"] and i < NL - int(opts.get("free", "120")) and (q == 0 or not G4):
                a(f"s_cbranch_vccz L_nw{i}")
                a(f"s_waitcnt vmcnt({WF-3 if G4 else WF-2})")
                a.label(f"L_nw{i}")
        if kind == "K":
            k_load(slot, q)
        else:
            assert k < 8 or st["pairs"] > 2 * (k - 8) + (q >> 1), (i, st)
            v_load(k, slot, q)
        if i == min(WF, W) - 1:
            a.c("set-up work, hidden behind the first loads")
            a(f"s_cmp_lg_u32 s{sRnd}, 0")
            a("s_cbranch_scc1 L_vinit")
            first_tick()
            if STAMP and not LITE:
                a("s_waitcnt lgkmcnt(0)")
                a(f"v_writelane_b32 v{vX}, s{sSt}, 9")
                a(f"v_writelane_b32 v{vX+1}, s{sSt+1}, 9")
            common_init()
            a(f"s_mov_b32 s{sV}, s8")
            a(f"s_mov_b32 s{sV+1}, s9")
            a(f"s_mov_b32 s{sV+3}, 0x20000")
            a(f"v_lshlrev_b32 v{vVo0}, 13, v{vG}")
            a(f"v_lshl_add_u32 v{vVo0}, v{vN}, 4, v{vVo0}")
            a(f"v_add_u32 v{vVo0}, s{sT+3}, v{vVo0}")
            a(f"v_add_u32 v{vVo1}, 4096, v{vVo0}")
            a(f"v_mov_b32 v{vSig}, 0")
            a(f"v_lshrrev_b32 v{vSa}, 2, v{vA}")
            a(f"v_add_u32 v{vSa}, {KL}, v{vSa}")
            a(f"s_mov_b32 s{sSelLo}, 0x05040100")
            a(f"s_mov_b32 s{sSelHi}, 0x07060302")
            a(f"s_lshl_b32 s{sT}, s{sH}, 18")
            a(f"s_lshl_b32 s{sT+1}, s{sI}, 8")
            a(f"s_add_u32 s{sT}, s{sT}, s{sT+1}")
            a(f"v_lshlrev_b32 v{vWo}, 16, v{vG}")
            a(f"v_lshl_add_u32 v{vWo}, v{vN}, 4, v{vWo}")
            a(f"v_add_u32 v{vWo}, s{sT}, v{vWo}", "hand-off piece of slice 8*g + j: + j*8192")
            for j in range(1, 8):
                a(f"s_mov_b32 s{sJ+j}, {j*8192}")
            for r in range(32):
                a(f"v_mov_b32 v{vAcc+r}, 0")
            a(f"s_mov_b32 s{sT0}, 0x07060500")
            a(f"s_mov_b32 s{sT3}, 0x07060501")
            a.c("byte offset of candidate l = lane: (32*l + ((i - (l & 0x38)) & 31)) << 15")
            a(f"v_lshrrev_b32 v{vT+5}, 4, v{vA}")
            a(f"v_and_b32 v{vT+6}, 0x38, v{vT+5}")
            a(f"v_sub_u32 v{vT+6}, s{sI}, v{vT+6}")
            a(f"v_and_b32 v{vT+6}, 31, v{vT+6}")
            a(f"v_lshl_add_u32 v{vT+6}, v{vT+5}, 5, v{vT+6}")
            a(f"v_lshlrev_b32 v{vT+6}, 15, v{vT+6}")
            if WF < W:
                a(f"s_lshr_b32 s{sT}, {SLOW}, s{sH}")
                a(f"s_bitcmp0_b32 s{sT}, 0")
                a(f"s_cselect_b64 s[{sM1}:{sM1+1}], -1, 0")
            a.label("L_vinit")
            vcc_mode()
            st["init"] = True
        if i == W:
            tick(2)
        if i == IL - 2:
            list_read()
        elif i == IL:
            a(f"s_cmp_lg_u32 s{sRnd}, 0")
            a("s_cbranch_scc1 L_vlist")
            tick(14)
            get_list("L_sl")
            a.c("position of candidate l: l < 8 static, else 8 + rank among the referenced ones; unreferenced -> lane 63")
            a(f"s_and_b32 s{sT}, vcc_lo, 0xff")
            a(f"s_and_b32 vcc_hi, vcc_hi, 0xff")
            a(f"s_or_b32 vcc_lo, vcc_lo, 0xff")
            a(f"v_mbcnt_lo_u32_b32 v{vT+4}, vcc_lo, 0")
            a(f"v_mbcnt_hi_u32_b32 v{vT+4}, vcc_hi, v{vT+4}")
            a(f"s_bfm_b64 s[{sVal}:{sVal+1}], s{sMore}, 8")
            a(f"v_cndmask_b32 v{vT+4}, 63, v{vT+4}, vcc")
            a(f"s_or_b32 s{sBad}, s{sVal}, s{sT}")
            a(f"v_lshlrev_b32 v{vT+4}, 2, v{vT+4}")
            a(f"s_or_b32 s{sVal}, s{sVal}, 0xff")
            a(f"ds_permute_b32 v{vList}, v{vT+4}, v{vT+6}")
            a(f"s_add_u32 s{sEp}, s{sEp}, 1")
            make_tag(vTag, vN, vT + 4)
            a("s_waitcnt lgkmcnt(0)")
            tick(3)
            vcc_mode()
            a.label("L_vlist")
            st["list"] = True
        elif i == 4 * bpos[("K", 8)]:
            a(f"s_mov_b32 s{sVal}, s{sBad}", "from here on unreferenced static blocks are skipped")
        if kind == "K" and k == IPA and q == 1:
            p_read(0)
        elif kind == "K" and k == IPA and q == 3:
            fetch_p(0); st["p"] = 1
        elif (i & 1) == 1:
            retire(best)
        if i == NL - 1 - int(opts.get("sml", "48")):
            signal(C4, vT + 3)
        if i == 4 * bpos[("K", 31)] + 3:
            tick(4)
    signal(C4, vT + 3)
    tick(15)
    retire(best, final=True)
    while st["pairs"] < 63:
        c = pair_done_at(st["pairs"])
        a(f"s_waitcnt vmcnt({NL - 1 - c})")
        retire(c, final=True)
    assert st["kl"] == 32
    a(f"s_cmp_gt_u32 s{sMore}, 24")
    a("s_cbranch_scc1 L_vmore")
    a(f"s_bitcmp1_b32 s{sMode}, 0")
    a("s_cbranch_scc1 L_slowo")
    def tail(sfx):
        a("s_waitcnt vmcnt(0) lgkmcnt(0)")
        for op in "p0 p1 p2 p3 M0 M1 p4 p5 M2 M3 p6 p7 M4 M5 S0 M6 M7 S1 S2 S3 S4 S5 S6 S7".split():
            j = int(op[1])
            if op[0] == "p":
                perm1(63, j)
            elif op[0] == "M":
                mfma1(15, j)
            else:
                R = vAcc + 4 * j
                a(f"v_perm_b32 v{R}, v{R}, v{vTag}, s{sT0}")
                a(f"v_perm_b32 v{R+3}, v{R+3}, v{vTag}, s{sT3}")
                a(f"buffer_store_dwordx4 v[{R}:{R+3}], v{vWo}, s[{sWS}:{sWS+3}], {'0' if j == 0 else 's%d' % (sJ + j)} offen {sfx}")
    tail("")
    tick(8)
    a("s_branch L_fin" if STAMP else "s_endpgm")

    a.label("L_other")
    a(f"s_cmp_ge_u32 s{sW}, 4")
    a("s_cbranch_scc1 L_cmain")
    if CW:
        a(f"v_lshlrev_b32 v{vT}, 1, v{vA}")
        a(f"v_add_u32 v{vT}, {16384 + 100 - 2048}, v{vT}")
        a(f"v_min_u32 v{vT}, (L_codeend - L_pc - 4), v{vT}")
        a(f"global_load_dword v{vT+1}, v{vT}, s[96:97]", "waves 1-3: rest of the kernel text -> L2")
    TW = opts.get("tw", "0")
    if TW != "0":
        a.c("wave 1 / wave 2 touch K / V so that address translations are resident before they are needed")
        a(f"s_cmp_eq_u32 s{sW}, 3")
        a("s_cbranch_scc1 L_end")
        a(f"s_cmp_eq_u32 s{sW}, 2")
        a(f"s_cselect_b32 s{sK}, s8, s{sK}")
        a(f"s_cselect_b32 s{sK+1}, s9, s{sK+1}")
        if TW == "x":
            a(f"s_mul_i32 s{sT}, s{sI}, {40 << 15}")
            a(f"v_mov_b32 v{vT}, s{sT+3}")
            a("s_mov_b64 exec, 1")
        else:
            a(f"v_and_b32 v{vT}, 63, v0")
            a(f"v_lshlrev_b32 v{vT}, 21, v{vT}")
            a(f"s_add_u32 s{sT}, s{sP}, s{sT+3}")
        a(f"buffer_load_dword v{vT+2}, v{vT}, s[{sK}:{sK+3}], s{sT} offen")
    a("s_endpgm")

    a.label("L_cmain")
    first_tick()
    a(f"v_mov_b32 v{vZ}, 0")
    a(f"v_lshrrev_b32 v{vT+8}, 2, v{vA}")
    a(f"v_and_b32 v{vKl}, 0xff, v{vT+8}")
    a(f"v_add_u32 v{vKl}, {KL}, v{vKl}")
    a(f"v_and_b32 v{vT+8}, 0x1fc, v{vT+8}", "first of this thread's four table columns")
    a(f"s_lshr_b32 s{sT}, s{sWl}, 1")
    a(f"s_lshl_b32 s{sT}, s{sT}, 2")
    a(f"v_mov_b32 v{vT+7}, s{sT}")
    a("s_waitcnt lgkmcnt(0)")
    tick(1)
    for b in range(4):
        a(f"s_min_i32 s{sT}, s{sN+b}, 0x2000")
        a(f"s_cmp_lt_i32 s{sN+b}, 1")
        a(f"s_cselect_b32 s{sN+b}, 0x2000, s{sT}", "context length clamped to 1..8192 (<= 0: all positions, equal scores)")
        a(f"s_cselect_b32 s{sT}, {hex(0x000f000f << (4*b))}, 0")
        if b == 0:
            a(f"s_mov_b32 s{sM0}, s{sT}")
        else:
            a(f"s_or_b32 s{sM0}, s{sM0}, s{sT}")
    a.c("increment per (sequence, column): 1 full block, 0x10000 partial last block, 0 beyond the context")
    for hh in range(2):
        a(f"s_cmp_lt_u32 s{sWl}, 2")
        a(f"s_cselect_b32 s{sT}, s{sN+2*hh}, s{sN+2*hh+1}")
        a(f"s_lshr_b32 s{sT+1}, s{sT}, 4")
        a(f"v_sub_u32 v{vT+4}, s{sT+1}, v{vT+8}")
        a(f"s_and_b32 s{sT}, s{sT}, 15")
        a(f"s_cselect_b32 s{sT}, 0x10000, 0")
        a(f"v_mov_b32 v{vT+5}, s{sT}")
        for e in range(4):
            a(f"v_cmp_eq_i32 s[{sCm+2*e}:{sCm+2*e+1}], {e}, v{vT+4}")
        for e in range(4):
            a(f"v_cmp_lt_i32 s[{sRm+2*e}:{sRm+2*e+1}], {e}, v{vT+4}")
        for e in range(4):
            a(f"v_cndmask_b32 v{vInc+4*hh+e}, 0, v{vT+5}, s[{sCm+2*e}:{sCm+2*e+1}]")
        for e in range(4):
            a(f"v_cndmask_b32 v{vInc+4*hh+e}, v{vInc+4*hh+e}, 1, s[{sRm+2*e}:{sRm+2*e+1}]")
    a(f"s_movk_i32 s{sT+2}, 0x3f0")
    a.c("inverse page map restricted to this workgroup's physical blocks")
    for hh in range(2):
        a(f"s_waitcnt vmcnt({1 - hh})")
        if hh == 0:
            tick(2)
        for e in range(4):
            p = vTb + 4 * hh + e
            t = vT + 4 + (e & 1)
            a(f"v_lshrrev_b32 v{t}, 8, v{p}")
            a(f"v_lshl_add_u32 v{t}, v{t}, 3, v{p}")
            a(f"v_lshrrev_b32 v{p}, 1, v{p}")
            a(f"v_and_b32 v{t}, 31, v{t}")
            a(f"v_and_or_b32 v{p}, v{p}, s{sT+2}, v{vT+7}")
            a(f"v_cmpx_eq_u32 vcc, s{sI}, v{t}")
            a(f"ds_add_u32 v{p}, v{vInc+4*hh+e} offset:{INV + 8*hh}")
            a("s_mov_b64 exec, -1")
    signal(C0, vT + 4)
    tick(14)
    a(f"s_mov_b32 s{sQ}, s4")
    a(f"s_mov_b32 s{sQ+1}, s5")
    a(f"s_mov_b32 s{sQ+2}, 32768")
    a(f"s_mov_b32 s{sQ+3}, 0x20000")
    a(f"s_lshl_b32 s{sT+1}, s{sWl}, 6")
    a(f"v_xor_b32 v{vT+6}, s{sT+1}, v{vX16}")
    a(f"v_lshl_add_u32 v{vT+6}, v{vG}, 8, v{vT+6}")
    a(f"s_lshl_b32 s{sT+1}, s{sH}, 10")
    a(f"s_lshl_b32 s{sT+2}, s{sWl}, 13")
    a(f"s_add_u32 s{sT+1}, s{sT+1}, s{sT+2}")
    a(f"s_lshl_b32 s{sT+2}, s{sWl}, 10")
    a(f"s_add_u32 m0, s{sT+2}, {QL}")
    common_init()
    a(f"buffer_load_dwordx4 v{vT+6}, s[{sQ}:{sQ+3}], s{sT+1} offen lds", "four query rows -> LDS")
    a(f"v_lshrrev_b32 v{vLane}, 4, v{vL16}")
    a(f"s_lshl_b32 s{sWb}, s{sWl}, 12")
    a(f"s_addk_i32 s{sWb}, {KB}")
    a(f"s_lshr_b32 s{sT}, s{sWl}, 1")
    a(f"s_lshl_b32 s{sT}, s{sT}, 10")
    a(f"s_and_b32 s{sT+1}, s{sWl}, 1")
    a(f"s_lshl_b32 s{sT+1}, s{sT+1}, 3")
    a(f"s_add_u32 s{sT}, s{sT}, s{sT+1}")
    a(f"v_add_u32 v{vPa}, s{sT}, v{vL16}", "P of position 4b+w: tile 2b + (w>>1), half w&1")
    a(f"v_lshlrev_b32 v{vT+4}, 8, v{vN}")
    a(f"v_add_u32 v{vT+4}, s{sWb}, v{vT+4}")
    for j in range(4):
        if j == 0:
            a(f"v_add_u32 v{vKr}, v{vX16}, v{vT+4}")
        else:
            a(f"v_xor_b32 v{vKr+j}, {64*j}, v{vKr}")
    a(f"v_and_b32 v{vB4}, 12, v{vN}")
    a(f"v_mov_b32 v{vM}, {NEG}")
    a(f"v_mov_b32 v{vL}, 0")
    a(f"v_lshlrev_b32 v{vMx}, 4, v{vN}")
    a(f"v_add_u32 v{vMx}, {MX}, v{vMx}")
    a(f"s_lshl_b32 s{sT}, s{sWl}, 2")
    a(f"v_add_u32 v{vMw}, s{sT}, v{vMx}")
    a(f"s_mov_b32 s{sM0+1}, s{sM0}")
    a(f"v_mov_b32 v{vC}, 0x3e0293ee", "log2(e)/sqrt(128)")
    a(f"v_cndmask_b32 v{vC}, v{vC}, 0, s[{sM0}:{sM0+1}]")
    a(f"s_and_b32 s{sT}, s{sN}, 15")
    for b in range(1, 4):
        a(f"s_and_b32 s{sT+1}, s{sN+b}, 15")
        a(f"s_lshl_b32 s{sT+1}, s{sT+1}, {4*b}")
        a(f"s_or_b32 s{sT}, s{sT}, s{sT+1}")
    a(f"v_lshrrev_b32 v{vT+4}, v{vB4}, s{sT}")
    a(f"v_and_b32 v{vT+4}, 15, v{vT+4}")
    a(f"v_lshlrev_b32 v{vT+5}, 2, v{vG}")
    a(f"v_sub_u32 v{vT+4}, v{vT+4}, v{vT+5}")
    for r in range(4):
        a(f"v_cmp_lt_i32 s[{sRm+2*r}:{sRm+2*r+1}], {r}, v{vT+4}", "token 4g+r inside the partial last block" if r == 0 else None)
    a(f"v_and_b32 v{vOa}, 0x1f0, v{vL16}", "arrival granule of workgroup lane&31")
    a(f"s_add_u32 s{sKb}, s{sWl}, 1")
    list_read()
    get_list("L_cl")
    a(f"v_mbcnt_lo_u32_b32 v{vT+4}, s{sCm}, 0")
    a(f"s_lshr_b32 s{sBad}, vcc_lo, s{sWl}")
    a(f"v_and_b32 v{vT+4}, 3, v{vT+4}")
    a(f"v_cmp_eq_u32 vcc, s{sWl}, v{vT+4}")
    a(f"s_andn2_b32 s{sBad}, 0x11, s{sBad}", "bit0 / bit4: first / second static block is not referenced")
    a(f"s_and_b32 s{sU}, vcc_lo, s{sCm}")
    tick(3)
    a("s_waitcnt vmcnt(0)", "Q rows have landed")
    signal(CQ, vT + 4)
    a(f"s_add_u32 s{sEp}, s{sEp}, 1", "hand-off epoch of this launch")
    a(f"s_not_b32 s{sNEp}, s{sEp}")
    a(f"s_getreg_b32 s{sXcc}, hwreg(HW_REG_XCC_ID, 0, 4)")
    a(f"s_lshl_b32 s{sAr}, s{sH}, {5 + ARS}")
    a(f"s_add_u32 s{sAr}, s{sAr}, {WS_AR}")
    a(f"s_cmp_lg_u32 s{sW}, 4")
    a("s_cbranch_scc1 L_noarr")
    a.c("arrival mark of this workgroup")
    a(f"s_lshl_b32 s{sT}, s{sI}, {ARS}")
    a(f"v_mov_b32 v{vT}, s{sT}")
    a(f"v_mov_b32 v{vS+16}, s{sEp}")
    a(f"v_mov_b32 v{vS+17}, s{sNEp}")
    a(f"v_mov_b32 v{vS+18}, s{sXcc}")
    a("s_mov_b64 exec, 1")
    a(f"buffer_store_dwordx3 v[{vS+16}:{vS+18}], v{vT}, s[{sWS}:{sWS+3}], s{sAr} offen sc1")
    a("s_mov_b64 exec, -1")
    a.label("L_noarr")
    spin(CQ, vT + 4, "L_sq", "4")

    def finish(b):
        if b < 2:
            a(f"s_bitcmp1_b32 s{sBad}, {4*b}")
            a(f"s_cbranch_scc0 L_good{b}")
            for r in range(4):
                a(f"v_mov_b32 v{vS+4*b+r}, 0")
            a.label(f"L_good{b}")
        wb_, b = b, b & 3
        a(f"v_and_b32 v{vT+4}, 0xffff, v{vW+wb_}")
        a(f"v_lshrrev_b32 v{vT+5}, 16, v{vW+wb_}")
        a(f"v_add_u32 v{vT+5}, v{vT+5}, v{vT+4}")
        a(f"v_cvt_f32_u32 v{vT+4}, v{vT+4}")
        a(f"v_cvt_f32_u32 v{vT+5}, v{vT+5}")
        a(f"v_log_f32 v{vT+4}, v{vT+4}")
        a(f"v_log_f32 v{vT+5}, v{vT+5}")
        a("s_nop 0")
        for r in range(4):
            a(f"v_cndmask_b32 v{vT+6+r}, v{vT+4}, v{vT+5}, s[{sRm+2*r}:{sRm+2*r+1}]")
        for r in range(4):
            a(f"v_fma_f32 v{vS+4*b+r}, v{vS+4*b+r}, v{vC}, v{vT+6+r}")
        src = vM if b == 0 else vT
        a(f"v_max3_f32 v{vT}, v{src}, v{vS+4*b}, v{vS+4*b+1}")
        a(f"v_max3_f32 v{vT}, v{vT}, v{vS+4*b+2}, v{vS+4*b+3}")
    def qk(b):
        f = vKf + 16 * (b & 1)
        sb = vS + 4 * (b & 3)
        for j in range(4):
            a(f"ds_read_b128 v[{f+4*j}:{f+4*j+3}], v{vKr+j} offset:{(b & 3)*16384}")
        for j in range(4):
            c = "0" if j == 0 else f"v[{sb}:{sb+3}]"
            a(f"s_waitcnt lgkmcnt({3-j})")
            a(f"v_mfma_f32_16x16x32_bf16 v[{sb}:{sb+3}], v[{f+4*j}:{f+4*j+3}], v[{vQ+4*j}:{vQ+4*j+3}], {c}")
        if b < 2:
            a("s_nop 5")
        finish(b)
    def wread(k):
        a(f"v_add_u32 v{vW+k}, s{sLc}, v{vB4}")
        a(f"ds_read_b32 v{vW+k}, v{vW+k}")

    a(f"s_lshl_b32 s{sLc}, s{sWl}, 4")
    a(f"v_add_u32 v{vW}, s{sLc}, v{vB4}")
    a(f"ds_read_b32 v{vW+1}, v{vW} offset:64")
    a(f"ds_read_b32 v{vW}, v{vW}")
    a(f"s_sub_u32 s{sT}, s{sWb}, {QL}")
    for j in range(4):
        a(f"v_subrev_u32 v{vT+j}, s{sT}, v{vKr+j}")
        a(f"ds_read_b128 v[{vQ+4*j}:{vQ+4*j+3}], v{vT+j}")
    a.label("L_kround")
    for k in range(2, 8):
        pop_lc()
        wread(k)
    a.c("scores: scale, add log2(multiplicity) of the (block, sequence) pair (-inf when masked), running max")
    def decide():
        a.c("wave 4 decides how this workgroup hands its partial results over")
        a.c("mode word: bit0 = write-through stores, bits 8..15 first slice, bits 16..23 end slice")
        a(f"s_cmp_lg_u32 s{sW}, 4")
        a("s_cbranch_scc1 L_decided")
        a(f"s_lshl_b32 s{sMode}, s{sI}, 8")
        a(f"s_add_u32 s{sT}, s{sI}, 1")
        a(f"s_lshl_b32 s{sT}, s{sT}, 16")
        a(f"s_or_b32 s{sMode}, s{sMode}, s{sT}")
        a(f"s_mov_b32 s{sSpin}, 0")
        a.label("L_look")
        a("s_waitcnt vmcnt(0)")
        if FORCE == "abandon":
            a(f"s_bitcmp1_b32 s{sI}, 0")
            a(f"s_cselect_b32 s{sT}, 0, -1")
            a(f"v_and_b32 v{FO}, s{sT}, v{FO}")
            a(f"v_and_b32 v{FO+1}, s{sT}, v{FO+1}")
        if FORCE == "all":
            a(f"v_or_b32 v{FO+2}, 0x100, v{FO+2}")
        a(f"v_cmp_ne_u32 vcc, s{sEp}, v{FO}")
        a(f"v_cmp_ne_u32 s[{sCm}:{sCm+1}], s{sNEp}, v{FO+1}")
        a(f"v_cmp_ne_u32 s[{sCm+2}:{sCm+3}], s{sXcc}, v{FO+2}")
        a(f"v_cmp_le_u32 s[{sCm+4}:{sCm+5}], 64, v{FO+2}")
        a(f"s_or_b64 vcc, vcc, s[{sCm}:{sCm+1}]")
        a(f"s_or_b64 s[{sCm+2}:{sCm+3}], s[{sCm+2}:{sCm+3}], vcc")
        a("s_cbranch_scc1 L_notfast")
        a.label("L_modeset")
        a(f"v_mov_b32 v{vT+1}, s{sMode}")
        a(f"ds_write_b32 v{vZ}, v{vT+1} offset:{FLG}")
        a.label("L_decided")
    for hf in range(2):
        for b in range(4 * hf, 4 * hf + 4):
            a.label(f"L_kw{b}")
            if "spl" in opts:
                a(f"s_sleep {opts['spl']}")
            a(f"ds_read_b32 v{vT+1}, v{vKl}")
            a("s_waitcnt lgkmcnt(0)")
            a(f"v_cmp_gt_u32 vcc, s{sKb}, v{vT+1}")
            a(f"s_cbranch_vccnz L_kw{b}")
            a(f"s_add_u32 s{sKb}, s{sKb}, 4")
            qk(b)
            if b == CHKB:
                a(f"s_cmp_lg_u32 s{sW}, 4")
                a("s_cbranch_scc1 L_nochk")
                a("s_waitcnt vmcnt(0)")
                a(f"buffer_load_dwordx3 v[{FO}:{FO+2}], v{vOa}, s[{sWS}:{sWS+3}], s{sAr} offen sc1")
                a.label("L_nochk")
        if hf:
            tick(4)
        xreduce("v_max_f32", vT, vT + 1)
        a(f"ds_write_b32 v{vMw}, v{vT}")
        signal(C1, vT + 1)
        for j in range(4):
            a(f"v_xor_b32 v{vKr+j}, 0x10000, v{vKr+j}", "other half of the K positions" if j == 0 else None)
        if hf:
            tick(13)
            decide()
        spin(C1, vT + 1, f"L_s1{hf}", f"s{sExp}")
        a(f"ds_read_b128 v[{vT+4}:{vT+7}], v{vMx}")
        a("s_waitcnt lgkmcnt(0)")
        a(f"v_max3_f32 v{vT}, v{vT+4}, v{vT+5}, v{vT+6}")
        a(f"v_max_f32 v{vT}, v{vT}, v{vT+7}", "workgroup-wide running row maximum")
        a(f"v_sub_f32 v{vT+2}, v{vM}, v{vT}")
        a(f"v_exp_f32 v{vT+2}, v{vT+2}")
        a(f"v_mov_b32 v{vM}, v{vT}")
        for e in range(0, 16, 2):
            a(f"v_pk_add_f32 v[{vS+e}:{vS+e+1}], v[{vS+e}:{vS+e+1}], v[{vT}:{vT+1}] op_sel_hi:[1,0] neg_lo:[0,1] neg_hi:[0,1]")
        a(f"v_mul_f32 v{vL}, v{vL}, v{vT+2}")
        a(f"ds_write_b32 v{vKl}, v{vT+2} offset:{AL - KL + 256*hf}")
        for e in range(16):
            a(f"v_exp_f32 v{vS+e}, v{vS+e}")
        for e in range(8):
            a(f"v_cvt_pk_bf16_f32 v{vP+e}, v{vS+2*e}, v{vS+2*e+1}")
        for b in range(4):
            a(f"ds_write_b64 v{vPa}, v[{vP+2*b}:{vP+2*b+1}] offset:{PB + (4*hf + b)*2048}")
        for stp in (8, 4, 2):
            for e in range(0, stp, 2):
                a(f"v_pk_add_f32 v[{vS+e}:{vS+e+1}], v[{vS+e}:{vS+e+1}], v[{vS+e+stp}:{vS+e+stp+1}]")
        a(f"v_add_f32 v{vS}, v{vS}, v{vS+1}")
        a(f"v_add_f32 v{vL}, v{vL}, v{vS}")
        if hf:
            a(f"v_mov_b32 v{vT}, v{vL}")
            xreduce("v_add_f32", vT, vT + 1)
            a(f"ds_write_b32 v{vMw}, v{vT} offset:{LS - MX}")
        signal(C2, vT + 1)
        spin(C2, vT + 1, f"L_s2{hf}", f"s{sExp}")
        a(f"s_add_u32 s{sExp}, s{sExp}, 4")
        tick(5 if hf else 6)
    a(f"s_cmp_gt_u32 s{sMore}, 24")
    a("s_cbranch_scc1 L_kmore")

    a.c("(max, sum) granules: [head][row group w][workgroup][4 rows]")
    a(f"s_lshl_b32 s{sMl}, s{sH}, 2")
    a(f"s_add_u32 s{sMl}, s{sMl}, s{sWl}")
    a(f"s_lshl_b32 s{sMl}, s{sMl}, 11")
    a(f"s_add_u32 s{sMl}, s{sMl}, {WS_ML}")
    a(f"s_lshl_b32 s{sT}, s{sI}, 6")
    a(f"s_add_u32 s{sT}, s{sT}, s{sMl}")
    a(f"v_and_b32 v{vT+4}, 0x30, v{vL16}")
    a(f"v_add_u32 v{vT+4}, s{sT}, v{vT+4}")
    a(f"v_mov_b32 v{vS}, v{vM}")
    a(f"v_mov_b32 v{vS+2}, s{sEp}")
    a(f"v_mov_b32 v{vS+3}, s{sNEp}")
    a(f"ds_read_b32 v{vT}, v{vZ} offset:{FLG}")
    a(f"ds_read_b128 v[{vS+4}:{vS+7}], v{vMx} offset:{LS - MX}")
    a("s_waitcnt lgkmcnt(0)")
    a(f"v_readfirstlane_b32 s{sMode}, v{vT}")
    a(f"v_add_f32 v{vS+4}, v{vS+4}, v{vS+5}")
    a(f"v_add_f32 v{vS+6}, v{vS+6}, v{vS+7}")
    a(f"v_add_f32 v{vS+1}, v{vS+4}, v{vS+6}")
    a(f"s_lshl_b32 s{sT}, s{sWl}, 2")
    a(f"s_lshl_b64 exec, 15, s{sT}", "each compute wave publishes four rows")
    a(f"s_bitcmp1_b32 s{sMode}, 0")
    a("s_cbranch_scc1 L_mlslow")
    a(f"buffer_store_dwordx4 v[{vS}:{vS+3}], v{vT+4}, s[{sWS}:{sWS+3}], 0 offen")
    a.label("L_mldone")
    a("s_mov_b64 exec, -1")
    a(f"v_lshrrev_b32 v{vT}, 2, v{vLane}")
    a(f"v_and_b32 v{vT+1}, 3, v{vLane}")
    a(f"v_add_u32 v{vT+2}, s{sT}, v{vT+1}", "unit u = 4*w + (lane&3)")
    a(f"v_lshlrev_b32 v{vOa}, 8, v{vT}")
    a(f"v_lshl_add_u32 v{vOa}, v{vT+2}, 4, v{vOa}", "c*256 + u*16")
    make_tag(vTagC, vT + 2, vT + 3)
    a(f"s_mov_b32 s{sT3}, s{sT}")
    a(f"s_movk_i32 s{sT0}, 0xff00")
    a(f"s_lshl_b32 s{sT}, s{sWl}, 13")
    a(f"s_lshl_b32 s{sT+1}, s{sH}, 10")
    a(f"s_add_u32 s{sT}, s{sT}, s{sT+1}")
    a(f"v_lshl_add_u32 v{vOut}, v{vT+1}, 8, s{sT}", "output row of unit u")
    a(f"v_and_b32 v{vT}, 1, v{vG}")
    a(f"v_lshl_add_u32 v{vOut}, v{vT}, 5, v{vOut}")
    a(f"v_lshrrev_b32 v{vT}, 1, v{vG}")
    a(f"v_lshl_add_u32 v{vOut}, v{vT}, 4, v{vOut}")
    a(f"s_mov_b32 s{sQ}, s14", "output descriptor (same size as q)")
    a(f"s_mov_b32 s{sQ+1}, s15")
    a(f"s_mov_b32 s{sSpin}, 0")
    a(f"s_bfe_u32 s{sLo}, s{sMode}, 0x80008")
    a(f"s_lshr_b32 s{sHi}, s{sMode}, 16")
    a(f"s_cmp_ge_u32 s{sLo}, s{sHi}")
    a("s_cbranch_scc1 L_fin")
    a.label("L_slice")
    a(f"s_lshl_b32 s{sT}, s{sH}, 5")
    a(f"s_add_u32 s{sT}, s{sT}, s{sLo}")
    a(f"s_lshl_b32 s{sO0}, s{sT}, 13")
    a(f"s_add_u32 s{sO1}, s{sO0}, 4096")
    a(f"s_lshr_b32 s{sOut}, s{sLo}, 3")
    a(f"s_lshl_b32 s{sOut}, s{sOut}, 6")
    a(f"s_and_b32 s{sT}, s{sLo}, 7")
    a(f"s_lshl_b32 s{sT}, s{sT}, 1")
    a(f"s_add_u32 s{sOut}, s{sOut}, s{sT}", "slice 8g+j: d = 32g + 8r + j")
    a(f"s_mov_b64 s[{sM0}:{sM0+1}], -1")
    a(f"s_mov_b64 s[{sM1}:{sM1+1}], -1")
    def o_masked():
        a(f"s_wqm_b64 exec, s[{sM0}:{sM0+1}]")
        a(f"buffer_load_dwordx4 v[{FO}:{FO+3}], v{vOa}, s[{sWS}:{sWS+3}], s{sO0} offen sc1")
        a(f"s_wqm_b64 exec, s[{sM1}:{sM1+1}]")
        a(f"buffer_load_dwordx4 v[{FO+4}:{FO+7}], v{vOa}, s[{sWS}:{sWS+3}], s{sO1} offen sc1")
        a("s_mov_b64 exec, -1")
    def o_check():
        a(f"v_perm_b32 v{vT+2}, v{FO+3}, v{FO}, s{sT3}")
        a(f"v_perm_b32 v{vT+3}, v{FO+7}, v{FO+4}, s{sT3}")
        a(f"v_cmp_ne_u32 s[{sM0}:{sM0+1}], v{vT+2}, v{vTagC}")
        a(f"v_cmp_ne_u32 s[{sM1}:{sM1+1}], v{vT+3}, v{vTagC}")
    def ml_loads():
        a(f"buffer_load_dwordx4 v[{FM}:{FM+3}], v{vL16}, s[{sWS}:{sWS+3}], s{sMl} offen sc1")
        a(f"buffer_load_dwordx4 v[{FM+4}:{FM+7}], v{vL16}, s[{sWS}:{sWS+3}], s{sMl} offen offset:1024 sc1")
    a(f"s_lshr_b32 s{sT+3}, s{sExp}, 3")
    a(f"s_lshl_b32 s{sT+3}, s{sT+3}, 1", "the streamer signals twice per round")
    LATE = opts.get("late", "1") == "1"
    a(f"s_sub_u32 s{sT}, s{sT+3}, {0 if LATE else 1}")
    spin(C4, vT + 1, "L_s4a", f"s{sT}")
    a.c("poll the (max, sum) granules")
    a.label("L_mlpoll")
    ml_loads()
    if LATE:
        o_masked()
    a(f"s_add_u32 s{sSpin}, s{sSpin}, 1")
    a(f"s_cmp_ge_u32 s{sSpin}, 0x400000")
    a("s_cbranch_scc1 L_fin")
    a(f"s_waitcnt vmcnt({2 if LATE else 0})")
    a(f"v_cmp_ne_u32 vcc, s{sEp}, v{FM+2}")
    a(f"v_cmp_ne_u32 s[{sCm}:{sCm+1}], s{sNEp}, v{FM+3}")
    a(f"v_cmp_ne_u32 s[{sCm+2}:{sCm+3}], s{sEp}, v{FM+6}")
    a(f"v_cmp_ne_u32 s[{sCm+4}:{sCm+5}], s{sNEp}, v{FM+7}")
    a(f"v_max_f32 v{vT}, v{FM}, v{FM+4}")
    a(f"s_or_b64 vcc, vcc, s[{sCm}:{sCm+1}]")
    a(f"s_or_b64 vcc, vcc, s[{sCm+2}:{sCm+3}]")
    a(f"s_or_b64 vcc, vcc, s[{sCm+4}:{sCm+5}]")
    if LATE:
        a("s_cbranch_scc0 L_w")
        a("s_waitcnt vmcnt(0)")
        o_check()
        a("s_branch L_mlpoll")
        a.label("L_w")
    else:
        a("s_cbranch_scc1 L_mlpoll")
    a(f"v_max_f32_dpp v{vT}, v{vT}, v{vT} row_ror:4 {DPP}")
    a("s_nop 1")
    a(f"v_max_f32_dpp v{vT}, v{vT}, v{vT} row_ror:8 {DPP}")
    xreduce("v_max_f32", vT, vT + 1)
    a(f"v_sub_f32 v{FM}, v{FM}, v{vT}")
    a(f"v_sub_f32 v{FM+4}, v{FM+4}, v{vT}")
    a(f"v_exp_f32 v{FM}, v{FM}")
    a(f"v_exp_f32 v{FM+4}, v{FM+4}")
    a(f"v_mul_f32 v{vT}, v{FM}, v{FM+1}")
    a(f"v_fmac_f32 v{vT}, v{FM+4}, v{FM+5}")
    a("s_nop 1")
    a(f"v_add_f32_dpp v{vT}, v{vT}, v{vT} row_ror:4 {DPP}")
    a("s_nop 1")
    a(f"v_add_f32_dpp v{vT}, v{vT}, v{vT} row_ror:8 {DPP}")
    xreduce("v_add_f32", vT, vT + 1)
    a(f"v_rcp_f32 v{vT}, v{vT}")
    a("s_nop 0")
    a(f"v_mul_f32 v{FM}, v{FM}, v{vT}")
    a(f"v_mul_f32 v{FM+4}, v{FM+4}, v{vT}", "normalised weights of contributors c and 16+c")
    tick(9)
    if LATE:
        a("s_branch L_owait")
    else:
        spin(C4, vT + 1, "L_s4c", f"s{sT+3}")
    a.c("poll the 64-byte pieces that do not carry this launch's tag yet")
    a.label("L_opoll")
    if "slp" in opts:
        a(f"s_sleep {opts['slp']}")
    o_masked()
    a(f"s_add_u32 s{sSpin}, s{sSpin}, 1")
    a(f"s_cmp_ge_u32 s{sSpin}, 0x400000")
    a("s_cbranch_scc1 L_fin")
    a.label("L_owait")
    a("s_waitcnt vmcnt(0)")
    o_check()
    a(f"v_and_b32 v{FA}, s{sT0}, v{FO}", "drop the tag bytes")
    a(f"v_and_b32 v{FA+3}, s{sT0}, v{FO+3}")
    a(f"s_or_b64 vcc, s[{sM0}:{sM0+1}], s[{sM1}:{sM1+1}]")
    a("s_cbranch_scc1 L_opoll")
    a(f"v_and_b32 v{FO+4}, s{sT0}, v{FO+4}")
    a(f"v_and_b32 v{FO+7}, s{sT0}, v{FO+7}")
    a(f"v_mul_f32 v{FA}, v{FA}, v{FM}")
    a(f"v_mul_f32 v{FA+1}, v{FO+1}, v{FM}")
    a(f"v_mul_f32 v{FA+2}, v{FO+2}, v{FM}")
    a(f"v_mul_f32 v{FA+3}, v{FA+3}, v{FM}")
    a(f"v_pk_fma_f32 v[{FA}:{FA+1}], v[{FO+4}:{FO+5}], v[{FM+4}:{FM+5}], v[{FA}:{FA+1}] op_sel_hi:[1,0,1]")
    a(f"v_pk_fma_f32 v[{FA+2}:{FA+3}], v[{FO+6}:{FO+7}], v[{FM+4}:{FM+5}], v[{FA+2}:{FA+3}] op_sel_hi:[1,0,1]")
    a(f"s_add_u32 s{sLo}, s{sLo}, 1")
    a(f"v_permlane32_swap_b32 v{FA}, v{FA+1}")
    a(f"v_permlane32_swap_b32 v{FA+2}, v{FA+3}")
    a(f"v_add_f32 v{FA}, v{FA}, v{FA+1}")
    a(f"v_add_f32 v{FA+2}, v{FA+2}, v{FA+3}")
    a("s_nop 1")
    a(f"v_permlane16_swap_b32 v{FA}, v{FA+2}")
    a(f"s_cmp_lt_u32 s{sHi}, 32")
    a(f"v_add_f32 v{FA}, v{FA}, v{FA+2}")
    a("s_nop 1")
    a(f"v_add_f32_dpp v{FA}, v{FA}, v{FA} row_ror:4 {DPP}")
    a("s_nop 1")
    a(f"v_add_f32_dpp v{FA}, v{FA}, v{FA} row_ror:8 {DPP}")
    a("s_mov_b32 exec_lo, 0x000f000f")
    a("s_mov_b32 exec_hi, 0x000f000f")
    a(f"v_cvt_pk_bf16_f32 v{FA}, v{FA}, v{FA}")
    a(f"buffer_store_short v{FA}, v{vOut}, s[{sQ}:{sQ+3}], s{sOut} offen {OPOL}")
    if STAMP:
        a("s_mov_b64 exec, -1")
        tick(10)
        a("s_cbranch_scc1 L_fin")
    else:
        a("s_cbranch_scc0 L_next")
        a("s_endpgm")
        a.label("L_next")
    a("s_mov_b64 exec, -1")
    a(f"s_cmp_lt_u32 s{sLo}, s{sHi}")
    a("s_cbranch_scc1 L_slice")
    a.c("every workgroup of this head has read the epoch word: advance it for the next launch")
    a(f"s_lshl_b32 s{sT}, s{sH}, 7")
    a(f"s_add_u32 s{sT}, s{sT}, {WS_EP}")
    a(f"v_mov_b32 v{vT}, s{sT}")
    a(f"v_mov_b32 v{vT+1}, s{sEp}")
    a("s_mov_b64 exec, 1")
    a(f"buffer_store_dword v{vT+1}, v{vT}, s[{sWS}:{sWS+3}], 0 offen")
    a.label("L_fin")
    if STAMP:
        a("s_mov_b64 exec, -1")
        a("s_waitcnt vmcnt(0)")
        tick(11)
        a("s_mov_b64 exec, 0xffff")
        a(f"s_lshl_b32 s{sSt}, s2, 3")
        a(f"s_add_u32 s{sSt}, s{sSt}, s{sW}")
        a(f"s_lshl_b32 s{sSt}, s{sSt}, 7")
        a(f"s_add_u32 s{sSt}, s{sSt}, {16<<20}")
        a(f"v_mbcnt_lo_u32_b32 v{vX+2}, -1, 0")
        a(f"v_lshlrev_b32 v{vX+2}, 3, v{vX+2}")
        a(f"v_add_u32 v{vX+2}, s{sSt}, v{vX+2}")
        a(f"v_cmp_ne_u32 vcc, 0, v{vX}")
        a("s_and_b64 exec, exec, vcc")
        a(f"buffer_store_dwordx2 v[{vX}:{vX+1}], v{vX+2}, s[{sWS}:{sWS+3}], 0 offen")
    a.label("L_end")
    a("s_endpgm")

    a.label("L_mlslow")
    a(f"buffer_store_dwordx4 v[{vS}:{vS+3}], v{vT+4}, s[{sWS}:{sWS+3}], 0 offen sc1")
    a("s_branch L_mldone")
    a.label("L_slowo")
    tail("sc1")
    a("s_branch L_fin")
    a.label("L_notfast")
    a("s_cbranch_vccnz L_missing")
    a(f"s_or_b32 s{sMode}, s{sMode}, 1", "peers on another XCD: write-through hand-off")
    a(f"s_cmp_eq_u64 s[{sCm+4}:{sCm+5}], 0")
    a("s_cbranch_scc1 L_modeset")
    a(f"s_mov_b32 s{sMode}, 0x200001", "somebody left: finalise every slice")
    a("s_branch L_modeset")
    a.label("L_missing")
    a(f"s_add_u32 s{sSpin}, s{sSpin}, 1")
    a(f"s_cmp_ge_u32 s{sSpin}, 64")
    a("s_cbranch_scc1 L_leave")
    a(f"buffer_load_dwordx3 v[{FO}:{FO+2}], v{vOa}, s[{sWS}:{sWS+3}], s{sAr} offen sc1")
    a("s_branch L_look")
    a.label("L_leave")
    a.c("a workgroup of this head has not started yet: leave a mark, look again, then go or stay")
    a(f"s_lshl_b32 s{sT}, s{sI}, {ARS}")
    a(f"v_mov_b32 v{vT+1}, s{sT}")
    a(f"v_mov_b32 v{vT+4}, s{sEp}")
    a(f"v_mov_b32 v{vT+5}, s{sNEp}")
    a(f"v_mov_b32 v{vT+6}, 0x100")
    a("s_mov_b64 exec, 1")
    a(f"buffer_store_dwordx3 v[{vT+4}:{vT+6}], v{vT+1}, s[{sWS}:{sWS+3}], s{sAr} offen sc1")
    a("s_mov_b64 exec, -1")
    a("s_waitcnt vmcnt(0)")
    a(f"buffer_load_dwordx3 v[{FO}:{FO+2}], v{vOa}, s[{sWS}:{sWS+3}], s{sAr} offen sc1")
    a("s_waitcnt vmcnt(0)")
    a(f"v_cmp_ne_u32 vcc, s{sEp}, v{FO}")
    a(f"v_cmp_ne_u32 s[{sCm}:{sCm+1}], s{sNEp}, v{FO+1}")
    a("s_nop 0")
    a(f"s_or_b64 vcc, vcc, s[{sCm}:{sCm+1}]")
    a(f"s_cselect_b32 s{sMode}, 1, 0x200001")
    a("s_branch L_modeset")
    for pr in range(2 * EV):
        a.label(f"L_vbad{pr}")
        for r in range(8):
            a(f"v_mov_b32 v{vV+8*pr+r}, 0")
        a(f"s_branch L_vgood{pr}")
    for hf in range(2):
        a.label(f"L_pagain{hf}")
        p_read(hf)
        a("s_waitcnt lgkmcnt(0)")
        a(f"v_cmp_gt_u32 vcc, s{sExp}, v{vT+2}")
        a(f"s_cbranch_vccnz L_pagain{hf}")
        a(f"s_branch L_pok{hf}")
    a.label("L_kmore")
    a("s_waitcnt lgkmcnt(0)")
    a("s_barrier", "second round (more than 32 referenced blocks): the streamers are done with this round's P")
    a(f"s_mov_b32 s{sMore}, 0")
    a(f"s_mov_b32 s{sBad}, 0")
    for k in range(2):
        pop_lc()
        wread(k)
    a("s_branch L_kround")
    a.label("L_vmore")
    a("s_waitcnt vmcnt(0) lgkmcnt(0)")
    for idx in range(8):
        perm1(63, idx)
    for j in range(8):
        mfma1(15, j)
    a("s_barrier")
    a(f"s_mov_b32 s{sMore}, 0")
    a(f"s_mov_b32 s{sRnd}, 1")
    a(f"s_mov_b32 s{sVal}, s{sVal+1}")
    a(f"s_mov_b32 s{sBad}, s{sVal+1}")
    a(f"v_mov_b32 v{vT+4}, v{vList}")
    a("s_nop 1")
    a(f"v_permlane32_swap_b32 v{vT+4}, v{vList}", "positions 32..63 -> lanes 0..31")
    a("s_nop 1")
    a(f"v_readlane_b32 s{sP}, v{vList}, 0")
    a(f"v_readlane_b32 s{sP+1}, v{vList}, 1")
    a(f"s_movk_i32 m0, {KB}")
    a(f"s_mov_b32 s{sK+2}, s{sKVB}")
    a("s_nop 3")
    for q in range(4):
        k_load(0, q)
    a("s_branch L_vround")
    if CW:
        a.lines.append(".if (. - L_pc) < (16384 + 100)")
        a.lines.append(".fill ((16384 + 100 - (. - L_pc)) / 4), 4, 0xbf810000")
        a.lines.append(".endif")
        a.label("L_codeend")

    head = HEADER + f"""; @launch grid=(256,1,1) block=(512,1,1) lds={LDS_BYTES}
.amdgcn_target "amdgcn-amd-amdhsa--gfx950"
.text
.globl {NAME}_kernel
.p2align 8
.type {NAME}_kernel,@function
"""
    tail = f""".section .rodata,"a"
.p2align 6
.amdhsa_kernel {NAME}_kernel
  .amdhsa_next_free_vgpr {NVGPR}
  .amdhsa_next_free_sgpr 102
  .amdhsa_accum_offset {NVGPR}
  .amdhsa_group_segment_fixed_size 0
  .amdhsa_kernarg_size 64
  .amdhsa_user_sgpr_count 2
  .amdhsa_user_sgpr_kernarg_segment_ptr 1
  .amdhsa_system_sgpr_workgroup_id_x 1
.end_amdhsa_kernel
"""
    return head + a.text() + tail

if __name__ == "__main__":
    opts = dict(kv.split("=", 1) for kv in sys.argv[2:])
    open(sys.argv[1], "w").write(gen(opts))
```

```python
import sys

NAME = "standalone__paged_block_table_kv_radixattention__decode"

class Asm:
    def __init__(self):
        self.lines = []
    def __call__(self, s="", c=None):
        s = s.strip()
        self.lines.append("    " + s + (f"    ; {c}" if c else ""))
    def label(self, n):
        self.lines.append(n + ":")
    def c(self, s):
        self.lines.append("    ; " + s)
    def text(self):
        return "\n".join(self.lines) + "\n"

KV_BYTES = 1280 * 32768
WS_ML = 2 << 20
WS_AR = WS_ML + 65536
WS_EP = WS_AR + 32768
NEG = "0xf149f2ca"
DPP = "row_mask:0xf bank_mask:0xf"

HEADER = """; Paged (block-table) GQA decode attention, B=4 H=32 Hkv=8 D=128, 1280 physical blocks of 16 tokens.
;
; and whether as a partial last block) in LDS and loads every referenced block once for all 4 sequences x 4 heads
; Hand-off stores are plain when all 32 workgroups of the head were seen on this XCD, write-through otherwise;
; a workgroup that cannot see all its peers running leaves its slice to the last starter (no co-residency needed).
"""

def gen(opts):
    def pol(k, d):
        return opts.get(k, d).replace("+", " ").replace("def", "")
    def flag(k, d):
        return opts.get(k, d) == "1"
    POL = opts.get("pol", "def")
    KPOL, VPOL = pol("kpol", POL), pol("vpol", opts.get("pol", "def"))
    OPOL = pol("opol", "def")
    PERM = opts.get("perm", "32107654")
    STAMP = flag("stamp", "0")
    LITE = flag("lite", "0")
    FORCE = opts.get("force", "")
    W = int(opts.get("w", "26"))
    WF = int(opts.get("wf", "23"))
    SLOW = int(opts.get("slow", "0x2a"), 0)
    if "cmask" in opts:
        SLOW = sum(1 << int(PERM[c]) for c in range(8) if (int(opts["cmask"], 0) >> c) & 1)
    EV = int(opts.get("ev", "6"))
    IPA = int(opts.get("ipa", "28"))
    CHKB = int(opts.get("chkb", "5"))
    CW = flag("cw", "1")
    ARS = 4

    a = Asm()
    MX = 0
    LS = MX + 256
    INV = 1024
    KL = 2048
    C1 = 3072
    C2, C3, C4, C0, CQ, FLG = C1 + 4, C1 + 8, C1 + 12, C1 + 16, C1 + 20, C1 + 32
    ZENT = C1 + 64 - INV
    QL = 4096
    KB = 8192
    LDS_BYTES = KB + 131072
    PB = KB
    AL = KL + 256

    vA, vG, vN = 1, 2, 3
    vT = 4
    vX16, vZ = 14, 15
    vPa, vL16 = 16, 17
    vP = 20
    vKs = 36
    vKr = 40
    vM, vL, vC, vB4, vMx, vMw, vKl, vLane = 44, 45, 46, 47, 48, 49, 50, 51
    vW = 52
    vQ = 60
    vS = 76
    vTb = 76
    vInc = 84
    vKf = 108
    vOa, vMa, vOut, vTagC = 144, 145, 146, 147
    FM, FO, FA = 148, 156, 164
    vVo0, vVo1, vWo, vSig, vSa, vList = 40, 41, 42, 43, 44, 45
    vTag, vF = 18, 19
    vAcc = 48
    vV = 80
    vVt = 208
    vX = 240
    NVGPR = vX + 8 if STAMP else vX

    sK, sV, sQ, sWS = 20, 24, 28, 32
    sN = 36
    sH, sI, sW, sWl, sWb = 48, 49, 50, 51, 52
    sU, sRnd, sMore, sBad, sEp, sNEp, sXcc, sAr = 53, 54, 55, 56, 57, 58, 59, 60
    sSelLo, sSelHi, sExp = 61, 62, 63
    sRm = 64
    sCm = 72
    sP, sVal, sKVB = 80, 84, 86
    sM0, sM1 = 88, 90
    sT = 92
    sLc, sKb = 96, 97
    sJ = 64
    sSt = 98
    sLo, sHi, sSpin, sT0, sT3, sMode, sO0, sO1, sMl, sOut, sMl1 = 36, 37, 38, 39, 40, 41, 42, 43, 44, 45, 46

    def tick(idx):
        if not STAMP or (LITE and idx not in (8, 10, 11)):
            return
        a(f"s_memrealtime s[{sSt}:{sSt+1}]")
        a("s_waitcnt lgkmcnt(0)")
        a(f"v_writelane_b32 v{vX}, s{sSt}, {idx}")
        a(f"v_writelane_b32 v{vX+1}, s{sSt+1}, {idx}")
    def first_tick():
        if STAMP:
            a(f"v_mov_b32 v{vX}, 0")
            a(f"v_mov_b32 v{vX+1}, 0")
            a(f"v_writelane_b32 v{vX}, s{sSt+2}, 0")
            a(f"v_writelane_b32 v{vX+1}, s{sSt+3}, 0")
    def k_load(slot, q):
        a(f"buffer_load_dwordx4 v{vKs+q}, s[{sK}:{sK+3}], s{sP+slot} offen offset:{q*1024} {KPOL} lds")
    def v_load(k, slot, i):
        r = vV + 16 * (k & 7) + 4 * i
        a(f"buffer_load_dwordx4 v[{r}:{r+3}], v{vVo0 + (i>>1)}, s[{sV}:{sV+3}], s{sP+slot} offen offset:{2048*(i&1)} {VPOL}")
    def pop_lc():
        a(f"s_ff1_i32_b32 s{sT}, s{sU}", "next candidate (-1: none)")
        a(f"s_bitset0_b32 s{sU}, s{sT}")
        a(f"s_lshl_b32 s{sLc}, s{sT}, 4")
        a(f"s_addk_i32 s{sLc}, 128")
        a(f"s_cmp_lt_i32 s{sT}, 0")
        a(f"s_cselect_b32 s{sLc}, {ZENT}, s{sLc}")
    def make_tag(dst, vu, tmp):
        a(f"s_lshr_b32 s{sT}, s{sEp}, 8")
        a(f"s_addk_i32 s{sT}, 0x5a")
        a(f"v_mad_u32_u24 v{dst}, v{vu}, 37, s{sEp}")
        a(f"v_mad_u32_u24 v{tmp}, v{vu}, 59, s{sT}")
        a(f"s_mov_b32 s{sT}, 0x0c0c0400")
        a(f"v_perm_b32 v{dst}, v{tmp}, v{dst}, s{sT}")
    def xreduce(op, v, t):
        a(f"v_mov_b32 v{t}, v{v}")
        a("s_nop 1")
        a(f"v_permlane32_swap_b32 v{v}, v{t}")
        a("s_nop 0")
        a(f"{op} v{v}, v{v}, v{t}")
        a(f"v_mov_b32 v{t}, v{v}")
        a("s_nop 1")
        a(f"v_permlane16_swap_b32 v{v}, v{t}")
        a("s_nop 0")
        a(f"{op} v{v}, v{v}, v{t}")
    def signal(cnt, t):
        a(f"v_mov_b32 v{t}, 1")
        a("s_mov_b64 exec, 1")
        a(f"ds_add_u32 v{vZ}, v{t} offset:{cnt}")
        a("s_mov_b64 exec, -1")
    def spin(cnt, t, label, exp):
        a.label(label)
        if "spl" in opts:
            a(f"s_sleep {opts['spl']}")
        a(f"ds_read_b32 v{t}, v{vZ} offset:{cnt}")
        a("s_waitcnt lgkmcnt(0)")
        a(f"v_cmp_gt_u32 vcc, {exp}, v{t}")
        a(f"s_cbranch_vccnz {label}")
    def list_read():
        a(f"ds_read_b32 v{vP+4}, v{vZ} offset:{C0}")
        a(f"ds_read_b128 v[{vP}:{vP+3}], v{vL16} offset:{INV}")
    def get_list(lbl):
        a("s_waitcnt lgkmcnt(0)")
        a(f"v_cmp_gt_u32 vcc, 4, v{vP+4}")
        a(f"s_cbranch_vccz {lbl}_ok", "the map was read after the counter showed it complete")
        a.label(f"{lbl}_again")
        list_read()
        a("s_waitcnt lgkmcnt(0)")
        a(f"v_cmp_gt_u32 vcc, 4, v{vP+4}")
        a(f"s_cbranch_vccnz {lbl}_again")
        a.label(f"{lbl}_ok")
        a(f"v_or3_b32 v{vP}, v{vP}, v{vP+1}, v{vP+2}")
        a(f"v_or_b32 v{vP}, v{vP}, v{vP+3}")
        a(f"v_cmp_ne_u32 vcc, 0, v{vP}")
        a("s_nop 0")
        a(f"s_lshr_b64 s[{sCm}:{sCm+1}], vcc, 8")
        a(f"s_bcnt1_i32_b32 s{sMore}, s{sCm}")
    def common_init():
        a(f"s_lshl_b32 s{sT}, s{sH}, 7")
        a(f"s_add_u32 s{sT}, s{sT}, {WS_EP}")
        a(f"s_load_dword s{sEp}, s[18:19], s{sT}")
        a(f"s_mov_b32 s{sWS}, s18")
        a(f"s_mov_b32 s{sWS+1}, s19")
        a(f"s_mov_b32 s{sWS+2}, {1 << 28}")
        a(f"s_mov_b32 s{sWS+3}, 0x20000")
        a(f"v_mov_b32 v{vZ}, 0")
        a(f"v_and_b32 v{vL16}, 0x3f0, v{vA}")
        a(f"s_mov_b32 s{sExp}, 4")

    a.label(f"{NAME}_kernel")
    a(f"s_load_dwordx2 s[{sK}:{sK+1}], s[0:1], 8")
    a("s_load_dwordx16 s[4:19], s[0:1], 0")
    if STAMP:
        a(f"s_memrealtime s[{sSt+2}:{sSt+3}]")
    CWM = int(opts.get("cwm", "32"))
    if CWM in (16, 32):
        a(f"v_lshlrev_b32 v{vG}, {CWM.bit_length()-1}, v0")
    else:
        a(f"v_mul_u32_u24 v{vG}, {CWM}, v0")
    a("s_getpc_b64 s[96:97]")
    a.label("L_pc")
    a(f"global_load_dword v{vP+15}, v{vG}, s[96:97] offset:104", "kernel text -> L2 (value unused)")
    a("s_cmpk_ge_u32 s2, 256")
    a("s_cbranch_scc1 L_end")
    a(f"v_readfirstlane_b32 s{sW}, v0")
    if PERM == "01234567":
        a(f"s_and_b32 s{sH}, s2, 7", "kv head")
    elif PERM == "32107654":
        a(f"s_xor_b32 s{sH}, s2, 3")
        a(f"s_and_b32 s{sH}, s{sH}, 7", "kv head")
    else:
        a(f"s_lshl_b32 s{sH}, s2, 2")
        a(f"s_lshr_b32 s{sH}, {hex(int(''.join(reversed(PERM)), 16))}, s{sH}")
        a(f"s_and_b32 s{sH}, s{sH}, 7", "kv head")
    a(f"s_lshr_b32 s{sI}, s2, 3", "workgroup index inside the head")
    if FORCE == "late":
        a(f"s_cmp_lg_u32 s{sI}, 5")
        a("s_cbranch_scc1 L_notlate")
        a("s_movk_i32 s3, 400")
        a.label("L_latespin")
        a("s_sleep 8")
        a("s_sub_u32 s3, s3, 1")
        a("s_cmp_lg_u32 s3, 0")
        a("s_cbranch_scc1 L_latespin")
        a.label("L_notlate")
    a(f"v_bfe_u32 v{vG}, v0, 4, 2")
    a(f"v_and_b32 v{vN}, 15, v0")
    a(f"v_lshlrev_b32 v{vA}, 4, v0")
    a(f"v_xor_b32 v{vX16}, v{vN}, v{vG}")
    a(f"s_cmp_lg_u32 s{sW}, 0")
    a(f"v_lshlrev_b32 v{vX16}, 4, v{vX16}")
    a("s_cbranch_scc1 L_nons")
    a(f"s_lshl_b32 s{sT+3}, s{sH}, 8")
    a(f"v_lshl_add_u32 v{vKs}, v{vG}, 11, v{vX16}")
    a(f"s_lshl_b32 s{sP+2}, s{sI}, 15", "static blocks: physical 32*n + i, n = 0..7")
    a(f"v_add_u32 v{vKs}, s{sT+3}, v{vKs}")
    a(f"s_movk_i32 s{sT}, 7168")
    a(f"s_movk_i32 m0, {KB}")
    a(f"v_xor_b32 v{vKs+2}, 128, v{vKs}")
    a(f"v_xor_b32 v{vKs+1}, 64, v{vKs}")
    a(f"v_add_u32 v{vKs+2}, 14336, v{vKs+2}")
    a(f"v_add_u32 v{vKs+1}, s{sT}, v{vKs+1}")
    a(f"v_xor_b32 v{vKs+3}, 64, v{vKs+2}")
    a(f"s_mov_b32 s{sK+2}, {KV_BYTES}")
    a(f"v_add_u32 v{vKs+3}, s{sT}, v{vKs+3}")
    a(f"s_mov_b32 s{sK+3}, 0x20000")
    a("s_waitcnt lgkmcnt(0)")
    if STAMP and not LITE:
        a(f"s_memrealtime s[{sSt}:{sSt+1}]")
    NB0 = 6
    assert 4 * NB0 <= W
    a.label("L_burst")
    for q in range(4):
        k_load(2, q)
    a("s_addk_i32 m0, 4096")
    a(f"s_add_u32 s{sP+2}, s{sP+2}, {32*32768}")
    a(f"s_cmpk_lt_u32 m0, {KB + NB0*4096}")
    a("s_cbranch_scc1 L_burst")
    a("s_branch L_smain")
    a.label("L_nons")
    a(f"s_cmpk_lt_u32 s{sW}, 256")
    a("s_cbranch_scc1 L_notable")
    a("s_waitcnt lgkmcnt(0)")
    a(f"global_load_dwordx4 v[{vTb}:{vTb+3}], v{vA}, s[10:11] offset:-4096")
    a(f"global_load_dwordx4 v[{vTb+4}:{vTb+7}], v{vA}, s[10:11]")
    a(f"s_load_dwordx4 s[{sN}:{sN+3}], s[12:13], 0")
    a("s_branch L_cmain")
    a.label("L_notable")
    for r in range(4):
        a(f"v_mov_b32 v{vP+r}, 0")
    a(f"ds_write_b128 v{vA}, v[{vP}:{vP+3}]", "waves 1-3 clear map, flags and counters")
    if opts.get("cw2", "1") == "1":
        a(f"v_lshlrev_b32 v{vT}, 1, v{vA}")
        a(f"v_add_u32 v{vT}, {16384 + 104 - 2048}, v{vT}")
        a(f"v_min_u32 v{vT}, (L_codeend - L_pc - 4), v{vT}")
        a(f"global_load_dword v{vT+1}, v{vT}, s[96:97]", "waves 1-3: rest of the kernel text -> L2")
    a("s_waitcnt lgkmcnt(0)")
    a("s_barrier")
    a("s_endpgm")
    LB = True

    a.label("L_smain")
    a("s_barrier", "LDS flags have been cleared")
    a("s_setprio 2")
    a(f"s_lshl_b32 s{sT}, s{sI}, 15")
    a(f"v_lshlrev_b32 v{vList}, 16, v{vA}", "lane n: n * 32 blocks")
    a(f"v_add_u32 v{vList}, s{sT}, v{vList}")
    a(f"s_mov_b32 s{sKVB}, s{sK+2}")
    a(f"s_mov_b64 s[{sVal}:{sVal+1}], -1")
    a(f"s_mov_b32 s{sRnd}, 0")
    a.label("L_vround")
    def vcc_mode():
        if WF < W:
            a(f"s_mov_b64 vcc, s[{sM1}:{sM1+1}]")
    def perm1(pr, idx):
        p = pr & 3
        r0 = vV + 8 * (pr & 15)
        w = idx >> 1
        a(f"v_perm_b32 v{vVt + 4*idx + p}, v{r0+4+w}, v{r0+w}, s{sSelHi if idx & 1 else sSelLo}")
    def mfma1(t, j):
        D = f"v[{vAcc+4*j}:{vAcc+4*j+3}]"
        pp = vP + 4 * (t & 1)
        a(f"v_mfma_f32_16x16x32_bf16 {D}, v[{vVt+4*j}:{vVt+4*j+3}], v[{pp}:{pp+3}], {D}")
    def ptile_read(t):
        pp = vP + 4 * (t & 1)
        a(f"ds_read_b128 v[{pp}:{pp+3}], v{vL16} offset:{PB + t*1024}")
    def p_read(hf):
        a(f"ds_read_b32 v{vT+2}, v{vZ} offset:{C2}")
        ptile_read(8 * hf)
        a(f"ds_read_b32 v{vT}, v{vSa} offset:{AL - KL + 256*hf}")
        if hf:
            a(f"ds_read_b32 v{vF}, v{vZ} offset:{FLG}")
    def fetch_p(hf):
        tick(13 if hf else 7)
        a("s_waitcnt lgkmcnt(0)")
        a(f"v_cmp_gt_u32 vcc, s{sExp}, v{vT+2}")
        a(f"s_cbranch_vccnz L_pagain{hf}")
        a.label(f"L_pok{hf}")
        a(f"s_add_u32 s{sExp}, s{sExp}, 4")
        if hf:
            a(f"v_readfirstlane_b32 s{sMode}, v{vF}")
        for r in range(0, 32, 2):
            a(f"v_pk_mul_f32 v[{vAcc+r}:{vAcc+r+1}], v[{vAcc+r}:{vAcc+r+1}], v[{vT}:{vT+1}] op_sel_hi:[1,0]")
        vcc_mode()
        if hf:
            tick(5)
    blocks = [("K", k) for k in range(8)] + [("V", k) for k in range(EV)] + [("K", k) for k in range(8, 32)] + [("V", k) for k in range(EV, 32)]
    bpos = {x: i for i, x in enumerate(blocks)}
    NL = 4 * len(blocks)
    IL = 4 * bpos[("K", 8)] - 6
    st = {"pairs": 0, "kl": 0, "list": False, "init": False, "p": 0, "pr": 0}
    MM = opts.get("mm", "1") == "1"
    def pair_done_at(pr):
        return 4 * bpos[("V", pr >> 1)] + 2 * (pr & 1) + 1
    def do_pair(pr):
        t = pr >> 2
        if pr < 2 * EV:
            a(f"s_bitcmp0_b32 s{sVal}, {pr >> 1}")
            a(f"s_cbranch_scc1 L_vbad{pr}")
            a.label(f"L_vgood{pr}")
        if (pr & 3) == 1 and t + 1 < 16 and t + 1 != 8:
            ptile_read(t + 1)
        if pr == 30:
            p_read(1)
        if MM:
            if (pr & 3) == 0 and t > 0:
                if t != 1 and t != 9:
                    a(f"s_waitcnt lgkmcnt({4 if t == 8 else 1})")
                for idx in range(8):
                    mfma1(t - 1, idx)
                    perm1(pr, idx)
            else:
                for idx in range(8):
                    perm1(pr, idx)
            return
        for idx in range(8):
            perm1(pr, idx)
        if (pr & 3) == 3:
            if t != 0 and t != 8:
                a(f"s_waitcnt lgkmcnt({4 if t == 7 else 1})")
            for j in range(8):
                mfma1(t, j)
    def retire(complete, final=False):
        if st["init"] and st["kl"] < 32 and 4 * bpos[("K", st["kl"])] + 3 <= complete:
            n = 0
            while st["kl"] < 32 and 4 * bpos[("K", st["kl"])] + 3 <= complete:
                st["kl"] += 1; n += 1
            a(f"v_add_u32 v{vSig}, {n}, v{vSig}")
            a(f"ds_write_b32 v{vSa}, v{vSig}", "K blocks landed")
        n = 0
        while st["p"] and st["pairs"] < 63 and pair_done_at(st["pairs"]) <= complete and (final or n < 1):
            if st["pairs"] == (33 if MM else 32):
                a("s_nop 7")
                fetch_p(1)
            do_pair(st["pairs"])
            st["pairs"] += 1; n += 1
    best = -1
    for i in range(4 * NB0 - 1, NL):
        kind, k = blocks[i >> 2]; q = i & 3
        slot = (i >> 2) & 3
        if q == 0:
            a(f"s_bitcmp1_b32 s{sVal}, {k}")
            if kind == "K":
                a(f"s_cselect_b32 s{sK+2}, s{sKVB}, 0")
                a(f"s_mov_b32 m0, {KB + k*4096}")
            else:
                a(f"s_cselect_b32 s{sV+2}, s{sKVB}, 0")
            if (i >> 2) + 1 < len(blocks):
                nk = blocks[(i >> 2) + 1][1]
                assert nk < 8 or st["list"]
                a(f"v_readlane_b32 s{sP + ((slot + 1) & 3)}, v{vList}, {nk}")
        if (i & 1) == 0:
            Wi = W
            for sw in opts.get("ws", "136:23,224:30").split(","):
                if sw and i >= int(sw.split(":")[0]):
                    Wi = int(sw.split(":")[1])
            if i + 2 > W:
                a(f"s_waitcnt vmcnt({Wi-2})")
                best = max(best, i + 1 - Wi)
            G4 = opts.get("g4", "0") == "1"
            if WF < W and i + 2 > WF and st["init"] and i < NL - int(opts.get("free", "120")) and (q == 0 or not G4):
                a(f"s_cbranch_vccz L_nw{i}")
                a(f"s_waitcnt vmcnt({WF-3 if G4 else WF-2})")
                a.label(f"L_nw{i}")
        if i < 4 * NB0:
            pass
        elif kind == "K":
            k_load(slot, q)
        else:
            assert k < 8 or st["pairs"] > 2 * (k - 8) + (q >> 1), (i, st)
            v_load(k, slot, q)
        if i == max(4 * NB0, min(WF, W)) - 1:
            a.c("set-up work, hidden behind the first loads")
            a(f"s_cmp_lg_u32 s{sRnd}, 0")
            a("s_cbranch_scc1 L_vinit")
            first_tick()
            if STAMP and not LITE:
                a("s_waitcnt lgkmcnt(0)")
                a(f"v_writelane_b32 v{vX}, s{sSt}, 9")
                a(f"v_writelane_b32 v{vX+1}, s{sSt+1}, 9")
            common_init()
            a(f"s_mov_b32 s{sV}, s8")
            a(f"s_mov_b32 s{sV+1}, s9")
            a(f"s_mov_b32 s{sV+3}, 0x20000")
            a(f"v_lshlrev_b32 v{vVo0}, 13, v{vG}")
            a(f"v_lshl_add_u32 v{vVo0}, v{vN}, 4, v{vVo0}")
            a(f"v_add_u32 v{vVo0}, s{sT+3}, v{vVo0}")
            a(f"v_add_u32 v{vVo1}, 4096, v{vVo0}")
            a(f"v_mov_b32 v{vSig}, 0")
            a(f"v_lshrrev_b32 v{vSa}, 2, v{vA}")
            a(f"v_add_u32 v{vSa}, {KL}, v{vSa}")
            a(f"s_mov_b32 s{sSelLo}, 0x05040100")
            a(f"s_mov_b32 s{sSelHi}, 0x07060302")
            a(f"s_lshl_b32 s{sT}, s{sH}, 18")
            a(f"s_lshl_b32 s{sT+1}, s{sI}, 8")
            a(f"s_add_u32 s{sT}, s{sT}, s{sT+1}")
            a(f"v_lshlrev_b32 v{vWo}, 16, v{vG}")
            a(f"v_lshl_add_u32 v{vWo}, v{vN}, 4, v{vWo}")
            a(f"v_add_u32 v{vWo}, s{sT}, v{vWo}", "hand-off piece of slice 8*g + j: + j*8192")
            for j in range(1, 8):
                a(f"s_mov_b32 s{sJ+j}, {j*8192}")
            for r in range(32):
                a(f"v_mov_b32 v{vAcc+r}, 0")
            a(f"s_mov_b32 s{sT0}, 0x07060500")
            a(f"s_mov_b32 s{sT3}, 0x07060501")
            a.c("byte offset of candidate l = lane: (32*l + ((i - (l & 0x38)) & 31)) << 15")
            a(f"v_lshrrev_b32 v{vT+5}, 4, v{vA}")
            a(f"v_and_b32 v{vT+6}, 0x38, v{vT+5}")
            a(f"v_sub_u32 v{vT+6}, s{sI}, v{vT+6}")
            a(f"v_and_b32 v{vT+6}, 31, v{vT+6}")
            a(f"v_lshl_add_u32 v{vT+6}, v{vT+5}, 5, v{vT+6}")
            a(f"v_lshlrev_b32 v{vT+6}, 15, v{vT+6}")
            if WF < W:
                a(f"s_lshr_b32 s{sT}, {SLOW}, s{sH}")
                a(f"s_bitcmp0_b32 s{sT}, 0")
                a(f"s_cselect_b64 s[{sM1}:{sM1+1}], -1, 0")
            a.label("L_vinit")
            vcc_mode()
            st["init"] = True
        if i == W:
            tick(2)
        if i == IL - 2:
            list_read()
        elif i == IL:
            a(f"s_cmp_lg_u32 s{sRnd}, 0")
            a("s_cbranch_scc1 L_vlist")
            tick(14)
            get_list("L_sl")
            a.c("position of candidate l: l < 8 static, else 8 + rank among the referenced ones; unreferenced -> lane 63")
            a(f"s_and_b32 s{sT}, vcc_lo, 0xff")
            a(f"s_and_b32 vcc_hi, vcc_hi, 0xff")
            a(f"s_or_b32 vcc_lo, vcc_lo, 0xff")
            a(f"v_mbcnt_lo_u32_b32 v{vT+4}, vcc_lo, 0")
            a(f"v_mbcnt_hi_u32_b32 v{vT+4}, vcc_hi, v{vT+4}")
            a(f"s_bfm_b64 s[{sVal}:{sVal+1}], s{sMore}, 8")
            a(f"v_cndmask_b32 v{vT+4}, 63, v{vT+4}, vcc")
            a(f"s_or_b32 s{sBad}, s{sVal}, s{sT}")
            a(f"v_lshlrev_b32 v{vT+4}, 2, v{vT+4}")
            a(f"s_or_b32 s{sVal}, s{sVal}, 0xff")
            a(f"ds_permute_b32 v{vList}, v{vT+4}, v{vT+6}")
            a(f"s_add_u32 s{sEp}, s{sEp}, 1")
            make_tag(vTag, vN, vT + 4)
            a("s_waitcnt lgkmcnt(0)")
            tick(3)
            vcc_mode()
            a.label("L_vlist")
            st["list"] = True
        elif i == 4 * bpos[("K", 8)]:
            a(f"s_mov_b32 s{sVal}, s{sBad}", "from here on unreferenced static blocks are skipped")
        if kind == "K" and k == IPA and q == 1:
            p_read(0)
        elif kind == "K" and k == IPA and q == 3:
            fetch_p(0); st["p"] = 1
        elif (i & 1) == 1:
            retire(best)
        if i == NL - 1 - int(opts.get("sml", "48")) and opts.get("late", "1") != "1":
            signal(C4, vT + 3)
        if i == 4 * bpos[("K", 31)] + 3:
            tick(4)
    signal(C4, vT + 3)
    tick(15)
    retire(best, final=True)
    while st["pairs"] < 63:
        c = pair_done_at(st["pairs"])
        a(f"s_waitcnt vmcnt({NL - 1 - c})")
        retire(c, final=True)
    assert st["kl"] == 32
    a(f"s_cmp_gt_u32 s{sMore}, 24")
    a("s_cbranch_scc1 L_vmore")
    a(f"s_bitcmp1_b32 s{sMode}, 0")
    a("s_cbranch_scc1 L_slowo")
    def tail(sfx):
        a("s_waitcnt vmcnt(0) lgkmcnt(0)")
        for op in "p0 p1 p2 p3 M0 M1 p4 p5 M2 M3 p6 p7 M4 M5 S0 M6 M7 S1 S2 S3 S4 S5 S6 S7".split():
            j = int(op[1])
            if op[0] == "p":
                perm1(63, j)
            elif op[0] == "M":
                mfma1(15, j)
            else:
                R = vAcc + 4 * j
                a(f"v_perm_b32 v{R}, v{R}, v{vTag}, s{sT0}")
                a(f"v_perm_b32 v{R+3}, v{R+3}, v{vTag}, s{sT3}")
                a(f"buffer_store_dwordx4 v[{R}:{R+3}], v{vWo}, s[{sWS}:{sWS+3}], {'0' if j == 0 else 's%d' % (sJ + j)} offen {sfx}")
    tail("")
    tick(8)
    if opts.get("wb", "0") == "1":
        a("s_waitcnt vmcnt(0)")
        a("buffer_wbl2 sc1")
    a("s_branch L_fin" if STAMP else "s_endpgm")

    a.label("L_cmain")
    a("s_barrier")
    a(f"s_lshr_b32 s{sW}, s{sW}, 6")
    a(f"s_and_b32 s{sWl}, s{sW}, 3")
    first_tick()
    a(f"v_mov_b32 v{vZ}, 0")
    a(f"v_lshrrev_b32 v{vT+8}, 2, v{vA}")
    a(f"v_and_b32 v{vKl}, 0xff, v{vT+8}")
    a(f"v_add_u32 v{vKl}, {KL}, v{vKl}")
    a(f"v_and_b32 v{vT+8}, 0x1fc, v{vT+8}", "first of this thread's four table columns")
    a(f"s_lshr_b32 s{sT}, s{sWl}, 1")
    a(f"s_lshl_b32 s{sT}, s{sT}, 2")
    a(f"v_mov_b32 v{vT+7}, s{sT}")
    a("s_waitcnt lgkmcnt(0)")
    tick(1)
    for b in range(4):
        a(f"s_min_i32 s{sT}, s{sN+b}, 0x2000")
        a(f"s_cmp_lt_i32 s{sN+b}, 1")
        a(f"s_cselect_b32 s{sN+b}, 0x2000, s{sT}", "context length clamped to 1..8192 (<= 0: all positions, equal scores)")
        a(f"s_cselect_b32 s{sT}, {hex(0x000f000f << (4*b))}, 0")
        if b == 0:
            a(f"s_mov_b32 s{sM0}, s{sT}")
        else:
            a(f"s_or_b32 s{sM0}, s{sM0}, s{sT}")
    a.c("increment per (sequence, column): 1 full block, 0x10000 partial last block, 0 beyond the context")
    for hh in range(2):
        a(f"s_cmp_lt_u32 s{sWl}, 2")
        a(f"s_cselect_b32 s{sT}, s{sN+2*hh}, s{sN+2*hh+1}")
        a(f"s_lshr_b32 s{sT+1}, s{sT}, 4")
        a(f"v_sub_u32 v{vT+4}, s{sT+1}, v{vT+8}")
        a(f"s_and_b32 s{sT}, s{sT}, 15")
        a(f"s_cselect_b32 s{sT}, 0x10000, 0")
        a(f"v_mov_b32 v{vT+5}, s{sT}")
        for e in range(4):
            a(f"v_cmp_eq_i32 s[{sCm+2*e}:{sCm+2*e+1}], {e}, v{vT+4}")
        for e in range(4):
            a(f"v_cmp_lt_i32 s[{sRm+2*e}:{sRm+2*e+1}], {e}, v{vT+4}")
        for e in range(4):
            a(f"v_cndmask_b32 v{vInc+4*hh+e}, 0, v{vT+5}, s[{sCm+2*e}:{sCm+2*e+1}]")
        for e in range(4):
            a(f"v_cndmask_b32 v{vInc+4*hh+e}, v{vInc+4*hh+e}, 1, s[{sRm+2*e}:{sRm+2*e+1}]")
    a(f"s_movk_i32 s{sT+2}, 0x3f0")
    a.c("inverse page map restricted to this workgroup's physical blocks")
    for hh in range(2):
        a(f"s_waitcnt vmcnt({1 - hh})")
        if hh == 0:
            tick(2)
        for e in range(4):
            p = vTb + 4 * hh + e
            t = vT + 4 + (e & 1)
            a(f"v_lshrrev_b32 v{t}, 8, v{p}")
            a(f"v_lshl_add_u32 v{t}, v{t}, 3, v{p}")
            a(f"v_lshrrev_b32 v{p}, 1, v{p}")
            a(f"v_and_b32 v{t}, 31, v{t}")
            a(f"v_and_or_b32 v{p}, v{p}, s{sT+2}, v{vT+7}")
            a(f"v_cmpx_eq_u32 vcc, s{sI}, v{t}")
            a(f"ds_add_u32 v{p}, v{vInc+4*hh+e} offset:{INV + 8*hh}")
            a("s_mov_b64 exec, -1")
    signal(C0, vT + 4)
    tick(14)
    a(f"s_mov_b32 s{sQ}, s4")
    a(f"s_mov_b32 s{sQ+1}, s5")
    a(f"s_mov_b32 s{sQ+2}, 32768")
    a(f"s_mov_b32 s{sQ+3}, 0x20000")
    a(f"s_lshl_b32 s{sT+1}, s{sWl}, 6")
    a(f"v_xor_b32 v{vT+6}, s{sT+1}, v{vX16}")
    a(f"v_lshl_add_u32 v{vT+6}, v{vG}, 8, v{vT+6}")
    a(f"s_lshl_b32 s{sT+1}, s{sH}, 10")
    a(f"s_lshl_b32 s{sT+2}, s{sWl}, 13")
    a(f"s_add_u32 s{sT+1}, s{sT+1}, s{sT+2}")
    a(f"s_lshl_b32 s{sT+2}, s{sWl}, 10")
    a(f"s_add_u32 m0, s{sT+2}, {QL}")
    common_init()
    a(f"buffer_load_dwordx4 v{vT+6}, s[{sQ}:{sQ+3}], s{sT+1} offen lds", "four query rows -> LDS")
    a(f"v_lshrrev_b32 v{vLane}, 4, v{vL16}")
    a(f"s_lshl_b32 s{sWb}, s{sWl}, 12")
    a(f"s_addk_i32 s{sWb}, {KB}")
    a(f"s_lshr_b32 s{sT}, s{sWl}, 1")
    a(f"s_lshl_b32 s{sT}, s{sT}, 10")
    a(f"s_and_b32 s{sT+1}, s{sWl}, 1")
    a(f"s_lshl_b32 s{sT+1}, s{sT+1}, 3")
    a(f"s_add_u32 s{sT}, s{sT}, s{sT+1}")
    a(f"v_add_u32 v{vPa}, s{sT}, v{vL16}", "P of position 4b+w: tile 2b + (w>>1), half w&1")
    a(f"v_lshlrev_b32 v{vT+4}, 8, v{vN}")
    a(f"v_add_u32 v{vT+4}, s{sWb}, v{vT+4}")
    for j in range(4):
        if j == 0:
            a(f"v_add_u32 v{vKr}, v{vX16}, v{vT+4}")
        else:
            a(f"v_xor_b32 v{vKr+j}, {64*j}, v{vKr}")
    a(f"v_and_b32 v{vB4}, 12, v{vN}")
    a(f"v_mov_b32 v{vM}, {NEG}")
    a(f"v_mov_b32 v{vL}, 0")
    a(f"v_lshlrev_b32 v{vMx}, 4, v{vN}")
    a(f"s_lshl_b32 s{sT}, s{sWl}, 2")
    a(f"v_add_u32 v{vMw}, s{sT}, v{vMx}")
    a(f"s_mov_b32 s{sM0+1}, s{sM0}")
    a(f"v_mov_b32 v{vC}, 0x3e0293ee", "log2(e)/sqrt(128)")
    a(f"v_cndmask_b32 v{vC}, v{vC}, 0, s[{sM0}:{sM0+1}]")
    a(f"s_and_b32 s{sT}, s{sN}, 15")
    for b in range(1, 4):
        a(f"s_and_b32 s{sT+1}, s{sN+b}, 15")
        a(f"s_lshl_b32 s{sT+1}, s{sT+1}, {4*b}")
        a(f"s_or_b32 s{sT}, s{sT}, s{sT+1}")
    a(f"v_lshrrev_b32 v{vT+4}, v{vB4}, s{sT}")
    a(f"v_and_b32 v{vT+4}, 15, v{vT+4}")
    a(f"v_lshlrev_b32 v{vT+5}, 2, v{vG}")
    a(f"v_sub_u32 v{vT+4}, v{vT+4}, v{vT+5}")
    for r in range(4):
        a(f"v_cmp_lt_i32 s[{sRm+2*r}:{sRm+2*r+1}], {r}, v{vT+4}", "token 4g+r inside the partial last block" if r == 0 else None)
    a(f"v_and_b32 v{vOa}, 0x1f0, v{vL16}", "arrival granule of workgroup lane&31")
    a(f"s_add_u32 s{sKb}, s{sWl}, 1")
    list_read()
    get_list("L_cl")
    a(f"v_mbcnt_lo_u32_b32 v{vT+4}, s{sCm}, 0")
    a(f"s_lshr_b32 s{sBad}, vcc_lo, s{sWl}")
    a(f"v_and_b32 v{vT+4}, 3, v{vT+4}")
    a(f"v_cmp_eq_u32 vcc, s{sWl}, v{vT+4}")
    a(f"s_andn2_b32 s{sBad}, 0x11, s{sBad}", "bit0 / bit4: first / second static block is not referenced")
    a(f"s_and_b32 s{sU}, vcc_lo, s{sCm}")
    tick(3)
    a("s_waitcnt vmcnt(0)", "Q rows have landed")
    signal(CQ, vT + 4)
    a(f"s_add_u32 s{sEp}, s{sEp}, 1", "hand-off epoch of this launch")
    a(f"s_not_b32 s{sNEp}, s{sEp}")
    a(f"s_getreg_b32 s{sXcc}, hwreg(HW_REG_XCC_ID, 0, 4)")
    a(f"s_lshl_b32 s{sAr}, s{sH}, {5 + ARS}")
    a(f"s_add_u32 s{sAr}, s{sAr}, {WS_AR}")
    a(f"s_cmp_lg_u32 s{sW}, 4")
    a("s_cbranch_scc1 L_noarr")
    a.c("arrival mark of this workgroup")
    a(f"s_lshl_b32 s{sT}, s{sI}, {ARS}")
    a(f"v_mov_b32 v{vT}, s{sT}")
    a(f"v_mov_b32 v{vS+16}, s{sEp}")
    a(f"v_mov_b32 v{vS+17}, s{sNEp}")
    a(f"v_mov_b32 v{vS+18}, s{sXcc}")
    a("s_mov_b64 exec, 1")
    a(f"buffer_store_dwordx3 v[{vS+16}:{vS+18}], v{vT}, s[{sWS}:{sWS+3}], s{sAr} offen sc1")
    a("s_mov_b64 exec, -1")
    a.label("L_noarr")
    spin(CQ, vT + 4, "L_sq", "4")

    def finish(b):
        if b < 2:
            a(f"s_bitcmp1_b32 s{sBad}, {4*b}")
            a(f"s_cbranch_scc0 L_good{b}")
            for r in range(4):
                a(f"v_mov_b32 v{vS+4*b+r}, 0")
            a.label(f"L_good{b}")
        wb_, b = b, b & 3
        a(f"v_and_b32 v{vT+4}, 0xffff, v{vW+wb_}")
        a(f"v_lshrrev_b32 v{vT+5}, 16, v{vW+wb_}")
        a(f"v_add_u32 v{vT+5}, v{vT+5}, v{vT+4}")
        a(f"v_cvt_f32_u32 v{vT+4}, v{vT+4}")
        a(f"v_cvt_f32_u32 v{vT+5}, v{vT+5}")
        a(f"v_log_f32 v{vT+4}, v{vT+4}")
        a(f"v_log_f32 v{vT+5}, v{vT+5}")
        a("s_nop 0")
        for r in range(4):
            a(f"v_cndmask_b32 v{vT+6+r}, v{vT+4}, v{vT+5}, s[{sRm+2*r}:{sRm+2*r+1}]")
        for r in range(4):
            a(f"v_fma_f32 v{vS+4*b+r}, v{vS+4*b+r}, v{vC}, v{vT+6+r}")
        src = vM if b == 0 else vT
        a(f"v_max3_f32 v{vT}, v{src}, v{vS+4*b}, v{vS+4*b+1}")
        a(f"v_max3_f32 v{vT}, v{vT}, v{vS+4*b+2}, v{vS+4*b+3}")
    def qk(b):
        f = vKf + 16 * (b & 1)
        sb = vS + 4 * (b & 3)
        for j in range(4):
            a(f"ds_read_b128 v[{f+4*j}:{f+4*j+3}], v{vKr+j} offset:{(b & 3)*16384}")
        for j in range(4):
            c = "0" if j == 0 else f"v[{sb}:{sb+3}]"
            a(f"s_waitcnt lgkmcnt({3-j})")
            a(f"v_mfma_f32_16x16x32_bf16 v[{sb}:{sb+3}], v[{f+4*j}:{f+4*j+3}], v[{vQ+4*j}:{vQ+4*j+3}], {c}")
        if b < 2:
            a("s_nop 5")
        finish(b)
    def wread(k):
        a(f"v_add_u32 v{vW+k}, s{sLc}, v{vB4}")
        a(f"ds_read_b32 v{vW+k}, v{vW+k} offset:{INV}")

    a(f"s_lshl_b32 s{sLc}, s{sWl}, 4")
    a(f"v_add_u32 v{vW}, s{sLc}, v{vB4}")
    a(f"ds_read_b32 v{vW+1}, v{vW} offset:{INV + 64}")
    a(f"ds_read_b32 v{vW}, v{vW} offset:{INV}")
    a(f"s_sub_u32 s{sT}, s{sWb}, {QL}")
    for j in range(4):
        a(f"v_subrev_u32 v{vT+j}, s{sT}, v{vKr+j}")
        a(f"ds_read_b128 v[{vQ+4*j}:{vQ+4*j+3}], v{vT+j}")
    a.label("L_kround")
    for k in range(2, 8):
        pop_lc()
        wread(k)
    a.c("scores: scale, add log2(multiplicity) of the (block, sequence) pair (-inf when masked), running max")
    def decide():
        a.c("wave 4 decides how this workgroup hands its partial results over")
        a.c("mode word: bit0 = write-through stores, bits 8..15 first slice, bits 16..23 end slice")
        a(f"s_cmp_lg_u32 s{sW}, 4")
        a("s_cbranch_scc1 L_decided")
        a(f"s_lshl_b32 s{sMode}, s{sI}, 8")
        a(f"s_add_u32 s{sT}, s{sI}, 1")
        a(f"s_lshl_b32 s{sT}, s{sT}, 16")
        a(f"s_or_b32 s{sMode}, s{sMode}, s{sT}")
        a(f"s_mov_b32 s{sSpin}, 0")
        a.label("L_look")
        a("s_waitcnt vmcnt(0)")
        if FORCE == "abandon":
            a(f"s_bitcmp1_b32 s{sI}, 0")
            a(f"s_cselect_b32 s{sT}, 0, -1")
            a(f"v_and_b32 v{FO}, s{sT}, v{FO}")
            a(f"v_and_b32 v{FO+1}, s{sT}, v{FO+1}")
        if FORCE == "all":
            a(f"v_or_b32 v{FO+2}, 0x100, v{FO+2}")
        a(f"v_cmp_ne_u32 vcc, s{sEp}, v{FO}")
        a(f"v_cmp_ne_u32 s[{sCm}:{sCm+1}], s{sNEp}, v{FO+1}")
        a(f"v_cmp_ne_u32 s[{sCm+2}:{sCm+3}], s{sXcc}, v{FO+2}")
        a(f"v_cmp_le_u32 s[{sCm+4}:{sCm+5}], 64, v{FO+2}")
        a(f"s_or_b64 vcc, vcc, s[{sCm}:{sCm+1}]")
        a(f"s_or_b64 s[{sCm+2}:{sCm+3}], s[{sCm+2}:{sCm+3}], vcc")
        a("s_cbranch_scc1 L_notfast")
        a.label("L_modeset")
        a(f"v_mov_b32 v{vT+1}, s{sMode}")
        a(f"ds_write_b32 v{vZ}, v{vT+1} offset:{FLG}")
        a.label("L_decided")
    for hf in range(2):
        for b in range(4 * hf, 4 * hf + 4):
            a.label(f"L_kw{b}")
            if "spl" in opts:
                a(f"s_sleep {opts['spl']}")
            a(f"ds_read_b32 v{vT+1}, v{vKl}")
            a("s_waitcnt lgkmcnt(0)")
            a(f"v_cmp_gt_u32 vcc, s{sKb}, v{vT+1}")
            a(f"s_cbranch_vccnz L_kw{b}")
            a(f"s_add_u32 s{sKb}, s{sKb}, 4")
            qk(b)
            if b == CHKB:
                a(f"s_cmp_lg_u32 s{sW}, 4")
                a("s_cbranch_scc1 L_nochk")
                a("s_waitcnt vmcnt(0)")
                a(f"buffer_load_dwordx3 v[{FO}:{FO+2}], v{vOa}, s[{sWS}:{sWS+3}], s{sAr} offen sc1")
                a.label("L_nochk")
        if hf:
            tick(4)
        xreduce("v_max_f32", vT, vT + 1)
        a(f"ds_write_b32 v{vMw}, v{vT}")
        signal(C1, vT + 1)
        for j in range(4):
            a(f"v_xor_b32 v{vKr+j}, 0x10000, v{vKr+j}", "other half of the K positions" if j == 0 else None)
        if hf:
            tick(13)
            decide()
        spin(C1, vT + 1, f"L_s1{hf}", f"s{sExp}")
        a(f"ds_read_b128 v[{vT+4}:{vT+7}], v{vMx}")
        a("s_waitcnt lgkmcnt(0)")
        a(f"v_max3_f32 v{vT}, v{vT+4}, v{vT+5}, v{vT+6}")
        a(f"v_max_f32 v{vT}, v{vT}, v{vT+7}", "workgroup-wide running row maximum")
        a(f"v_sub_f32 v{vT+2}, v{vM}, v{vT}")
        a(f"v_exp_f32 v{vT+2}, v{vT+2}")
        a(f"v_mov_b32 v{vM}, v{vT}")
        for e in range(0, 16, 2):
            a(f"v_pk_add_f32 v[{vS+e}:{vS+e+1}], v[{vS+e}:{vS+e+1}], v[{vT}:{vT+1}] op_sel_hi:[1,0] neg_lo:[0,1] neg_hi:[0,1]")
        a(f"v_mul_f32 v{vL}, v{vL}, v{vT+2}")
        a(f"ds_write_b32 v{vKl}, v{vT+2} offset:{AL - KL + 256*hf}")
        for e in range(16):
            a(f"v_exp_f32 v{vS+e}, v{vS+e}")
        for e in range(8):
            a(f"v_cvt_pk_bf16_f32 v{vP+e}, v{vS+2*e}, v{vS+2*e+1}")
        for b in range(4):
            a(f"ds_write_b64 v{vPa}, v[{vP+2*b}:{vP+2*b+1}] offset:{PB + (4*hf + b)*2048}")
        for stp in (8, 4, 2):
            for e in range(0, stp, 2):
                a(f"v_pk_add_f32 v[{vS+e}:{vS+e+1}], v[{vS+e}:{vS+e+1}], v[{vS+e+stp}:{vS+e+stp+1}]")
        a(f"v_add_f32 v{vS}, v{vS}, v{vS+1}")
        a(f"v_add_f32 v{vL}, v{vL}, v{vS}")
        if hf:
            a(f"v_mov_b32 v{vT}, v{vL}")
            xreduce("v_add_f32", vT, vT + 1)
            a(f"ds_write_b32 v{vMw}, v{vT} offset:{LS - MX}")
        signal(C2, vT + 1)
        if str(hf) in opts.get("rw", "n"):
            a.c("keep the not yet executed text in L2: each compute wave of the XCD touches two of its lines")
            a(f"s_getpc_b64 s[{sCm+6}:{sCm+7}]")
            a.label(f"L_pc{hf}")
            a(f"s_lshl_b32 s{sCm}, s{sI}, 2")
            a(f"s_add_u32 s{sCm}, s{sCm}, s{sWl}")
            a(f"s_lshl_b32 s{sCm}, s{sCm}, 7")
            a(f"s_sub_u32 s{sCm+6}, s{sCm+6}, (L_pc{hf} - L_smain)")
            a(f"s_subb_u32 s{sCm+7}, s{sCm+7}, 0")
            a(f"v_lshl_add_u32 v{vT+2}, v{vLane}, 14, s{sCm}")
            a(f"v_min_u32 v{vT+2}, (L_codeend - L_smain - 4), v{vT+2}")
            a("s_mov_b64 exec, 3")
            a(f"global_load_dword v{FA+6}, v{vT+2}, s[{sCm+6}:{sCm+7}] sc1")
            a("s_mov_b64 exec, -1")
        spin(C2, vT + 1, f"L_s2{hf}", f"s{sExp}")
        a(f"s_add_u32 s{sExp}, s{sExp}, 4")
        tick(5 if hf else 6)
    a(f"s_cmp_gt_u32 s{sMore}, 24")
    a("s_cbranch_scc1 L_kmore")

    a.c("(max, sum) granules: [head][row group w][workgroup][4 rows]")
    a(f"s_lshl_b32 s{sMl}, s{sH}, 2")
    a(f"s_add_u32 s{sMl}, s{sMl}, s{sWl}")
    a(f"s_lshl_b32 s{sMl}, s{sMl}, 11")
    a(f"s_add_u32 s{sMl}, s{sMl}, {WS_ML}")
    a(f"s_lshl_b32 s{sT}, s{sI}, 6")
    a(f"s_add_u32 s{sT}, s{sT}, s{sMl}")
    a(f"v_and_b32 v{vT+4}, 0x30, v{vL16}")
    a(f"v_add_u32 v{vT+4}, s{sT}, v{vT+4}")
    a(f"v_mov_b32 v{vS}, v{vM}")
    a(f"v_mov_b32 v{vS+2}, s{sEp}")
    a(f"v_mov_b32 v{vS+3}, s{sNEp}")
    a(f"ds_read_b32 v{vT}, v{vZ} offset:{FLG}")
    a(f"ds_read_b128 v[{vS+4}:{vS+7}], v{vMx} offset:{LS - MX}")
    a("s_waitcnt lgkmcnt(0)")
    a(f"v_readfirstlane_b32 s{sMode}, v{vT}")
    a(f"v_add_f32 v{vS+4}, v{vS+4}, v{vS+5}")
    a(f"v_add_f32 v{vS+6}, v{vS+6}, v{vS+7}")
    a(f"v_add_f32 v{vS+1}, v{vS+4}, v{vS+6}")
    a(f"s_lshl_b32 s{sT}, s{sWl}, 2")
    a(f"s_lshl_b64 exec, 15, s{sT}", "each compute wave publishes four rows")
    a(f"s_bitcmp1_b32 s{sMode}, 0")
    a("s_cbranch_scc1 L_mlslow")
    a(f"buffer_store_dwordx4 v[{vS}:{vS+3}], v{vT+4}, s[{sWS}:{sWS+3}], 0 offen")
    a.label("L_mldone")
    a("s_mov_b64 exec, -1")
    a(f"v_lshrrev_b32 v{vT}, 2, v{vLane}")
    a(f"v_and_b32 v{vT+1}, 3, v{vLane}")
    a(f"v_add_u32 v{vT+2}, s{sT}, v{vT+1}", "unit u = 4*w + (lane&3)")
    a(f"v_lshlrev_b32 v{vOa}, 8, v{vT}")
    a(f"v_lshl_add_u32 v{vOa}, v{vT+2}, 4, v{vOa}", "c*256 + u*16")
    make_tag(vTagC, vT + 2, vT + 3)
    a(f"s_mov_b32 s{sT3}, s{sT}")
    a(f"s_movk_i32 s{sT0}, 0xff00")
    a(f"s_lshl_b32 s{sT}, s{sWl}, 13")
    a(f"s_lshl_b32 s{sT+1}, s{sH}, 10")
    a(f"s_add_u32 s{sT}, s{sT}, s{sT+1}")
    a(f"v_lshl_add_u32 v{vOut}, v{vT+1}, 8, s{sT}", "output row of unit u")
    a(f"v_and_b32 v{vT}, 1, v{vG}")
    a(f"v_lshl_add_u32 v{vOut}, v{vT}, 5, v{vOut}")
    a(f"v_lshrrev_b32 v{vT}, 1, v{vG}")
    a(f"v_lshl_add_u32 v{vOut}, v{vT}, 4, v{vOut}")
    a(f"v_and_b32 v{vT}, 12, v{vN}")
    a(f"v_lshl_add_u32 v{vOut}, v{vT}, 16, v{vOut}", "lanes holding duplicates fall outside the buffer")
    a(f"s_mov_b32 s{sQ}, s14", "output descriptor (same size as q)")
    a(f"s_mov_b32 s{sQ+1}, s15")
    a(f"s_mov_b32 s{sSpin}, 0")
    a(f"s_bfe_u32 s{sLo}, s{sMode}, 0x80008")
    a(f"s_lshr_b32 s{sHi}, s{sMode}, 16")
    a(f"s_cmp_ge_u32 s{sLo}, s{sHi}")
    a("s_cbranch_scc1 L_fin")
    if opts.get("rf", "1") == "1":
        a.c("the final instructions run once, on every CU at the same time: pull them back into L2")
        a(f"s_getpc_b64 s[{sCm+6}:{sCm+7}]")
        a.label("L_pcf")
        a(f"s_lshl_b32 s{sT}, s{sWl}, 7")
        a(f"s_add_u32 s{sT}, s{sT}, (L_opoll - L_pcf)")
        a(f"v_mov_b32 v{vT}, s{sT}")
        a("s_mov_b64 exec, 1")
        a(f"global_load_dword v{FA+6}, v{vT}, s[{sCm+6}:{sCm+7}] sc1")
        a("s_mov_b64 exec, -1")
    a.label("L_slice")
    a(f"s_lshl_b32 s{sT}, s{sH}, 5")
    a(f"s_add_u32 s{sT}, s{sT}, s{sLo}")
    a(f"s_lshl_b32 s{sO0}, s{sT}, 13")
    a(f"s_add_u32 s{sO1}, s{sO0}, 4096")
    a(f"s_lshr_b32 s{sOut}, s{sLo}, 3")
    a(f"s_lshl_b32 s{sOut}, s{sOut}, 6")
    a(f"s_and_b32 s{sT}, s{sLo}, 7")
    a(f"s_lshl_b32 s{sT}, s{sT}, 1")
    a(f"s_add_u32 s{sOut}, s{sOut}, s{sT}", "slice 8g+j: d = 32g + 8r + j")
    a(f"s_mov_b64 s[{sM0}:{sM0+1}], -1")
    a(f"s_mov_b64 s[{sM1}:{sM1+1}], -1")
    def o_masked():
        a(f"s_wqm_b64 exec, s[{sM0}:{sM0+1}]")
        a(f"buffer_load_dwordx4 v[{FO}:{FO+3}], v{vOa}, s[{sWS}:{sWS+3}], s{sO0} offen sc1")
        a(f"s_wqm_b64 exec, s[{sM1}:{sM1+1}]")
        a(f"buffer_load_dwordx4 v[{FO+4}:{FO+7}], v{vOa}, s[{sWS}:{sWS+3}], s{sO1} offen sc1")
        a("s_mov_b64 exec, -1")
    def o_check():
        a(f"v_perm_b32 v{vT+2}, v{FO+3}, v{FO}, s{sT3}")
        a(f"v_perm_b32 v{vT+3}, v{FO+7}, v{FO+4}, s{sT3}")
        a(f"v_cmp_ne_u32 s[{sM0}:{sM0+1}], v{vT+2}, v{vTagC}")
        a(f"v_cmp_ne_u32 s[{sM1}:{sM1+1}], v{vT+3}, v{vTagC}")
    def ml_loads():
        a(f"buffer_load_dwordx4 v[{FM}:{FM+3}], v{vL16}, s[{sWS}:{sWS+3}], s{sMl} offen sc1")
        a(f"buffer_load_dwordx4 v[{FM+4}:{FM+7}], v{vL16}, s[{sWS}:{sWS+3}], s{sMl} offen offset:1024 sc1")
    a(f"s_lshr_b32 s{sT+3}, s{sExp}, 3")
    LATE = opts.get("late", "1") == "1"
    if LATE:
        a.c("wait until the streamer has issued its last load")
        spin(C4, vT + 1, "L_s4a", f"s{sT+3}")
    else:
        a(f"s_lshl_b32 s{sT+3}, s{sT+3}, 1", "the streamer signals twice per round")
        a(f"s_sub_u32 s{sT}, s{sT+3}, 1")
        spin(C4, vT + 1, "L_s4a", f"s{sT}")
    a.c("poll the (max, sum) granules")
    a.label("L_mlpoll")
    ml_loads()
    if LATE:
        o_masked()
    a(f"s_add_u32 s{sSpin}, s{sSpin}, 1")
    a(f"s_cmp_ge_u32 s{sSpin}, 0x400000")
    a("s_cbranch_scc1 L_fin")
    a(f"s_waitcnt vmcnt({2 if LATE else 0})")
    a(f"v_cmp_ne_u32 vcc, s{sEp}, v{FM+2}")
    a(f"v_cmp_ne_u32 s[{sCm}:{sCm+1}], s{sNEp}, v{FM+3}")
    a(f"v_cmp_ne_u32 s[{sCm+2}:{sCm+3}], s{sEp}, v{FM+6}")
    a(f"v_cmp_ne_u32 s[{sCm+4}:{sCm+5}], s{sNEp}, v{FM+7}")
    a(f"v_max_f32 v{vT}, v{FM}, v{FM+4}")
    a(f"s_or_b64 vcc, vcc, s[{sCm}:{sCm+1}]")
    a(f"s_or_b64 vcc, vcc, s[{sCm+2}:{sCm+3}]")
    a(f"s_or_b64 vcc, vcc, s[{sCm+4}:{sCm+5}]")
    if LATE:
        a("s_cbranch_scc0 L_w")
        a("s_waitcnt vmcnt(0)")
        o_check()
        a("s_branch L_mlpoll")
        a.label("L_w")
    else:
        a("s_cbranch_scc1 L_mlpoll")
    a(f"v_max_f32_dpp v{vT}, v{vT}, v{vT} row_ror:4 {DPP}")
    a("s_nop 1")
    a(f"v_max_f32_dpp v{vT}, v{vT}, v{vT} row_ror:8 {DPP}")
    xreduce("v_max_f32", vT, vT + 1)
    a(f"v_sub_f32 v{FM}, v{FM}, v{vT}")
    a(f"v_sub_f32 v{FM+4}, v{FM+4}, v{vT}")
    a(f"v_exp_f32 v{FM}, v{FM}")
    a(f"v_exp_f32 v{FM+4}, v{FM+4}")
    a(f"v_mul_f32 v{vT}, v{FM}, v{FM+1}")
    a(f"v_fmac_f32 v{vT}, v{FM+4}, v{FM+5}")
    a("s_nop 1")
    a(f"v_add_f32_dpp v{vT}, v{vT}, v{vT} row_ror:4 {DPP}")
    a("s_nop 1")
    a(f"v_add_f32_dpp v{vT}, v{vT}, v{vT} row_ror:8 {DPP}")
    xreduce("v_add_f32", vT, vT + 1)
    a(f"v_rcp_f32 v{vT}, v{vT}")
    a("s_nop 0")
    a(f"v_mul_f32 v{FM}, v{FM}, v{vT}")
    a(f"v_mul_f32 v{FM+4}, v{FM+4}, v{vT}", "normalised weights of contributors c and 16+c")
    tick(9)
    if LATE:
        a("s_branch L_owait")
    else:
        spin(C4, vT + 1, "L_s4c", f"s{sT+3}")
    a.c("poll the 64-byte pieces that do not carry this launch's tag yet")
    a.label("L_opoll")
    if "slp" in opts:
        a(f"s_sleep {opts['slp']}")
    o_masked()
    a(f"s_add_u32 s{sSpin}, s{sSpin}, 1")
    a(f"s_cmp_ge_u32 s{sSpin}, 0x400000")
    a("s_cbranch_scc1 L_fin")
    a.label("L_owait")
    a("s_waitcnt vmcnt(0)")
    o_check()
    a(f"v_and_b32 v{FA}, s{sT0}, v{FO}", "drop the tag bytes")
    a(f"v_and_b32 v{FA+3}, s{sT0}, v{FO+3}")
    a(f"s_or_b64 vcc, s[{sM0}:{sM0+1}], s[{sM1}:{sM1+1}]")
    a("s_cbranch_scc1 L_opoll")
    a(f"v_and_b32 v{FO+4}, s{sT0}, v{FO+4}")
    a(f"v_and_b32 v{FO+7}, s{sT0}, v{FO+7}")
    a(f"v_mul_f32 v{FA}, v{FA}, v{FM}")
    a(f"v_mul_f32 v{FA+1}, v{FO+1}, v{FM}")
    a(f"v_mul_f32 v{FA+2}, v{FO+2}, v{FM}")
    a(f"v_mul_f32 v{FA+3}, v{FA+3}, v{FM}")
    a(f"v_pk_fma_f32 v[{FA}:{FA+1}], v[{FO+4}:{FO+5}], v[{FM+4}:{FM+5}], v[{FA}:{FA+1}] op_sel_hi:[1,0,1]")
    a(f"v_pk_fma_f32 v[{FA+2}:{FA+3}], v[{FO+6}:{FO+7}], v[{FM+4}:{FM+5}], v[{FA+2}:{FA+3}] op_sel_hi:[1,0,1]")
    a(f"s_add_u32 s{sLo}, s{sLo}, 1")
    a(f"v_permlane32_swap_b32 v{FA}, v{FA+1}")
    a(f"v_permlane32_swap_b32 v{FA+2}, v{FA+3}")
    a(f"v_add_f32 v{FA}, v{FA}, v{FA+1}")
    a(f"v_add_f32 v{FA+2}, v{FA+2}, v{FA+3}")
    a("s_nop 1")
    a(f"v_permlane16_swap_b32 v{FA}, v{FA+2}")
    a(f"s_cmp_lt_u32 s{sHi}, 32")
    a(f"v_add_f32 v{FA}, v{FA}, v{FA+2}")
    a("s_nop 1")
    a(f"v_add_f32_dpp v{FA}, v{FA}, v{FA} row_ror:4 {DPP}")
    a("s_nop 1")
    a(f"v_add_f32_dpp v{FA}, v{FA}, v{FA} row_ror:8 {DPP}")
    a(f"v_cvt_pk_bf16_f32 v{FA}, v{FA}, v{FA}")
    a(f"buffer_store_short v{FA}, v{vOut}, s[{sQ}:{sQ+3}], s{sOut} offen {OPOL}")
    if STAMP:
        a("s_mov_b64 exec, -1")
        tick(10)
        a("s_cbranch_scc1 L_fin")
    else:
        a("s_cbranch_scc0 L_next")
        a("s_endpgm")
        a.label("L_next")
    a("s_mov_b64 exec, -1")
    a(f"s_cmp_lt_u32 s{sLo}, s{sHi}")
    a("s_cbranch_scc1 L_slice")
    a.c("every workgroup of this head has read the epoch word: advance it for the next launch")
    a(f"s_lshl_b32 s{sT}, s{sH}, 7")
    a(f"s_add_u32 s{sT}, s{sT}, {WS_EP}")
    a(f"v_mov_b32 v{vT}, s{sT}")
    a(f"v_mov_b32 v{vT+1}, s{sEp}")
    a("s_mov_b64 exec, 1")
    a(f"buffer_store_dword v{vT+1}, v{vT}, s[{sWS}:{sWS+3}], 0 offen {OPOL}")
    a.label("L_fin")
    if STAMP:
        a("s_mov_b64 exec, -1")
        a("s_waitcnt vmcnt(0)")
        tick(11)
        a("s_mov_b64 exec, 0xffff")
        a(f"s_lshl_b32 s{sSt}, s2, 3")
        a(f"s_add_u32 s{sSt}, s{sSt}, s{sW}")
        a(f"s_lshl_b32 s{sSt}, s{sSt}, 7")
        a(f"s_add_u32 s{sSt}, s{sSt}, {16<<20}")
        a(f"v_mbcnt_lo_u32_b32 v{vX+2}, -1, 0")
        a(f"v_lshlrev_b32 v{vX+2}, 3, v{vX+2}")
        a(f"v_add_u32 v{vX+2}, s{sSt}, v{vX+2}")
        a(f"v_cmp_ne_u32 vcc, 0, v{vX}")
        a("s_and_b64 exec, exec, vcc")
        a(f"buffer_store_dwordx2 v[{vX}:{vX+1}], v{vX+2}, s[{sWS}:{sWS+3}], 0 offen")
    a.label("L_end")
    a("s_endpgm")

    a.label("L_mlslow")
    a(f"buffer_store_dwordx4 v[{vS}:{vS+3}], v{vT+4}, s[{sWS}:{sWS+3}], 0 offen sc1")
    a("s_branch L_mldone")
    a.label("L_slowo")
    tail("sc1")
    a("s_branch L_fin")
    a.label("L_notfast")
    a("s_cbranch_vccnz L_missing")
    a(f"s_or_b32 s{sMode}, s{sMode}, 1", "peers on another XCD: write-through hand-off")
    a(f"s_cmp_eq_u64 s[{sCm+4}:{sCm+5}], 0")
    a("s_cbranch_scc1 L_modeset")
    a(f"s_mov_b32 s{sMode}, 0x200001", "somebody left: finalise every slice")
    a("s_branch L_modeset")
    a.label("L_missing")
    a(f"s_add_u32 s{sSpin}, s{sSpin}, 1")
    a(f"s_cmp_ge_u32 s{sSpin}, 64")
    a("s_cbranch_scc1 L_leave")
    a(f"buffer_load_dwordx3 v[{FO}:{FO+2}], v{vOa}, s[{sWS}:{sWS+3}], s{sAr} offen sc1")
    a("s_branch L_look")
    a.label("L_leave")
    a.c("a workgroup of this head has not started yet: leave a mark, look again, then go or stay")
    a(f"s_lshl_b32 s{sT}, s{sI}, {ARS}")
    a(f"v_mov_b32 v{vT+1}, s{sT}")
    a(f"v_mov_b32 v{vT+4}, s{sEp}")
    a(f"v_mov_b32 v{vT+5}, s{sNEp}")
    a(f"v_mov_b32 v{vT+6}, 0x100")
    a("s_mov_b64 exec, 1")
    a(f"buffer_store_dwordx3 v[{vT+4}:{vT+6}], v{vT+1}, s[{sWS}:{sWS+3}], s{sAr} offen sc1")
    a("s_mov_b64 exec, -1")
    a("s_waitcnt vmcnt(0)")
    a(f"buffer_load_dwordx3 v[{FO}:{FO+2}], v{vOa}, s[{sWS}:{sWS+3}], s{sAr} offen sc1")
    a("s_waitcnt vmcnt(0)")
    a(f"v_cmp_ne_u32 vcc, s{sEp}, v{FO}")
    a(f"v_cmp_ne_u32 s[{sCm}:{sCm+1}], s{sNEp}, v{FO+1}")
    a("s_nop 0")
    a(f"s_or_b64 vcc, vcc, s[{sCm}:{sCm+1}]")
    a(f"s_cselect_b32 s{sMode}, 1, 0x200001")
    a("s_branch L_modeset")
    for pr in range(2 * EV):
        a.label(f"L_vbad{pr}")
        for r in range(8):
            a(f"v_mov_b32 v{vV+8*pr+r}, 0")
        a(f"s_branch L_vgood{pr}")
    for hf in range(2):
        a.label(f"L_pagain{hf}")
        p_read(hf)
        a("s_waitcnt lgkmcnt(0)")
        a(f"v_cmp_gt_u32 vcc, s{sExp}, v{vT+2}")
        a(f"s_cbranch_vccnz L_pagain{hf}")
        a(f"s_branch L_pok{hf}")
    a.label("L_kmore")
    a("s_waitcnt lgkmcnt(0)")
    a("s_barrier", "second round (more than 32 referenced blocks): the streamers are done with this round's P")
    a(f"s_mov_b32 s{sMore}, 0")
    a(f"s_mov_b32 s{sBad}, 0")
    for k in range(2):
        pop_lc()
        wread(k)
    a("s_branch L_kround")
    a.label("L_vmore")
    a("s_waitcnt vmcnt(0) lgkmcnt(0)")
    for idx in range(8):
        perm1(63, idx)
    for j in range(8):
        mfma1(15, j)
    a("s_barrier")
    a(f"s_mov_b32 s{sMore}, 0")
    a(f"s_mov_b32 s{sRnd}, 1")
    a(f"s_mov_b32 s{sVal}, s{sVal+1}")
    a(f"s_mov_b32 s{sBad}, s{sVal+1}")
    a(f"v_mov_b32 v{vT+4}, v{vList}")
    a("s_nop 1")
    a(f"v_permlane32_swap_b32 v{vT+4}, v{vList}", "positions 32..63 -> lanes 0..31")
    a("s_nop 1")
    for k in range(NB0):
        a(f"v_readlane_b32 s{sP}, v{vList}, {k}")
        a(f"s_bitcmp1_b32 s{sVal}, {k}")
        a(f"s_cselect_b32 s{sK+2}, s{sKVB}, 0")
        a(f"s_mov_b32 m0, {KB + k*4096}")
        a("s_nop 1")
        for q in range(4):
            k_load(0, q)
    a(f"v_readlane_b32 s{sP + (NB0 & 3)}, v{vList}, {NB0}")
    a("s_branch L_vround")
    if CW:
        a.lines.append(".if (. - L_pc) < (16384 + 104)")
        a.lines.append(".fill ((16384 + 104 - (. - L_pc)) / 4), 4, 0xbf810000")
        a.lines.append(".endif")
        a.label("L_codeend")

    if opts.get("order", "sc") == "cs":
        L = a.lines
        i_s = L.index("L_smain:"); i_c = L.index("L_cmain:"); i_r = L.index("L_mlslow:")
        a.lines = L[:i_s] + L[i_c:i_r] + L[i_s:i_c] + L[i_r:]
    head = HEADER + f"""; @launch grid=(256,1,1) block=(512,1,1) lds={LDS_BYTES}
.amdgcn_target "amdgcn-amd-amdhsa--gfx950"
.text
.globl {NAME}_kernel
.p2align 8
.type {NAME}_kernel,@function
"""
    tail = f""".section .rodata,"a"
.p2align 6
.amdhsa_kernel {NAME}_kernel
  .amdhsa_next_free_vgpr {NVGPR}
  .amdhsa_next_free_sgpr 102
  .amdhsa_accum_offset {NVGPR}
  .amdhsa_group_segment_fixed_size 0
  .amdhsa_kernarg_size 64
  .amdhsa_user_sgpr_count 2
  .amdhsa_user_sgpr_kernarg_segment_ptr 1
  .amdhsa_system_sgpr_workgroup_id_x 1
.end_amdhsa_kernel
"""
    return head + a.text() + tail

if __name__ == "__main__":
    opts = dict(kv.split("=", 1) for kv in sys.argv[2:])
    open(sys.argv[1], "w").write(gen(opts))
```

```python
import sys

NAME = "standalone__paged_block_table_kv_radixattention__decode"

class Asm:
    def __init__(self):
        self.lines = []
    def __call__(self, s="", c=None):
        s = s.strip()
        self.lines.append("    " + s + (f"    ; {c}" if c else ""))
    def label(self, n):
        self.lines.append(n + ":")
    def c(self, s):
        self.lines.append("    ; " + s)
    def text(self):
        return "\n".join(self.lines) + "\n"

KV_BYTES = 1280 * 32768
WS_ML = 2 << 20
WS_AR = WS_ML + 65536
WS_EP = WS_AR + 32768
NEG = "0xf149f2ca"
DPP = "row_mask:0xf bank_mask:0xf"

HEADER = """; Paged (block-table) GQA decode attention: B=4, H=32, Hkv=8, D=128, 1280 physical blocks of 16 tokens.
;
; how often, and whether as the partial last block) and loads every referenced block once for all 4 sequences x 4
; Hand-off stores are plain when all 32 workgroups of the head were seen running on this XCD and write-through
; otherwise; a workgroup that cannot see all its peers running leaves its slice to the last starter, so neither
"""

def gen(opts):
    def pol(k, d):
        return opts.get(k, d).replace("+", " ").replace("def", "")
    def flag(k, d):
        return opts.get(k, d) == "1"
    POL = opts.get("pol", "def")
    KPOL, VPOL = pol("kpol", POL), pol("vpol", opts.get("pol", "def"))
    OPOL = pol("opol", "def")
    PERM = opts.get("perm", "32107654")
    STAMP = flag("stamp", "0")
    LITE = flag("lite", "0")
    FORCE = opts.get("force", "")
    W = int(opts.get("w", "26"))
    WF = int(opts.get("wf", "23"))
    SLOW = int(opts.get("slow", "0x2a"), 0)
    if "cmask" in opts:
        SLOW = sum(1 << int(PERM[c]) for c in range(8) if (int(opts["cmask"], 0) >> c) & 1)
    EV = int(opts.get("ev", "6"))
    IPA = int(opts.get("ipa", "28"))
    CHKB = int(opts.get("chkb", "5"))
    CW = flag("cw", "1")
    ARS = 4

    a = Asm()
    MX = 0
    LS = MX + 256
    INV = 1024
    KL = 2048
    C1 = 3072
    C2, C3, C4, C0, CQ, FLG = C1 + 4, C1 + 8, C1 + 12, C1 + 16, C1 + 20, C1 + 32
    ZENT = C1 + 64 - INV
    QL = 4096
    KB = 8192
    LDS_BYTES = KB + 131072
    PB = KB
    AL = KL + 256

    vA, vG, vN = 1, 2, 3
    vT = 4
    vX16, vZ = 14, 15
    vPa, vL16 = 16, 17
    vP = 20
    vKs = 36
    vKr = 40
    vM, vL, vC, vB4, vMx, vMw, vKl, vLane = 44, 45, 46, 47, 48, 49, 50, 51
    vW = 52
    vQ = 60
    vS = 76
    vTb = 76
    vInc = 84
    vKf = 108
    vOa, vMa, vOut, vTagC = 144, 145, 146, 147
    FM, FO, FA = 148, 156, 164
    vVo0, vVo1, vWo, vSig, vSa, vList = 40, 41, 42, 43, 44, 45
    vTag, vF = 18, 19
    vAcc = 48
    vV = 80
    vVt = 208
    vX = 240
    NVGPR = vX + 8 if STAMP else vX

    sK, sV, sQ, sWS = 20, 24, 28, 32
    sN = 36
    sH, sI, sW, sWl, sWb = 48, 49, 50, 51, 52
    sU, sRnd, sMore, sBad, sEp, sNEp, sXcc, sAr = 53, 54, 55, 56, 57, 58, 59, 60
    sSelLo, sSelHi, sExp = 61, 62, 63
    sRm = 64
    sCm = 72
    sP, sVal, sKVB = 80, 84, 86
    sM0, sM1 = 88, 90
    sT = 92
    sLc, sKb = 96, 97
    sJ = 64
    sSt = 98
    sLo, sHi, sSpin, sT0, sT3, sMode, sO0, sO1, sMl, sOut, sMl1 = 36, 37, 38, 39, 40, 41, 42, 43, 44, 45, 46

    def tick(idx):
        if not STAMP or (LITE and idx not in (8, 10, 11)):
            return
        a(f"s_memrealtime s[{sSt}:{sSt+1}]")
        a("s_waitcnt lgkmcnt(0)")
        a(f"v_writelane_b32 v{vX}, s{sSt}, {idx}")
        a(f"v_writelane_b32 v{vX+1}, s{sSt+1}, {idx}")
    def first_tick():
        if STAMP:
            a(f"v_mov_b32 v{vX}, 0")
            a(f"v_mov_b32 v{vX+1}, 0")
            a(f"v_writelane_b32 v{vX}, s{sSt+2}, 0")
            a(f"v_writelane_b32 v{vX+1}, s{sSt+3}, 0")
    def k_load(slot, q):
        a(f"buffer_load_dwordx4 v{vKs+q}, s[{sK}:{sK+3}], s{sP+slot} offen offset:{q*1024} {KPOL} lds")
    def v_load(k, slot, i):
        r = vV + 16 * (k & 7) + 4 * i
        a(f"buffer_load_dwordx4 v[{r}:{r+3}], v{vVo0 + (i>>1)}, s[{sV}:{sV+3}], s{sP+slot} offen offset:{2048*(i&1)} {VPOL}")
    def pop_lc():
        a(f"s_ff1_i32_b32 s{sT}, s{sU}", "next candidate (-1: none)")
        a(f"s_bitset0_b32 s{sU}, s{sT}")
        a(f"s_lshl_b32 s{sLc}, s{sT}, 4")
        a(f"s_addk_i32 s{sLc}, 128")
        a(f"s_cmp_lt_i32 s{sT}, 0")
        a(f"s_cselect_b32 s{sLc}, {ZENT}, s{sLc}")
    def make_tag(dst, vu, tmp):
        a(f"s_lshr_b32 s{sT}, s{sEp}, 8")
        a(f"s_addk_i32 s{sT}, 0x5a")
        a(f"v_mad_u32_u24 v{dst}, v{vu}, 37, s{sEp}")
        a(f"v_mad_u32_u24 v{tmp}, v{vu}, 59, s{sT}")
        a(f"s_mov_b32 s{sT}, 0x0c0c0400")
        a(f"v_perm_b32 v{dst}, v{tmp}, v{dst}, s{sT}")
    def xreduce(op, v, t):
        a(f"v_mov_b32 v{t}, v{v}")
        a("s_nop 1")
        a(f"v_permlane32_swap_b32 v{v}, v{t}")
        a("s_nop 0")
        a(f"{op} v{v}, v{v}, v{t}")
        a(f"v_mov_b32 v{t}, v{v}")
        a("s_nop 1")
        a(f"v_permlane16_swap_b32 v{v}, v{t}")
        a("s_nop 0")
        a(f"{op} v{v}, v{v}, v{t}")
    def signal(cnt, t):
        a(f"v_mov_b32 v{t}, 1")
        a("s_mov_b64 exec, 1")
        a(f"ds_add_u32 v{vZ}, v{t} offset:{cnt}")
        a("s_mov_b64 exec, -1")
    def spin(cnt, t, label, exp):
        a.label(label)
        if "spl" in opts:
            a(f"s_sleep {opts['spl']}")
        a(f"ds_read_b32 v{t}, v{vZ} offset:{cnt}")
        a("s_waitcnt lgkmcnt(0)")
        a(f"v_cmp_gt_u32 vcc, {exp}, v{t}")
        a(f"s_cbranch_vccnz {label}")
    def list_read():
        a(f"ds_read_b32 v{vP+4}, v{vZ} offset:{C0}")
        a(f"ds_read_b128 v[{vP}:{vP+3}], v{vL16} offset:{INV}")
    def get_list(lbl):
        a("s_waitcnt lgkmcnt(0)")
        a(f"v_cmp_gt_u32 vcc, 4, v{vP+4}")
        a(f"s_cbranch_vccz {lbl}_ok", "the map was read after the counter showed it complete")
        a.label(f"{lbl}_again")
        list_read()
        a("s_waitcnt lgkmcnt(0)")
        a(f"v_cmp_gt_u32 vcc, 4, v{vP+4}")
        a(f"s_cbranch_vccnz {lbl}_again")
        a.label(f"{lbl}_ok")
        a(f"v_or3_b32 v{vP}, v{vP}, v{vP+1}, v{vP+2}")
        a(f"v_or_b32 v{vP}, v{vP}, v{vP+3}")
        a(f"v_cmp_ne_u32 vcc, 0, v{vP}")
        a("s_nop 0")
        a(f"s_lshr_b64 s[{sCm}:{sCm+1}], vcc, 8")
        a(f"s_bcnt1_i32_b32 s{sMore}, s{sCm}")
    def common_init():
        a(f"s_lshl_b32 s{sT}, s{sH}, 7")
        a(f"s_add_u32 s{sT}, s{sT}, {WS_EP}")
        a(f"s_load_dword s{sEp}, s[18:19], s{sT}")
        a(f"s_mov_b32 s{sWS}, s18")
        a(f"s_mov_b32 s{sWS+1}, s19")
        a(f"s_mov_b32 s{sWS+2}, {1 << 28}")
        a(f"s_mov_b32 s{sWS+3}, 0x20000")
        a(f"v_mov_b32 v{vZ}, 0")
        a(f"v_and_b32 v{vL16}, 0x3f0, v{vA}")
        a(f"s_mov_b32 s{sExp}, 4")

    a.label(f"{NAME}_kernel")
    a(f"s_load_dwordx2 s[{sK}:{sK+1}], s[0:1], 8")
    a("s_load_dwordx16 s[4:19], s[0:1], 0")
    if STAMP:
        a(f"s_memrealtime s[{sSt+2}:{sSt+3}]")
    CWM = int(opts.get("cwm", "32"))
    if CWM in (16, 32):
        a(f"v_lshlrev_b32 v{vG}, {CWM.bit_length()-1}, v0")
    else:
        a(f"v_mul_u32_u24 v{vG}, {CWM}, v0")
    a("s_getpc_b64 s[96:97]")
    a.label("L_pc")
    a(f"global_load_dword v{vP+15}, v{vG}, s[96:97] offset:104", "kernel text -> L2 (value unused)")
    a("s_cmpk_ge_u32 s2, 256")
    a("s_cbranch_scc1 L_end")
    a(f"v_readfirstlane_b32 s{sW}, v0")
    if PERM == "01234567":
        a(f"s_and_b32 s{sH}, s2, 7", "kv head")
    elif PERM == "32107654":
        a(f"s_xor_b32 s{sH}, s2, 3")
        a(f"s_and_b32 s{sH}, s{sH}, 7", "kv head")
    else:
        a(f"s_lshl_b32 s{sH}, s2, 2")
        a(f"s_lshr_b32 s{sH}, {hex(int(''.join(reversed(PERM)), 16))}, s{sH}")
        a(f"s_and_b32 s{sH}, s{sH}, 7", "kv head")
    a(f"s_lshr_b32 s{sI}, s2, 3", "workgroup index inside the head")
    if FORCE == "late":
        a(f"s_cmp_lg_u32 s{sI}, 5")
        a("s_cbranch_scc1 L_notlate")
        a("s_movk_i32 s3, 400")
        a.label("L_latespin")
        a("s_sleep 8")
        a("s_sub_u32 s3, s3, 1")
        a("s_cmp_lg_u32 s3, 0")
        a("s_cbranch_scc1 L_latespin")
        a.label("L_notlate")
    a(f"v_bfe_u32 v{vG}, v0, 4, 2")
    a(f"v_and_b32 v{vN}, 15, v0")
    a(f"v_lshlrev_b32 v{vA}, 4, v0")
    a(f"v_xor_b32 v{vX16}, v{vN}, v{vG}")
    a(f"s_cmp_lg_u32 s{sW}, 0")
    a(f"v_lshlrev_b32 v{vX16}, 4, v{vX16}")
    a("s_cbranch_scc1 L_nons")
    a(f"s_lshl_b32 s{sT+3}, s{sH}, 8")
    a(f"v_lshl_add_u32 v{vKs}, v{vG}, 11, v{vX16}")
    a(f"s_lshl_b32 s{sP+2}, s{sI}, 15", "static blocks: physical 32*n + i, n = 0..7")
    a(f"v_add_u32 v{vKs}, s{sT+3}, v{vKs}")
    a(f"s_movk_i32 s{sT}, 7168")
    a(f"s_movk_i32 m0, {KB}")
    a(f"v_xor_b32 v{vKs+2}, 128, v{vKs}")
    a(f"v_xor_b32 v{vKs+1}, 64, v{vKs}")
    a(f"v_add_u32 v{vKs+2}, 14336, v{vKs+2}")
    a(f"v_add_u32 v{vKs+1}, s{sT}, v{vKs+1}")
    a(f"v_xor_b32 v{vKs+3}, 64, v{vKs+2}")
    a(f"s_mov_b32 s{sK+2}, {KV_BYTES}")
    a(f"v_add_u32 v{vKs+3}, s{sT}, v{vKs+3}")
    a(f"s_mov_b32 s{sK+3}, 0x20000")
    a("s_waitcnt lgkmcnt(0)")
    if STAMP and not LITE:
        a(f"s_memrealtime s[{sSt}:{sSt+1}]")
    NB0 = 6
    assert 4 * NB0 <= W
    a.label("L_burst")
    for q in range(4):
        k_load(2, q)
    a("s_addk_i32 m0, 4096")
    a(f"s_add_u32 s{sP+2}, s{sP+2}, {32*32768}")
    a(f"s_cmpk_lt_u32 m0, {KB + NB0*4096}")
    a("s_cbranch_scc1 L_burst")
    a("s_branch L_smain")
    a.label("L_nons")
    a(f"s_cmpk_lt_u32 s{sW}, 256")
    a("s_cbranch_scc1 L_notable")
    a("s_waitcnt lgkmcnt(0)")
    a(f"global_load_dwordx4 v[{vTb}:{vTb+3}], v{vA}, s[10:11] offset:-4096")
    a(f"global_load_dwordx4 v[{vTb+4}:{vTb+7}], v{vA}, s[10:11]")
    a(f"s_load_dwordx4 s[{sN}:{sN+3}], s[12:13], 0")
    a("s_branch L_cmain")
    a.label("L_notable")
    for r in range(4):
        a(f"v_mov_b32 v{vP+r}, 0")
    a(f"ds_write_b128 v{vA}, v[{vP}:{vP+3}]", "waves 1-3 clear map, flags and counters")
    if opts.get("cw2", "1") == "1":
        a(f"v_lshlrev_b32 v{vT}, 1, v{vA}")
        a(f"v_add_u32 v{vT}, {16384 + 104 - 2048}, v{vT}")
        a(f"v_min_u32 v{vT}, (L_codeend - L_pc - 4), v{vT}")
        a(f"global_load_dword v{vT+1}, v{vT}, s[96:97]", "waves 1-3: rest of the kernel text -> L2")
    a("s_waitcnt lgkmcnt(0)")
    a("s_barrier")
    a("s_endpgm")
    LB = True

    a.label("L_smain")
    if opts.get("split", "1") != "1":
        a("s_barrier", "LDS flags have been cleared")
    a("s_setprio 2")
    a(f"s_lshl_b32 s{sT}, s{sI}, 15")
    a(f"v_lshlrev_b32 v{vList}, 16, v{vA}", "lane n: n * 32 blocks")
    a(f"v_add_u32 v{vList}, s{sT}, v{vList}")
    a(f"s_mov_b32 s{sKVB}, s{sK+2}")
    a(f"s_mov_b64 s[{sVal}:{sVal+1}], -1")
    a(f"s_mov_b32 s{sRnd}, 0")
    if opts.get("split", "1") == "1":
        first_tick()
        if STAMP and not LITE:
            a("s_waitcnt lgkmcnt(0)")
            a(f"v_writelane_b32 v{vX}, s{sSt}, 9")
            a(f"v_writelane_b32 v{vX+1}, s{sSt+1}, 9")
        a(f"s_lshl_b32 s{sT}, s{sH}, 7")
        a(f"s_add_u32 s{sT}, s{sT}, {WS_EP}")
        a(f"s_load_dword s{sEp}, s[18:19], s{sT}")
        a(f"v_mov_b32 v{vZ}, 0")
        a(f"v_mov_b32 v{vL16}, v{vA}")
        a(f"s_mov_b32 s{sExp}, 4")
        a(f"v_mov_b32 v{vSig}, 0")
        a(f"v_lshrrev_b32 v{vSa}, 2, v{vA}")
        a(f"v_add_u32 v{vSa}, {KL}, v{vSa}")
        if WF < W:
            a(f"s_lshr_b32 s{sT}, {SLOW}, s{sH}")
            a(f"s_bitcmp0_b32 s{sT}, 0")
            a(f"s_cselect_b64 s[{sM1}:{sM1+1}], -1, 0")
    if opts.get("split", "1") == "1":
        a("s_barrier", "LDS flags have been cleared")
    a.label("L_vround")
    def vcc_mode():
        if WF < W:
            a(f"s_mov_b64 vcc, s[{sM1}:{sM1+1}]")
    def perm1(pr, idx):
        p = pr & 3
        r0 = vV + 8 * (pr & 15)
        w = idx >> 1
        a(f"v_perm_b32 v{vVt + 4*idx + p}, v{r0+4+w}, v{r0+w}, s{sSelHi if idx & 1 else sSelLo}")
    def mfma1(t, j):
        D = f"v[{vAcc+4*j}:{vAcc+4*j+3}]"
        pp = vP + 4 * (t & 1)
        a(f"v_mfma_f32_16x16x32_bf16 {D}, v[{vVt+4*j}:{vVt+4*j+3}], v[{pp}:{pp+3}], {D}")
    def ptile_read(t):
        pp = vP + 4 * (t & 1)
        a(f"ds_read_b128 v[{pp}:{pp+3}], v{vL16} offset:{PB + t*1024}")
    def p_read(hf):
        a(f"ds_read_b32 v{vT+2}, v{vZ} offset:{C2}")
        ptile_read(8 * hf)
        a(f"ds_read_b32 v{vT}, v{vSa} offset:{AL - KL + 256*hf}")
        if hf:
            a(f"ds_read_b32 v{vF}, v{vZ} offset:{FLG}")
    def fetch_p(hf):
        tick(13 if hf else 7)
        a("s_waitcnt lgkmcnt(0)")
        a(f"v_cmp_gt_u32 vcc, s{sExp}, v{vT+2}")
        a(f"s_cbranch_vccnz L_pagain{hf}")
        a.label(f"L_pok{hf}")
        a(f"s_add_u32 s{sExp}, s{sExp}, 4")
        if hf:
            a(f"v_readfirstlane_b32 s{sMode}, v{vF}")
        for r in range(0, 32, 2):
            a(f"v_pk_mul_f32 v[{vAcc+r}:{vAcc+r+1}], v[{vAcc+r}:{vAcc+r+1}], v[{vT}:{vT+1}] op_sel_hi:[1,0]")
        vcc_mode()
        if hf:
            tick(5)
    blocks = [("K", k) for k in range(8)] + [("V", k) for k in range(EV)] + [("K", k) for k in range(8, 32)] + [("V", k) for k in range(EV, 32)]
    bpos = {x: i for i, x in enumerate(blocks)}
    NL = 4 * len(blocks)
    IL = 4 * bpos[("K", 8)] - 6
    st = {"pairs": 0, "kl": 0, "list": False, "init": False, "p": 0, "pr": 0}
    MM = opts.get("mm", "1") == "1"
    def pair_done_at(pr):
        return 4 * bpos[("V", pr >> 1)] + 2 * (pr & 1) + 1
    def do_pair(pr):
        t = pr >> 2
        if pr < 2 * EV:
            a(f"s_bitcmp0_b32 s{sVal}, {pr >> 1}")
            a(f"s_cbranch_scc1 L_vbad{pr}")
            a.label(f"L_vgood{pr}")
        if (pr & 3) == 1 and t + 1 < 16 and t + 1 != 8:
            ptile_read(t + 1)
        if pr == 30:
            p_read(1)
        if MM:
            if (pr & 3) == 0 and t > 0:
                if t != 1 and t != 9:
                    a(f"s_waitcnt lgkmcnt({4 if t == 8 else 1})")
                for idx in range(8):
                    mfma1(t - 1, idx)
                    perm1(pr, idx)
            else:
                for idx in range(8):
                    perm1(pr, idx)
            return
        for idx in range(8):
            perm1(pr, idx)
        if (pr & 3) == 3:
            if t != 0 and t != 8:
                a(f"s_waitcnt lgkmcnt({4 if t == 7 else 1})")
            for j in range(8):
                mfma1(t, j)
    def retire(complete, final=False):
        if st["init"] and st["kl"] < 32 and 4 * bpos[("K", st["kl"])] + 3 <= complete:
            n = 0
            while st["kl"] < 32 and 4 * bpos[("K", st["kl"])] + 3 <= complete:
                st["kl"] += 1; n += 1
            a(f"v_add_u32 v{vSig}, {n}, v{vSig}")
            a(f"ds_write_b32 v{vSa}, v{vSig}", "K blocks landed")
        n = 0
        while st["p"] and st["pairs"] < 63 and pair_done_at(st["pairs"]) <= complete and (final or n < 1):
            if st["pairs"] == (33 if MM else 32):
                a("s_nop 7")
                fetch_p(1)
            do_pair(st["pairs"])
            st["pairs"] += 1; n += 1
    best = -1
    for i in range(4 * NB0 - 1, NL):
        kind, k = blocks[i >> 2]; q = i & 3
        slot = (i >> 2) & 3
        if q == 0:
            a(f"s_bitcmp1_b32 s{sVal}, {k}")
            if kind == "K":
                a(f"s_cselect_b32 s{sK+2}, s{sKVB}, 0")
                a(f"s_mov_b32 m0, {KB + k*4096}")
            else:
                a(f"s_cselect_b32 s{sV+2}, s{sKVB}, 0")
            if (i >> 2) + 1 < len(blocks):
                nk = blocks[(i >> 2) + 1][1]
                assert nk < 8 or st["list"]
                a(f"v_readlane_b32 s{sP + ((slot + 1) & 3)}, v{vList}, {nk}")
        if (i & 1) == 0:
            Wi = W
            for sw in opts.get("ws", "136:23,224:30").split(","):
                if sw and i >= int(sw.split(":")[0]):
                    Wi = int(sw.split(":")[1])
            if i + 2 > W:
                a(f"s_waitcnt vmcnt({Wi-2})")
                best = max(best, i + 1 - Wi)
            G4 = opts.get("g4", "0") == "1"
            if WF < W and i + 2 > WF and st["init"] and i < NL - int(opts.get("free", "120")) and (q == 0 or not G4):
                a(f"s_cbranch_vccz L_nw{i}")
                a(f"s_waitcnt vmcnt({WF-3 if G4 else WF-2})")
                a.label(f"L_nw{i}")
        if i < 4 * NB0:
            pass
        elif kind == "K":
            k_load(slot, q)
        else:
            assert k < 8 or st["pairs"] > 2 * (k - 8) + (q >> 1), (i, st)
            v_load(k, slot, q)
        SPLIT = opts.get("split", "1") == "1"
        if SPLIT and i == 4 * NB0 - 1:
            vcc_mode()
            st["init"] = True
        if SPLIT and i == 4 * NB0 + 3:
            a(f"s_mov_b32 s{sV}, s8")
            a(f"s_mov_b32 s{sV+1}, s9")
            a(f"s_mov_b32 s{sV+3}, 0x20000")
            a(f"v_lshlrev_b32 v{vVo0}, 13, v{vG}")
            a(f"v_lshl_add_u32 v{vVo0}, v{vN}, 4, v{vVo0}")
            a(f"v_add_u32 v{vVo0}, s{sT+3}, v{vVo0}")
            a(f"v_add_u32 v{vVo1}, 4096, v{vVo0}")
        if SPLIT and i == IL - 7:
            a.c("byte offset of candidate l = lane: (32*l + ((i - (l & 0x38)) & 31)) << 15")
            a(f"v_lshrrev_b32 v{vT+5}, 4, v{vA}")
            a(f"v_and_b32 v{vT+6}, 0x38, v{vT+5}")
            a(f"v_sub_u32 v{vT+6}, s{sI}, v{vT+6}")
            a(f"v_and_b32 v{vT+6}, 31, v{vT+6}")
            a(f"v_lshl_add_u32 v{vT+6}, v{vT+5}, 5, v{vT+6}")
            a(f"v_lshlrev_b32 v{vT+6}, 15, v{vT+6}")
        if SPLIT and i == IL + 11:
            a(f"s_mov_b32 s{sWS}, s18")
            a(f"s_mov_b32 s{sWS+1}, s19")
            a(f"s_mov_b32 s{sWS+2}, {1 << 28}")
            a(f"s_mov_b32 s{sWS+3}, 0x20000")
            a(f"s_mov_b32 s{sSelLo}, 0x05040100")
            a(f"s_mov_b32 s{sSelHi}, 0x07060302")
            a(f"s_mov_b32 s{sT0}, 0x07060500")
            a(f"s_mov_b32 s{sT3}, 0x07060501")
        if SPLIT and i == IL + 15:
            a(f"s_lshl_b32 s{sT}, s{sH}, 18")
            a(f"s_lshl_b32 s{sT+1}, s{sI}, 8")
            a(f"s_add_u32 s{sT}, s{sT}, s{sT+1}")
            a(f"v_lshlrev_b32 v{vWo}, 16, v{vG}")
            a(f"v_lshl_add_u32 v{vWo}, v{vN}, 4, v{vWo}")
            a(f"v_add_u32 v{vWo}, s{sT}, v{vWo}", "hand-off piece of slice 8*g + j: + j*8192")
        if SPLIT and i == IL + 19:
            for j in range(1, 8):
                a(f"s_mov_b32 s{sJ+j}, {j*8192}")
        if SPLIT and i in (IL + 23, IL + 27, IL + 31, IL + 35):
            c = (i - IL - 23) // 4
            a(f"s_cmp_lg_u32 s{sRnd}, 0")
            a(f"s_cbranch_scc1 L_nz{c}")
            for r in range(8 * c, 8 * c + 8):
                a(f"v_mov_b32 v{vAcc+r}, 0")
            a.label(f"L_nz{c}")
        if not SPLIT and i == max(4 * NB0, min(WF, W)) - 1:
            a.c("set-up work, hidden behind the first loads")
            a(f"s_cmp_lg_u32 s{sRnd}, 0")
            a("s_cbranch_scc1 L_vinit")
            first_tick()
            if STAMP and not LITE:
                a("s_waitcnt lgkmcnt(0)")
                a(f"v_writelane_b32 v{vX}, s{sSt}, 9")
                a(f"v_writelane_b32 v{vX+1}, s{sSt+1}, 9")
            common_init()
            a(f"s_mov_b32 s{sV}, s8")
            a(f"s_mov_b32 s{sV+1}, s9")
            a(f"s_mov_b32 s{sV+3}, 0x20000")
            a(f"v_lshlrev_b32 v{vVo0}, 13, v{vG}")
            a(f"v_lshl_add_u32 v{vVo0}, v{vN}, 4, v{vVo0}")
            a(f"v_add_u32 v{vVo0}, s{sT+3}, v{vVo0}")
            a(f"v_add_u32 v{vVo1}, 4096, v{vVo0}")
            a(f"v_mov_b32 v{vSig}, 0")
            a(f"v_lshrrev_b32 v{vSa}, 2, v{vA}")
            a(f"v_add_u32 v{vSa}, {KL}, v{vSa}")
            a(f"s_mov_b32 s{sSelLo}, 0x05040100")
            a(f"s_mov_b32 s{sSelHi}, 0x07060302")
            a(f"s_lshl_b32 s{sT}, s{sH}, 18")
            a(f"s_lshl_b32 s{sT+1}, s{sI}, 8")
            a(f"s_add_u32 s{sT}, s{sT}, s{sT+1}")
            a(f"v_lshlrev_b32 v{vWo}, 16, v{vG}")
            a(f"v_lshl_add_u32 v{vWo}, v{vN}, 4, v{vWo}")
            a(f"v_add_u32 v{vWo}, s{sT}, v{vWo}", "hand-off piece of slice 8*g + j: + j*8192")
            for j in range(1, 8):
                a(f"s_mov_b32 s{sJ+j}, {j*8192}")
            for r in range(32):
                a(f"v_mov_b32 v{vAcc+r}, 0")
            a(f"s_mov_b32 s{sT0}, 0x07060500")
            a(f"s_mov_b32 s{sT3}, 0x07060501")
            a.c("byte offset of candidate l = lane: (32*l + ((i - (l & 0x38)) & 31)) << 15")
            a(f"v_lshrrev_b32 v{vT+5}, 4, v{vA}")
            a(f"v_and_b32 v{vT+6}, 0x38, v{vT+5}")
            a(f"v_sub_u32 v{vT+6}, s{sI}, v{vT+6}")
            a(f"v_and_b32 v{vT+6}, 31, v{vT+6}")
            a(f"v_lshl_add_u32 v{vT+6}, v{vT+5}, 5, v{vT+6}")
            a(f"v_lshlrev_b32 v{vT+6}, 15, v{vT+6}")
            if WF < W:
                a(f"s_lshr_b32 s{sT}, {SLOW}, s{sH}")
                a(f"s_bitcmp0_b32 s{sT}, 0")
                a(f"s_cselect_b64 s[{sM1}:{sM1+1}], -1, 0")
            a.label("L_vinit")
            vcc_mode()
            st["init"] = True
        if i == W:
            tick(2)
        if i == IL - 2:
            list_read()
        elif i == IL:
            a(f"s_cmp_lg_u32 s{sRnd}, 0")
            a("s_cbranch_scc1 L_vlist")
            tick(14)
            get_list("L_sl")
            a.c("position of candidate l: l < 8 static, else 8 + rank among the referenced ones; unreferenced -> lane 63")
            a(f"s_and_b32 s{sT}, vcc_lo, 0xff")
            a(f"s_and_b32 vcc_hi, vcc_hi, 0xff")
            a(f"s_or_b32 vcc_lo, vcc_lo, 0xff")
            a(f"v_mbcnt_lo_u32_b32 v{vT+4}, vcc_lo, 0")
            a(f"v_mbcnt_hi_u32_b32 v{vT+4}, vcc_hi, v{vT+4}")
            a(f"s_bfm_b64 s[{sVal}:{sVal+1}], s{sMore}, 8")
            a(f"v_cndmask_b32 v{vT+4}, 63, v{vT+4}, vcc")
            a(f"s_or_b32 s{sBad}, s{sVal}, s{sT}")
            a(f"v_lshlrev_b32 v{vT+4}, 2, v{vT+4}")
            a(f"s_or_b32 s{sVal}, s{sVal}, 0xff")
            a(f"ds_permute_b32 v{vList}, v{vT+4}, v{vT+6}")
            a(f"s_add_u32 s{sEp}, s{sEp}, 1")
            make_tag(vTag, vN, vT + 4)
            a("s_waitcnt lgkmcnt(0)")
            tick(3)
            vcc_mode()
            a.label("L_vlist")
            st["list"] = True
        elif i == 4 * bpos[("K", 8)]:
            a(f"s_mov_b32 s{sVal}, s{sBad}", "from here on unreferenced static blocks are skipped")
        if kind == "K" and k == IPA and q == 1:
            p_read(0)
        elif kind == "K" and k == IPA and q == 3:
            fetch_p(0); st["p"] = 1
        elif (i & 1) == 1:
            retire(best)
        if i == NL - 1 - int(opts.get("sml", "48")) and opts.get("late", "1") != "1":
            signal(C4, vT + 3)
        if i == 4 * bpos[("K", 31)] + 3:
            tick(4)
    signal(C4, vT + 3)
    tick(15)
    retire(best, final=True)
    while st["pairs"] < 63:
        c = pair_done_at(st["pairs"])
        a(f"s_waitcnt vmcnt({NL - 1 - c})")
        retire(c, final=True)
    assert st["kl"] == 32
    a(f"s_cmp_gt_u32 s{sMore}, 24")
    a("s_cbranch_scc1 L_vmore")
    a(f"s_bitcmp1_b32 s{sMode}, 0")
    a("s_cbranch_scc1 L_slowo")
    def tail(sfx):
        a("s_waitcnt vmcnt(0) lgkmcnt(0)")
        for op in "p0 p1 p2 p3 M0 M1 p4 p5 M2 M3 p6 p7 M4 M5 S0 M6 M7 S1 S2 S3 S4 S5 S6 S7".split():
            j = int(op[1])
            if op[0] == "p":
                perm1(63, j)
            elif op[0] == "M":
                mfma1(15, j)
            else:
                R = vAcc + 4 * j
                a(f"v_perm_b32 v{R}, v{R}, v{vTag}, s{sT0}")
                a(f"v_perm_b32 v{R+3}, v{R+3}, v{vTag}, s{sT3}")
                a(f"buffer_store_dwordx4 v[{R}:{R+3}], v{vWo}, s[{sWS}:{sWS+3}], {'0' if j == 0 else 's%d' % (sJ + j)} offen {sfx}")
    tail("")
    tick(8)
    if opts.get("wb", "0") == "1":
        a("s_waitcnt vmcnt(0)")
        a("buffer_wbl2 sc1")
    a("s_branch L_fin" if STAMP else "s_endpgm")

    a.label("L_cmain")
    a("s_barrier")
    a(f"s_lshr_b32 s{sW}, s{sW}, 6")
    a(f"s_and_b32 s{sWl}, s{sW}, 3")
    first_tick()
    a(f"v_mov_b32 v{vZ}, 0")
    a(f"v_lshrrev_b32 v{vT+8}, 2, v{vA}")
    a(f"v_and_b32 v{vKl}, 0xff, v{vT+8}")
    a(f"v_add_u32 v{vKl}, {KL}, v{vKl}")
    a(f"v_and_b32 v{vT+8}, 0x1fc, v{vT+8}", "first of this thread's four table columns")
    a(f"s_lshr_b32 s{sT}, s{sWl}, 1")
    a(f"s_lshl_b32 s{sT}, s{sT}, 2")
    a(f"v_mov_b32 v{vT+7}, s{sT}")
    a("s_waitcnt lgkmcnt(0)")
    tick(1)
    for b in range(4):
        a(f"s_min_i32 s{sT}, s{sN+b}, 0x2000")
        a(f"s_cmp_lt_i32 s{sN+b}, 1")
        a(f"s_cselect_b32 s{sN+b}, 0x2000, s{sT}", "context length clamped to 1..8192 (<= 0: all positions, equal scores)")
        a(f"s_cselect_b32 s{sT}, {hex(0x000f000f << (4*b))}, 0")
        if b == 0:
            a(f"s_mov_b32 s{sM0}, s{sT}")
        else:
            a(f"s_or_b32 s{sM0}, s{sM0}, s{sT}")
    a.c("increment per (sequence, column): 1 full block, 0x10000 partial last block, 0 beyond the context")
    for hh in range(2):
        a(f"s_cmp_lt_u32 s{sWl}, 2")
        a(f"s_cselect_b32 s{sT}, s{sN+2*hh}, s{sN+2*hh+1}")
        a(f"s_lshr_b32 s{sT+1}, s{sT}, 4")
        a(f"v_sub_u32 v{vT+4}, s{sT+1}, v{vT+8}")
        a(f"s_and_b32 s{sT}, s{sT}, 15")
        a(f"s_cselect_b32 s{sT}, 0x10000, 0")
        a(f"v_mov_b32 v{vT+5}, s{sT}")
        for e in range(4):
            a(f"v_cmp_eq_i32 s[{sCm+2*e}:{sCm+2*e+1}], {e}, v{vT+4}")
        for e in range(4):
            a(f"v_cmp_lt_i32 s[{sRm+2*e}:{sRm+2*e+1}], {e}, v{vT+4}")
        for e in range(4):
            a(f"v_cndmask_b32 v{vInc+4*hh+e}, 0, v{vT+5}, s[{sCm+2*e}:{sCm+2*e+1}]")
        for e in range(4):
            a(f"v_cndmask_b32 v{vInc+4*hh+e}, v{vInc+4*hh+e}, 1, s[{sRm+2*e}:{sRm+2*e+1}]")
    a(f"s_movk_i32 s{sT+2}, 0x3f0")
    a.c("inverse page map restricted to this workgroup's physical blocks")
    for hh in range(2):
        a(f"s_waitcnt vmcnt({1 - hh})")
        if hh == 0:
            tick(2)
        for e in range(4):
            p = vTb + 4 * hh + e
            t = vT + 4 + (e & 1)
            a(f"v_lshrrev_b32 v{t}, 8, v{p}")
            a(f"v_lshl_add_u32 v{t}, v{t}, 3, v{p}")
            a(f"v_lshrrev_b32 v{p}, 1, v{p}")
            a(f"v_and_b32 v{t}, 31, v{t}")
            a(f"v_and_or_b32 v{p}, v{p}, s{sT+2}, v{vT+7}")
            a(f"v_cmpx_eq_u32 vcc, s{sI}, v{t}")
            a(f"ds_add_u32 v{p}, v{vInc+4*hh+e} offset:{INV + 8*hh}")
            a("s_mov_b64 exec, -1")
    signal(C0, vT + 4)
    tick(14)
    a(f"s_mov_b32 s{sQ}, s4")
    a(f"s_mov_b32 s{sQ+1}, s5")
    a(f"s_mov_b32 s{sQ+2}, 32768")
    a(f"s_mov_b32 s{sQ+3}, 0x20000")
    a(f"s_lshl_b32 s{sT+1}, s{sWl}, 6")
    a(f"v_xor_b32 v{vT+6}, s{sT+1}, v{vX16}")
    a(f"v_lshl_add_u32 v{vT+6}, v{vG}, 8, v{vT+6}")
    a(f"s_lshl_b32 s{sT+1}, s{sH}, 10")
    a(f"s_lshl_b32 s{sT+2}, s{sWl}, 13")
    a(f"s_add_u32 s{sT+1}, s{sT+1}, s{sT+2}")
    a(f"s_lshl_b32 s{sT+2}, s{sWl}, 10")
    a(f"s_add_u32 m0, s{sT+2}, {QL}")
    common_init()
    a(f"buffer_load_dwordx4 v{vT+6}, s[{sQ}:{sQ+3}], s{sT+1} offen lds", "four query rows -> LDS")
    a(f"v_lshrrev_b32 v{vLane}, 4, v{vL16}")
    a(f"s_lshl_b32 s{sWb}, s{sWl}, 12")
    a(f"s_addk_i32 s{sWb}, {KB}")
    a(f"s_lshr_b32 s{sT}, s{sWl}, 1")
    a(f"s_lshl_b32 s{sT}, s{sT}, 10")
    a(f"s_and_b32 s{sT+1}, s{sWl}, 1")
    a(f"s_lshl_b32 s{sT+1}, s{sT+1}, 3")
    a(f"s_add_u32 s{sT}, s{sT}, s{sT+1}")
    a(f"v_add_u32 v{vPa}, s{sT}, v{vL16}", "P of position 4b+w: tile 2b + (w>>1), half w&1")
    a(f"v_lshlrev_b32 v{vT+4}, 8, v{vN}")
    a(f"v_add_u32 v{vT+4}, s{sWb}, v{vT+4}")
    for j in range(4):
        if j == 0:
            a(f"v_add_u32 v{vKr}, v{vX16}, v{vT+4}")
        else:
            a(f"v_xor_b32 v{vKr+j}, {64*j}, v{vKr}")
    a(f"v_and_b32 v{vB4}, 12, v{vN}")
    a(f"v_mov_b32 v{vM}, {NEG}")
    a(f"v_mov_b32 v{vL}, 0")
    a(f"v_lshlrev_b32 v{vMx}, 4, v{vN}")
    a(f"s_lshl_b32 s{sT}, s{sWl}, 2")
    a(f"v_add_u32 v{vMw}, s{sT}, v{vMx}")
    a(f"s_mov_b32 s{sM0+1}, s{sM0}")
    a(f"v_mov_b32 v{vC}, 0x3e0293ee", "log2(e)/sqrt(128)")
    a(f"v_cndmask_b32 v{vC}, v{vC}, 0, s[{sM0}:{sM0+1}]")
    a(f"s_and_b32 s{sT}, s{sN}, 15")
    for b in range(1, 4):
        a(f"s_and_b32 s{sT+1}, s{sN+b}, 15")
        a(f"s_lshl_b32 s{sT+1}, s{sT+1}, {4*b}")
        a(f"s_or_b32 s{sT}, s{sT}, s{sT+1}")
    a(f"v_lshrrev_b32 v{vT+4}, v{vB4}, s{sT}")
    a(f"v_and_b32 v{vT+4}, 15, v{vT+4}")
    a(f"v_lshlrev_b32 v{vT+5}, 2, v{vG}")
    a(f"v_sub_u32 v{vT+4}, v{vT+4}, v{vT+5}")
    for r in range(4):
        a(f"v_cmp_lt_i32 s[{sRm+2*r}:{sRm+2*r+1}], {r}, v{vT+4}", "token 4g+r inside the partial last block" if r == 0 else None)
    a(f"v_and_b32 v{vOa}, 0x1f0, v{vL16}", "arrival granule of workgroup lane&31")
    a(f"s_add_u32 s{sKb}, s{sWl}, 1")
    list_read()
    get_list("L_cl")
    a(f"v_mbcnt_lo_u32_b32 v{vT+4}, s{sCm}, 0")
    a(f"s_lshr_b32 s{sBad}, vcc_lo, s{sWl}")
    a(f"v_and_b32 v{vT+4}, 3, v{vT+4}")
    a(f"v_cmp_eq_u32 vcc, s{sWl}, v{vT+4}")
    a(f"s_andn2_b32 s{sBad}, 0x11, s{sBad}", "bit0 / bit4: first / second static block is not referenced")
    a(f"s_and_b32 s{sU}, vcc_lo, s{sCm}")
    tick(3)
    a("s_waitcnt vmcnt(0)", "Q rows have landed")
    signal(CQ, vT + 4)
    a(f"s_add_u32 s{sEp}, s{sEp}, 1", "hand-off epoch of this launch")
    a(f"s_not_b32 s{sNEp}, s{sEp}")
    a(f"s_getreg_b32 s{sXcc}, hwreg(HW_REG_XCC_ID, 0, 4)")
    a(f"s_lshl_b32 s{sAr}, s{sH}, {5 + ARS}")
    a(f"s_add_u32 s{sAr}, s{sAr}, {WS_AR}")
    a(f"s_cmp_lg_u32 s{sW}, 4")
    a("s_cbranch_scc1 L_noarr")
    a.c("arrival mark of this workgroup")
    a(f"s_lshl_b32 s{sT}, s{sI}, {ARS}")
    a(f"v_mov_b32 v{vT}, s{sT}")
    a(f"v_mov_b32 v{vS+16}, s{sEp}")
    a(f"v_mov_b32 v{vS+17}, s{sNEp}")
    a(f"v_mov_b32 v{vS+18}, s{sXcc}")
    a("s_mov_b64 exec, 1")
    a(f"buffer_store_dwordx3 v[{vS+16}:{vS+18}], v{vT}, s[{sWS}:{sWS+3}], s{sAr} offen sc1")
    a("s_mov_b64 exec, -1")
    a.label("L_noarr")
    spin(CQ, vT + 4, "L_sq", "4")

    def finish(b):
        if b < 2:
            a(f"s_bitcmp1_b32 s{sBad}, {4*b}")
            a(f"s_cbranch_scc0 L_good{b}")
            for r in range(4):
                a(f"v_mov_b32 v{vS+4*b+r}, 0")
            a.label(f"L_good{b}")
        wb_, b = b, b & 3
        a(f"v_and_b32 v{vT+4}, 0xffff, v{vW+wb_}")
        a(f"v_lshrrev_b32 v{vT+5}, 16, v{vW+wb_}")
        a(f"v_add_u32 v{vT+5}, v{vT+5}, v{vT+4}")
        a(f"v_cvt_f32_u32 v{vT+4}, v{vT+4}")
        a(f"v_cvt_f32_u32 v{vT+5}, v{vT+5}")
        a(f"v_log_f32 v{vT+4}, v{vT+4}")
        a(f"v_log_f32 v{vT+5}, v{vT+5}")
        a("s_nop 0")
        for r in range(4):
            a(f"v_cndmask_b32 v{vT+6+r}, v{vT+4}, v{vT+5}, s[{sRm+2*r}:{sRm+2*r+1}]")
        for r in range(4):
            a(f"v_fma_f32 v{vS+4*b+r}, v{vS+4*b+r}, v{vC}, v{vT+6+r}")
        src = vM if b == 0 else vT
        a(f"v_max3_f32 v{vT}, v{src}, v{vS+4*b}, v{vS+4*b+1}")
        a(f"v_max3_f32 v{vT}, v{vT}, v{vS+4*b+2}, v{vS+4*b+3}")
    def qk(b):
        f = vKf + 16 * (b & 1)
        sb = vS + 4 * (b & 3)
        for j in range(4):
            a(f"ds_read_b128 v[{f+4*j}:{f+4*j+3}], v{vKr+j} offset:{(b & 3)*16384}")
        for j in range(4):
            c = "0" if j == 0 else f"v[{sb}:{sb+3}]"
            a(f"s_waitcnt lgkmcnt({3-j})")
            a(f"v_mfma_f32_16x16x32_bf16 v[{sb}:{sb+3}], v[{f+4*j}:{f+4*j+3}], v[{vQ+4*j}:{vQ+4*j+3}], {c}")
        if b < 2:
            a("s_nop 5")
        finish(b)
    def wread(k):
        a(f"v_add_u32 v{vW+k}, s{sLc}, v{vB4}")
        a(f"ds_read_b32 v{vW+k}, v{vW+k} offset:{INV}")

    a(f"s_lshl_b32 s{sLc}, s{sWl}, 4")
    a(f"v_add_u32 v{vW}, s{sLc}, v{vB4}")
    a(f"ds_read_b32 v{vW+1}, v{vW} offset:{INV + 64}")
    a(f"ds_read_b32 v{vW}, v{vW} offset:{INV}")
    a(f"s_sub_u32 s{sT}, s{sWb}, {QL}")
    for j in range(4):
        a(f"v_subrev_u32 v{vT+j}, s{sT}, v{vKr+j}")
        a(f"ds_read_b128 v[{vQ+4*j}:{vQ+4*j+3}], v{vT+j}")
    a.label("L_kround")
    for k in range(2, 8):
        pop_lc()
        wread(k)
    a.c("scores: scale, add log2(multiplicity) of the (block, sequence) pair (-inf when masked), running max")
    def decide():
        a.c("wave 4 decides how this workgroup hands its partial results over")
        a.c("mode word: bit0 = write-through stores, bits 8..15 first slice, bits 16..23 end slice")
        a(f"s_cmp_lg_u32 s{sW}, 4")
        a("s_cbranch_scc1 L_decided")
        a(f"s_lshl_b32 s{sMode}, s{sI}, 8")
        a(f"s_add_u32 s{sT}, s{sI}, 1")
        a(f"s_lshl_b32 s{sT}, s{sT}, 16")
        a(f"s_or_b32 s{sMode}, s{sMode}, s{sT}")
        a(f"s_mov_b32 s{sSpin}, 0")
        a.label("L_look")
        a("s_waitcnt vmcnt(0)")
        if FORCE == "abandon":
            a(f"s_bitcmp1_b32 s{sI}, 0")
            a(f"s_cselect_b32 s{sT}, 0, -1")
            a(f"v_and_b32 v{FO}, s{sT}, v{FO}")
            a(f"v_and_b32 v{FO+1}, s{sT}, v{FO+1}")
        if FORCE == "all":
            a(f"v_or_b32 v{FO+2}, 0x100, v{FO+2}")
        a(f"v_cmp_ne_u32 vcc, s{sEp}, v{FO}")
        a(f"v_cmp_ne_u32 s[{sCm}:{sCm+1}], s{sNEp}, v{FO+1}")
        a(f"v_cmp_ne_u32 s[{sCm+2}:{sCm+3}], s{sXcc}, v{FO+2}")
        a(f"v_cmp_le_u32 s[{sCm+4}:{sCm+5}], 64, v{FO+2}")
        a(f"s_or_b64 vcc, vcc, s[{sCm}:{sCm+1}]")
        a(f"s_or_b64 s[{sCm+2}:{sCm+3}], s[{sCm+2}:{sCm+3}], vcc")
        a("s_cbranch_scc1 L_notfast")
        a.label("L_modeset")
        a(f"v_mov_b32 v{vT+1}, s{sMode}")
        a(f"ds_write_b32 v{vZ}, v{vT+1} offset:{FLG}")
        a.label("L_decided")
    for hf in range(2):
        for b in range(4 * hf, 4 * hf + 4):
            a.label(f"L_kw{b}")
            if "spl" in opts:
                a(f"s_sleep {opts['spl']}")
            a(f"ds_read_b32 v{vT+1}, v{vKl}")
            a("s_waitcnt lgkmcnt(0)")
            a(f"v_cmp_gt_u32 vcc, s{sKb}, v{vT+1}")
            a(f"s_cbranch_vccnz L_kw{b}")
            a(f"s_add_u32 s{sKb}, s{sKb}, 4")
            qk(b)
            if b == CHKB:
                a(f"s_cmp_lg_u32 s{sW}, 4")
                a("s_cbranch_scc1 L_nochk")
                a("s_waitcnt vmcnt(0)")
                a(f"buffer_load_dwordx3 v[{FO}:{FO+2}], v{vOa}, s[{sWS}:{sWS+3}], s{sAr} offen sc1")
                a.label("L_nochk")
        if hf:
            tick(4)
        xreduce("v_max_f32", vT, vT + 1)
        a(f"ds_write_b32 v{vMw}, v{vT}")
        signal(C1, vT + 1)
        for j in range(4):
            a(f"v_xor_b32 v{vKr+j}, 0x10000, v{vKr+j}", "other half of the K positions" if j == 0 else None)
        if hf:
            tick(13)
            decide()
        spin(C1, vT + 1, f"L_s1{hf}", f"s{sExp}")
        a(f"ds_read_b128 v[{vT+4}:{vT+7}], v{vMx}")
        a("s_waitcnt lgkmcnt(0)")
        a(f"v_max3_f32 v{vT}, v{vT+4}, v{vT+5}, v{vT+6}")
        a(f"v_max_f32 v{vT}, v{vT}, v{vT+7}", "workgroup-wide running row maximum")
        a(f"v_sub_f32 v{vT+2}, v{vM}, v{vT}")
        a(f"v_exp_f32 v{vT+2}, v{vT+2}")
        a(f"v_mov_b32 v{vM}, v{vT}")
        for e in range(0, 16, 2):
            a(f"v_pk_add_f32 v[{vS+e}:{vS+e+1}], v[{vS+e}:{vS+e+1}], v[{vT}:{vT+1}] op_sel_hi:[1,0] neg_lo:[0,1] neg_hi:[0,1]")
        a(f"v_mul_f32 v{vL}, v{vL}, v{vT+2}")
        a(f"ds_write_b32 v{vKl}, v{vT+2} offset:{AL - KL + 256*hf}")
        for e in range(16):
            a(f"v_exp_f32 v{vS+e}, v{vS+e}")
        for e in range(8):
            a(f"v_cvt_pk_bf16_f32 v{vP+e}, v{vS+2*e}, v{vS+2*e+1}")
        for b in range(4):
            a(f"ds_write_b64 v{vPa}, v[{vP+2*b}:{vP+2*b+1}] offset:{PB + (4*hf + b)*2048}")
        for stp in (8, 4, 2):
            for e in range(0, stp, 2):
                a(f"v_pk_add_f32 v[{vS+e}:{vS+e+1}], v[{vS+e}:{vS+e+1}], v[{vS+e+stp}:{vS+e+stp+1}]")
        a(f"v_add_f32 v{vS}, v{vS}, v{vS+1}")
        a(f"v_add_f32 v{vL}, v{vL}, v{vS}")
        if hf:
            a(f"v_mov_b32 v{vT}, v{vL}")
            xreduce("v_add_f32", vT, vT + 1)
            a(f"ds_write_b32 v{vMw}, v{vT} offset:{LS - MX}")
        signal(C2, vT + 1)
        if str(hf) in opts.get("rw", "n"):
            a.c("keep the not yet executed text in L2: each compute wave of the XCD touches two of its lines")
            a(f"s_getpc_b64 s[{sCm+6}:{sCm+7}]")
            a.label(f"L_pc{hf}")
            a(f"s_lshl_b32 s{sCm}, s{sI}, 2")
            a(f"s_add_u32 s{sCm}, s{sCm}, s{sWl}")
            a(f"s_lshl_b32 s{sCm}, s{sCm}, 7")
            a(f"s_sub_u32 s{sCm+6}, s{sCm+6}, (L_pc{hf} - L_smain)")
            a(f"s_subb_u32 s{sCm+7}, s{sCm+7}, 0")
            a(f"v_lshl_add_u32 v{vT+2}, v{vLane}, 14, s{sCm}")
            a(f"v_min_u32 v{vT+2}, (L_codeend - L_smain - 4), v{vT+2}")
            a("s_mov_b64 exec, 3")
            a(f"global_load_dword v{FA+6}, v{vT+2}, s[{sCm+6}:{sCm+7}] sc1")
            a("s_mov_b64 exec, -1")
        spin(C2, vT + 1, f"L_s2{hf}", f"s{sExp}")
        a(f"s_add_u32 s{sExp}, s{sExp}, 4")
        tick(5 if hf else 6)
    a(f"s_cmp_gt_u32 s{sMore}, 24")
    a("s_cbranch_scc1 L_kmore")

    a.c("(max, sum) granules: [head][row group w][workgroup][4 rows]")
    a(f"s_lshl_b32 s{sMl}, s{sH}, 2")
    a(f"s_add_u32 s{sMl}, s{sMl}, s{sWl}")
    a(f"s_lshl_b32 s{sMl}, s{sMl}, 11")
    a(f"s_add_u32 s{sMl}, s{sMl}, {WS_ML}")
    a(f"s_lshl_b32 s{sT}, s{sI}, 6")
    a(f"s_add_u32 s{sT}, s{sT}, s{sMl}")
    a(f"v_and_b32 v{vT+4}, 0x30, v{vL16}")
    a(f"v_add_u32 v{vT+4}, s{sT}, v{vT+4}")
    a(f"v_mov_b32 v{vS}, v{vM}")
    a(f"v_mov_b32 v{vS+2}, s{sEp}")
    a(f"v_mov_b32 v{vS+3}, s{sNEp}")
    a(f"ds_read_b32 v{vT}, v{vZ} offset:{FLG}")
    a(f"ds_read_b128 v[{vS+4}:{vS+7}], v{vMx} offset:{LS - MX}")
    a("s_waitcnt lgkmcnt(0)")
    a(f"v_readfirstlane_b32 s{sMode}, v{vT}")
    a(f"v_add_f32 v{vS+4}, v{vS+4}, v{vS+5}")
    a(f"v_add_f32 v{vS+6}, v{vS+6}, v{vS+7}")
    a(f"v_add_f32 v{vS+1}, v{vS+4}, v{vS+6}")
    a(f"s_lshl_b32 s{sT}, s{sWl}, 2")
    a(f"s_lshl_b64 exec, 15, s{sT}", "each compute wave publishes four rows")
    a(f"s_bitcmp1_b32 s{sMode}, 0")
    a("s_cbranch_scc1 L_mlslow")
    a(f"buffer_store_dwordx4 v[{vS}:{vS+3}], v{vT+4}, s[{sWS}:{sWS+3}], 0 offen")
    a.label("L_mldone")
    a("s_mov_b64 exec, -1")
    a(f"v_lshrrev_b32 v{vT}, 2, v{vLane}")
    a(f"v_and_b32 v{vT+1}, 3, v{vLane}")
    a(f"v_add_u32 v{vT+2}, s{sT}, v{vT+1}", "unit u = 4*w + (lane&3)")
    a(f"v_lshlrev_b32 v{vOa}, 8, v{vT}")
    a(f"v_lshl_add_u32 v{vOa}, v{vT+2}, 4, v{vOa}", "c*256 + u*16")
    make_tag(vTagC, vT + 2, vT + 3)
    a(f"s_mov_b32 s{sT3}, s{sT}")
    a(f"s_movk_i32 s{sT0}, 0xff00")
    a(f"s_lshl_b32 s{sT}, s{sWl}, 13")
    a(f"s_lshl_b32 s{sT+1}, s{sH}, 10")
    a(f"s_add_u32 s{sT}, s{sT}, s{sT+1}")
    a(f"v_lshl_add_u32 v{vOut}, v{vT+1}, 8, s{sT}", "output row of unit u")
    a(f"v_and_b32 v{vT}, 1, v{vG}")
    a(f"v_lshl_add_u32 v{vOut}, v{vT}, 5, v{vOut}")
    a(f"v_lshrrev_b32 v{vT}, 1, v{vG}")
    a(f"v_lshl_add_u32 v{vOut}, v{vT}, 4, v{vOut}")
    a(f"v_and_b32 v{vT}, 12, v{vN}")
    a(f"v_lshl_add_u32 v{vOut}, v{vT}, 16, v{vOut}", "lanes holding duplicates fall outside the buffer")
    a(f"s_mov_b32 s{sQ}, s14", "output descriptor (same size as q)")
    a(f"s_mov_b32 s{sQ+1}, s15")
    a(f"s_mov_b32 s{sSpin}, 0")
    a(f"s_bfe_u32 s{sLo}, s{sMode}, 0x80008")
    a(f"s_lshr_b32 s{sHi}, s{sMode}, 16")
    a(f"s_cmp_ge_u32 s{sLo}, s{sHi}")
    a("s_cbranch_scc1 L_fin")
    if opts.get("rf", "1") == "1":
        a.c("the final instructions run once, on every CU at the same time: pull them back into L2")
        a(f"s_getpc_b64 s[{sCm+6}:{sCm+7}]")
        a.label("L_pcf")
        a(f"s_lshl_b32 s{sT}, s{sWl}, 7")
        a(f"s_add_u32 s{sT}, s{sT}, (L_opoll - L_pcf)")
        a(f"v_mov_b32 v{vT}, s{sT}")
        a("s_mov_b64 exec, 1")
        a(f"global_load_dword v{FA+6}, v{vT}, s[{sCm+6}:{sCm+7}] sc1")
        a("s_mov_b64 exec, -1")
    a.label("L_slice")
    a(f"s_lshl_b32 s{sT}, s{sH}, 5")
    a(f"s_add_u32 s{sT}, s{sT}, s{sLo}")
    a(f"s_lshl_b32 s{sO0}, s{sT}, 13")
    a(f"s_add_u32 s{sO1}, s{sO0}, 4096")
    a(f"s_lshr_b32 s{sOut}, s{sLo}, 3")
    a(f"s_lshl_b32 s{sOut}, s{sOut}, 6")
    a(f"s_and_b32 s{sT}, s{sLo}, 7")
    a(f"s_lshl_b32 s{sT}, s{sT}, 1")
    a(f"s_add_u32 s{sOut}, s{sOut}, s{sT}", "slice 8g+j: d = 32g + 8r + j")
    a(f"s_mov_b64 s[{sM0}:{sM0+1}], -1")
    a(f"s_mov_b64 s[{sM1}:{sM1+1}], -1")
    def o_masked():
        a(f"s_wqm_b64 exec, s[{sM0}:{sM0+1}]")
        a(f"buffer_load_dwordx4 v[{FO}:{FO+3}], v{vOa}, s[{sWS}:{sWS+3}], s{sO0} offen sc1")
        a(f"s_wqm_b64 exec, s[{sM1}:{sM1+1}]")
        a(f"buffer_load_dwordx4 v[{FO+4}:{FO+7}], v{vOa}, s[{sWS}:{sWS+3}], s{sO1} offen sc1")
        a("s_mov_b64 exec, -1")
    def o_check():
        a(f"v_perm_b32 v{vT+2}, v{FO+3}, v{FO}, s{sT3}")
        a(f"v_perm_b32 v{vT+3}, v{FO+7}, v{FO+4}, s{sT3}")
        a(f"v_cmp_ne_u32 s[{sM0}:{sM0+1}], v{vT+2}, v{vTagC}")
        a(f"v_cmp_ne_u32 s[{sM1}:{sM1+1}], v{vT+3}, v{vTagC}")
    def ml_loads():
        a(f"buffer_load_dwordx4 v[{FM}:{FM+3}], v{vL16}, s[{sWS}:{sWS+3}], s{sMl} offen sc1")
        a(f"buffer_load_dwordx4 v[{FM+4}:{FM+7}], v{vL16}, s[{sWS}:{sWS+3}], s{sMl} offen offset:1024 sc1")
    a(f"s_lshr_b32 s{sT+3}, s{sExp}, 3")
    LATE = opts.get("late", "1") == "1"
    if LATE:
        a.c("wait until the streamer has issued its last load")
        spin(C4, vT + 1, "L_s4a", f"s{sT+3}")
    else:
        a(f"s_lshl_b32 s{sT+3}, s{sT+3}, 1", "the streamer signals twice per round")
        a(f"s_sub_u32 s{sT}, s{sT+3}, 1")
        spin(C4, vT + 1, "L_s4a", f"s{sT}")
    a.c("poll the (max, sum) granules")
    a.label("L_mlpoll")
    ml_loads()
    if LATE:
        o_masked()
    a(f"s_add_u32 s{sSpin}, s{sSpin}, 1")
    a(f"s_cmp_ge_u32 s{sSpin}, 0x400000")
    a("s_cbranch_scc1 L_fin")
    a(f"s_waitcnt vmcnt({2 if LATE else 0})")
    a(f"v_cmp_ne_u32 vcc, s{sEp}, v{FM+2}")
    a(f"v_cmp_ne_u32 s[{sCm}:{sCm+1}], s{sNEp}, v{FM+3}")
    a(f"v_cmp_ne_u32 s[{sCm+2}:{sCm+3}], s{sEp}, v{FM+6}")
    a(f"v_cmp_ne_u32 s[{sCm+4}:{sCm+5}], s{sNEp}, v{FM+7}")
    a(f"v_max_f32 v{vT}, v{FM}, v{FM+4}")
    a(f"s_or_b64 vcc, vcc, s[{sCm}:{sCm+1}]")
    a(f"s_or_b64 vcc, vcc, s[{sCm+2}:{sCm+3}]")
    a(f"s_or_b64 vcc, vcc, s[{sCm+4}:{sCm+5}]")
    if LATE:
        a("s_cbranch_scc0 L_w")
        a("s_waitcnt vmcnt(0)")
        o_check()
        a("s_branch L_mlpoll")
        a.label("L_w")
    else:
        a("s_cbranch_scc1 L_mlpoll")
    a(f"v_max_f32_dpp v{vT}, v{vT}, v{vT} row_ror:4 {DPP}")
    a("s_nop 1")
    a(f"v_max_f32_dpp v{vT}, v{vT}, v{vT} row_ror:8 {DPP}")
    xreduce("v_max_f32", vT, vT + 1)
    a(f"v_sub_f32 v{FM}, v{FM}, v{vT}")
    a(f"v_sub_f32 v{FM+4}, v{FM+4}, v{vT}")
    a(f"v_exp_f32 v{FM}, v{FM}")
    a(f"v_exp_f32 v{FM+4}, v{FM+4}")
    a(f"v_mul_f32 v{vT}, v{FM}, v{FM+1}")
    a(f"v_fmac_f32 v{vT}, v{FM+4}, v{FM+5}")
    a("s_nop 1")
    a(f"v_add_f32_dpp v{vT}, v{vT}, v{vT} row_ror:4 {DPP}")
    a("s_nop 1")
    a(f"v_add_f32_dpp v{vT}, v{vT}, v{vT} row_ror:8 {DPP}")
    xreduce("v_add_f32", vT, vT + 1)
    a(f"v_rcp_f32 v{vT}, v{vT}")
    a("s_nop 0")
    a(f"v_mul_f32 v{FM}, v{FM}, v{vT}")
    a(f"v_mul_f32 v{FM+4}, v{FM+4}, v{vT}", "normalised weights of contributors c and 16+c")
    tick(9)
    if LATE:
        a("s_branch L_owait")
    else:
        spin(C4, vT + 1, "L_s4c", f"s{sT+3}")
    a.c("poll the 64-byte pieces that do not carry this launch's tag yet")
    a.label("L_opoll")
    if "slp" in opts:
        a(f"s_sleep {opts['slp']}")
    o_masked()
    a(f"s_add_u32 s{sSpin}, s{sSpin}, 1")
    a(f"s_cmp_ge_u32 s{sSpin}, 0x400000")
    a("s_cbranch_scc1 L_fin")
    a.label("L_owait")
    a("s_waitcnt vmcnt(0)")
    o_check()
    a(f"v_and_b32 v{FA}, s{sT0}, v{FO}", "drop the tag bytes")
    a(f"v_and_b32 v{FA+3}, s{sT0}, v{FO+3}")
    a(f"s_or_b64 vcc, s[{sM0}:{sM0+1}], s[{sM1}:{sM1+1}]")
    a("s_cbranch_scc1 L_opoll")
    a(f"v_and_b32 v{FO+4}, s{sT0}, v{FO+4}")
    a(f"v_and_b32 v{FO+7}, s{sT0}, v{FO+7}")
    a(f"v_mul_f32 v{FA}, v{FA}, v{FM}")
    a(f"v_mul_f32 v{FA+1}, v{FO+1}, v{FM}")
    a(f"v_mul_f32 v{FA+2}, v{FO+2}, v{FM}")
    a(f"v_mul_f32 v{FA+3}, v{FA+3}, v{FM}")
    a(f"v_pk_fma_f32 v[{FA}:{FA+1}], v[{FO+4}:{FO+5}], v[{FM+4}:{FM+5}], v[{FA}:{FA+1}] op_sel_hi:[1,0,1]")
    a(f"v_pk_fma_f32 v[{FA+2}:{FA+3}], v[{FO+6}:{FO+7}], v[{FM+4}:{FM+5}], v[{FA+2}:{FA+3}] op_sel_hi:[1,0,1]")
    a(f"s_add_u32 s{sLo}, s{sLo}, 1")
    a(f"v_permlane32_swap_b32 v{FA}, v{FA+1}")
    a(f"v_permlane32_swap_b32 v{FA+2}, v{FA+3}")
    a(f"v_add_f32 v{FA}, v{FA}, v{FA+1}")
    a(f"v_add_f32 v{FA+2}, v{FA+2}, v{FA+3}")
    a("s_nop 1")
    a(f"v_permlane16_swap_b32 v{FA}, v{FA+2}")
    a(f"s_cmp_lt_u32 s{sHi}, 32")
    a(f"v_add_f32 v{FA}, v{FA}, v{FA+2}")
    a("s_nop 1")
    a(f"v_add_f32_dpp v{FA}, v{FA}, v{FA} row_ror:4 {DPP}")
    a("s_nop 1")
    a(f"v_add_f32_dpp v{FA}, v{FA}, v{FA} row_ror:8 {DPP}")
    a(f"v_cvt_pk_bf16_f32 v{FA}, v{FA}, v{FA}")
    a(f"buffer_store_short v{FA}, v{vOut}, s[{sQ}:{sQ+3}], s{sOut} offen {OPOL}")
    if STAMP:
        a("s_mov_b64 exec, -1")
        tick(10)
        a("s_cbranch_scc1 L_fin")
    else:
        a("s_cbranch_scc0 L_next")
        a("s_endpgm")
        a.label("L_next")
    a("s_mov_b64 exec, -1")
    a(f"s_cmp_lt_u32 s{sLo}, s{sHi}")
    a("s_cbranch_scc1 L_slice")
    a.c("every workgroup of this head has read the epoch word: advance it for the next launch")
    a(f"s_lshl_b32 s{sT}, s{sH}, 7")
    a(f"s_add_u32 s{sT}, s{sT}, {WS_EP}")
    a(f"v_mov_b32 v{vT}, s{sT}")
    a(f"v_mov_b32 v{vT+1}, s{sEp}")
    a("s_mov_b64 exec, 1")
    a(f"buffer_store_dword v{vT+1}, v{vT}, s[{sWS}:{sWS+3}], 0 offen {OPOL}")
    a.label("L_fin")
    if STAMP:
        a("s_mov_b64 exec, -1")
        a("s_waitcnt vmcnt(0)")
        tick(11)
        a("s_mov_b64 exec, 0xffff")
        a(f"s_lshl_b32 s{sSt}, s2, 3")
        a(f"s_add_u32 s{sSt}, s{sSt}, s{sW}")
        a(f"s_lshl_b32 s{sSt}, s{sSt}, 7")
        a(f"s_add_u32 s{sSt}, s{sSt}, {16<<20}")
        a(f"v_mbcnt_lo_u32_b32 v{vX+2}, -1, 0")
        a(f"v_lshlrev_b32 v{vX+2}, 3, v{vX+2}")
        a(f"v_add_u32 v{vX+2}, s{sSt}, v{vX+2}")
        a(f"v_cmp_ne_u32 vcc, 0, v{vX}")
        a("s_and_b64 exec, exec, vcc")
        a(f"buffer_store_dwordx2 v[{vX}:{vX+1}], v{vX+2}, s[{sWS}:{sWS+3}], 0 offen")
    a.label("L_end")
    a("s_endpgm")

    a.label("L_mlslow")
    a(f"buffer_store_dwordx4 v[{vS}:{vS+3}], v{vT+4}, s[{sWS}:{sWS+3}], 0 offen sc1")
    a("s_branch L_mldone")
    a.label("L_slowo")
    tail("sc1")
    a("s_branch L_fin")
    a.label("L_notfast")
    a("s_cbranch_vccnz L_missing")
    a(f"s_or_b32 s{sMode}, s{sMode}, 1", "peers on another XCD: write-through hand-off")
    a(f"s_cmp_eq_u64 s[{sCm+4}:{sCm+5}], 0")
    a("s_cbranch_scc1 L_modeset")
    a(f"s_mov_b32 s{sMode}, 0x200001", "somebody left: finalise every slice")
    a("s_branch L_modeset")
    a.label("L_missing")
    a(f"s_add_u32 s{sSpin}, s{sSpin}, 1")
    a(f"s_cmp_ge_u32 s{sSpin}, 64")
    a("s_cbranch_scc1 L_leave")
    a(f"buffer_load_dwordx3 v[{FO}:{FO+2}], v{vOa}, s[{sWS}:{sWS+3}], s{sAr} offen sc1")
    a("s_branch L_look")
    a.label("L_leave")
    a.c("a workgroup of this head has not started yet: leave a mark, look again, then go or stay")
    a(f"s_lshl_b32 s{sT}, s{sI}, {ARS}")
    a(f"v_mov_b32 v{vT+1}, s{sT}")
    a(f"v_mov_b32 v{vT+4}, s{sEp}")
    a(f"v_mov_b32 v{vT+5}, s{sNEp}")
    a(f"v_mov_b32 v{vT+6}, 0x100")
    a("s_mov_b64 exec, 1")
    a(f"buffer_store_dwordx3 v[{vT+4}:{vT+6}], v{vT+1}, s[{sWS}:{sWS+3}], s{sAr} offen sc1")
    a("s_mov_b64 exec, -1")
    a("s_waitcnt vmcnt(0)")
    a(f"buffer_load_dwordx3 v[{FO}:{FO+2}], v{vOa}, s[{sWS}:{sWS+3}], s{sAr} offen sc1")
    a("s_waitcnt vmcnt(0)")
    a(f"v_cmp_ne_u32 vcc, s{sEp}, v{FO}")
    a(f"v_cmp_ne_u32 s[{sCm}:{sCm+1}], s{sNEp}, v{FO+1}")
    a("s_nop 0")
    a(f"s_or_b64 vcc, vcc, s[{sCm}:{sCm+1}]")
    a(f"s_cselect_b32 s{sMode}, 1, 0x200001")
    a("s_branch L_modeset")
    for pr in range(2 * EV):
        a.label(f"L_vbad{pr}")
        for r in range(8):
            a(f"v_mov_b32 v{vV+8*pr+r}, 0")
        a(f"s_branch L_vgood{pr}")
    for hf in range(2):
        a.label(f"L_pagain{hf}")
        p_read(hf)
        a("s_waitcnt lgkmcnt(0)")
        a(f"v_cmp_gt_u32 vcc, s{sExp}, v{vT+2}")
        a(f"s_cbranch_vccnz L_pagain{hf}")
        a(f"s_branch L_pok{hf}")
    a.label("L_kmore")
    a("s_waitcnt lgkmcnt(0)")
    a("s_barrier", "second round (more than 32 referenced blocks): the streamers are done with this round's P")
    a(f"s_mov_b32 s{sMore}, 0")
    a(f"s_mov_b32 s{sBad}, 0")
    for k in range(2):
        pop_lc()
        wread(k)
    a("s_branch L_kround")
    a.label("L_vmore")
    a("s_waitcnt vmcnt(0) lgkmcnt(0)")
    for idx in range(8):
        perm1(63, idx)
    for j in range(8):
        mfma1(15, j)
    a("s_barrier")
    a(f"s_mov_b32 s{sMore}, 0")
    a(f"s_mov_b32 s{sRnd}, 1")
    a(f"s_mov_b32 s{sVal}, s{sVal+1}")
    a(f"s_mov_b32 s{sBad}, s{sVal+1}")
    a(f"v_mov_b32 v{vT+4}, v{vList}")
    a("s_nop 1")
    a(f"v_permlane32_swap_b32 v{vT+4}, v{vList}", "positions 32..63 -> lanes 0..31")
    a("s_nop 1")
    for k in range(NB0):
        a(f"v_readlane_b32 s{sP}, v{vList}, {k}")
        a(f"s_bitcmp1_b32 s{sVal}, {k}")
        a(f"s_cselect_b32 s{sK+2}, s{sKVB}, 0")
        a(f"s_mov_b32 m0, {KB + k*4096}")
        a("s_nop 1")
        for q in range(4):
            k_load(0, q)
    a(f"v_readlane_b32 s{sP + (NB0 & 3)}, v{vList}, {NB0}")
    a("s_branch L_vround")
    if CW:
        a.lines.append(".if (. - L_pc) < (16384 + 104)")
        a.lines.append(".fill ((16384 + 104 - (. - L_pc)) / 4), 4, 0xbf810000")
        a.lines.append(".endif")
        a.label("L_codeend")

    if opts.get("order", "sc") == "cs":
        L = a.lines
        i_s = L.index("L_smain:"); i_c = L.index("L_cmain:"); i_r = L.index("L_mlslow:")
        a.lines = L[:i_s] + L[i_c:i_r] + L[i_s:i_c] + L[i_r:]
    head = HEADER + f"""; @launch grid=(256,1,1) block=(512,1,1) lds={LDS_BYTES}
.amdgcn_target "amdgcn-amd-amdhsa--gfx950"
.text
.globl {NAME}_kernel
.p2align 8
.type {NAME}_kernel,@function
"""
    tail = f""".section .rodata,"a"
.p2align 6
.amdhsa_kernel {NAME}_kernel
  .amdhsa_next_free_vgpr {NVGPR}
  .amdhsa_next_free_sgpr 102
  .amdhsa_accum_offset {NVGPR}
  .amdhsa_group_segment_fixed_size 0
  .amdhsa_kernarg_size 64
  .amdhsa_user_sgpr_count 2
  .amdhsa_user_sgpr_kernarg_segment_ptr 1
  .amdhsa_system_sgpr_workgroup_id_x 1
.end_amdhsa_kernel
"""
    return head + a.text() + tail

if __name__ == "__main__":
    opts = dict(kv.split("=", 1) for kv in sys.argv[2:])
    open(sys.argv[1], "w").write(gen(opts))
```

```python
import sys

NAME = "standalone__paged_block_table_kv_radixattention__decode"

class Asm:
    def __init__(self):
        self.lines = []
    def __call__(self, s="", c=None):
        s = s.strip()
        self.lines.append("    " + s + (f"    ; {c}" if c else ""))
    def label(self, n):
        self.lines.append(n + ":")
    def c(self, s):
        self.lines.append("    ; " + s)
    def text(self):
        return "\n".join(self.lines) + "\n"

KV_BYTES = 1280 * 32768
WS_ML = 2 << 20
WS_AR = WS_ML + 65536
WS_EP = WS_AR + 32768
NEG = "0xf149f2ca"
DPP = "row_mask:0xf bank_mask:0xf"

HEADER = """; Paged (block-table) GQA decode attention: B=4, H=32, Hkv=8, D=128, 1280 physical blocks of 16 tokens.
;
; p with (p + 8*(p>>8)) mod 32 == i, builds the inverse page map of those blocks in LDS (which sequences reference p,
; how often, and whether as the partial last block) and loads every referenced block once for all 4 sequences x 4
;   wave 0     streams K (LDS-DMA) and V (registers) with a bounded number of loads in flight and does P.V
;   waves 4-7  build the map, do Q.K and the softmax (running true max, exp2 domain, two halves), then combine
; Hand-off stores are plain when all 32 workgroups of the head were seen running on this XCD and write-through
; otherwise; a workgroup that cannot see all its peers running leaves its slice to the last starter, so neither
"""

def gen(opts):
    def pol(k, d):
        return opts.get(k, d).replace("+", " ").replace("def", "")
    def flag(k, d):
        return opts.get(k, d) == "1"
    POL = opts.get("pol", "def")
    KPOL, VPOL = pol("kpol", POL), pol("vpol", opts.get("pol", "def"))
    OPOL = pol("opol", "def")
    PERM = opts.get("perm", "32107654")
    STAMP = flag("stamp", "0")
    LITE = flag("lite", "0")
    FORCE = opts.get("force", "")
    W = int(opts.get("w", "26"))
    WF = int(opts.get("wf", "23"))
    SLOW = int(opts.get("slow", "0x2a"), 0)
    if "cmask" in opts:
        SLOW = sum(1 << int(PERM[c]) for c in range(8) if (int(opts["cmask"], 0) >> c) & 1)
    EV = int(opts.get("ev", "6"))
    IPA = int(opts.get("ipa", "29"))
    CHKB = int(opts.get("chkb", "5"))
    CW = flag("cw", "1")
    ARS = 4

    a = Asm()
    MX = 0
    LS = MX + 256
    INV = 1024
    KL = 2048
    C1 = 3072
    C2, C3, C4, C0, CQ, FLG = C1 + 4, C1 + 8, C1 + 12, C1 + 16, C1 + 20, C1 + 32
    ZENT = C1 + 64 - INV
    QL = 4096
    KB = 8192
    LDS_BYTES = KB + 131072
    PB = KB
    AL = KL + 256

    vA, vG, vN = 1, 2, 3
    vT = 4
    vX16, vZ = 14, 15
    vPa, vL16 = 16, 17
    vP = 20
    vKs = 36
    vKr = 40
    vM, vL, vC, vB4, vMx, vMw, vKl, vLane = 44, 45, 46, 47, 48, 49, 50, 51
    vW = 52
    vQ = 60
    vS = 76
    vTb = 76
    vInc = 84
    vKf = 108
    vOa, vMa, vOut, vTagC = 144, 145, 146, 147
    FM, FO, FA = 148, 156, 164
    vVo0, vVo1, vWo, vSig, vSa, vList = 40, 41, 42, 43, 44, 45
    vTag, vF = 18, 19
    vAcc = 48
    vV = 80
    vVt = 208
    vX = 240
    NVGPR = vX + 8 if STAMP else vX

    sK, sV, sQ, sWS = 20, 24, 28, 32
    sN = 36
    sH, sI, sW, sWl, sWb = 48, 49, 50, 51, 52
    sU, sRnd, sMore, sBad, sEp, sNEp, sXcc, sAr = 53, 54, 55, 56, 57, 58, 59, 60
    sSelLo, sSelHi, sExp = 61, 62, 63
    sRm = 64
    sCm = 72
    sP, sVal, sKVB = 80, 84, 86
    sM0, sM1 = 88, 90
    sT = 92
    sLc, sKb = 96, 97
    sJ = 64
    sSt = 98
    sLo, sHi, sSpin, sT0, sT3, sMode, sO0, sO1, sMl, sOut, sMl1 = 36, 37, 38, 39, 40, 41, 42, 43, 44, 45, 46

    def tick(idx):
        if not STAMP or (LITE and idx not in (8, 10, 11)):
            return
        a(f"s_memrealtime s[{sSt}:{sSt+1}]")
        a("s_waitcnt lgkmcnt(0)")
        a(f"v_writelane_b32 v{vX}, s{sSt}, {idx}")
        a(f"v_writelane_b32 v{vX+1}, s{sSt+1}, {idx}")
    def first_tick():
        if STAMP:
            a(f"v_mov_b32 v{vX}, 0")
            a(f"v_mov_b32 v{vX+1}, 0")
            a(f"v_writelane_b32 v{vX}, s{sSt+2}, 0")
            a(f"v_writelane_b32 v{vX+1}, s{sSt+3}, 0")
    def k_load(slot, q):
        a(f"buffer_load_dwordx4 v{vKs+q}, s[{sK}:{sK+3}], s{sP+slot} offen offset:{q*1024} {KPOL} lds")
    def v_load(k, slot, i):
        r = vV + 16 * (k & 7) + 4 * i
        a(f"buffer_load_dwordx4 v[{r}:{r+3}], v{vVo0 + (i>>1)}, s[{sV}:{sV+3}], s{sP+slot} offen offset:{2048*(i&1)} {VPOL}")
    def pop_lc():
        a(f"s_ff1_i32_b32 s{sT}, s{sU}", "next candidate (-1: none)")
        a(f"s_bitset0_b32 s{sU}, s{sT}")
        a(f"s_lshl_b32 s{sLc}, s{sT}, 4")
        a(f"s_addk_i32 s{sLc}, 128")
        a(f"s_cmp_lt_i32 s{sT}, 0")
        a(f"s_cselect_b32 s{sLc}, {ZENT}, s{sLc}")
    def make_tag(dst, vu, tmp):
        a(f"s_lshr_b32 s{sT}, s{sEp}, 8")
        a(f"s_addk_i32 s{sT}, 0x5a")
        a(f"v_mad_u32_u24 v{dst}, v{vu}, 37, s{sEp}")
        a(f"v_mad_u32_u24 v{tmp}, v{vu}, 59, s{sT}")
        a(f"s_mov_b32 s{sT}, 0x0c0c0400")
        a(f"v_perm_b32 v{dst}, v{tmp}, v{dst}, s{sT}")
    def xreduce(op, v, t):
        a(f"v_mov_b32 v{t}, v{v}")
        a("s_nop 1")
        a(f"v_permlane32_swap_b32 v{v}, v{t}")
        a("s_nop 0")
        a(f"{op} v{v}, v{v}, v{t}")
        a(f"v_mov_b32 v{t}, v{v}")
        a("s_nop 1")
        a(f"v_permlane16_swap_b32 v{v}, v{t}")
        a("s_nop 0")
        a(f"{op} v{v}, v{v}, v{t}")
    def signal(cnt, t):
        a(f"v_mov_b32 v{t}, 1")
        a("s_mov_b64 exec, 1")
        a(f"ds_add_u32 v{vZ}, v{t} offset:{cnt}")
        a("s_mov_b64 exec, -1")
    def spin(cnt, t, label, exp):
        a.label(label)
        if "spl" in opts:
            a(f"s_sleep {opts['spl']}")
        a(f"ds_read_b32 v{t}, v{vZ} offset:{cnt}")
        a("s_waitcnt lgkmcnt(0)")
        a(f"v_cmp_gt_u32 vcc, {exp}, v{t}")
        a(f"s_cbranch_vccnz {label}")
    def list_read():
        a(f"ds_read_b32 v{vP+4}, v{vZ} offset:{C0}")
        a(f"ds_read_b128 v[{vP}:{vP+3}], v{vL16} offset:{INV}")
    def get_list(lbl):
        a("s_waitcnt lgkmcnt(0)")
        a(f"v_cmp_gt_u32 vcc, 4, v{vP+4}")
        a(f"s_cbranch_vccz {lbl}_ok", "the map was read after the counter showed it complete")
        a.label(f"{lbl}_again")
        list_read()
        a("s_waitcnt lgkmcnt(0)")
        a(f"v_cmp_gt_u32 vcc, 4, v{vP+4}")
        a(f"s_cbranch_vccnz {lbl}_again")
        a.label(f"{lbl}_ok")
        a(f"v_or3_b32 v{vP}, v{vP}, v{vP+1}, v{vP+2}")
        a(f"v_or_b32 v{vP}, v{vP}, v{vP+3}")
        a(f"v_cmp_ne_u32 vcc, 0, v{vP}")
        a("s_nop 0")
        a(f"s_lshr_b64 s[{sCm}:{sCm+1}], vcc, 8")
        a(f"s_bcnt1_i32_b32 s{sMore}, s{sCm}")
    def common_init():
        a(f"s_lshl_b32 s{sT}, s{sH}, 7")
        a(f"s_add_u32 s{sT}, s{sT}, {WS_EP}")
        a(f"s_load_dword s{sEp}, s[18:19], s{sT}")
        a(f"s_mov_b32 s{sWS}, s18")
        a(f"s_mov_b32 s{sWS+1}, s19")
        a(f"s_mov_b32 s{sWS+2}, {1 << 28}")
        a(f"s_mov_b32 s{sWS+3}, 0x20000")
        a(f"v_mov_b32 v{vZ}, 0")
        a(f"v_and_b32 v{vL16}, 0x3f0, v{vA}")
        a(f"s_mov_b32 s{sExp}, 4")

    a.label(f"{NAME}_kernel")
    a(f"s_load_dwordx2 s[{sK}:{sK+1}], s[0:1], 8")
    a("s_load_dwordx16 s[4:19], s[0:1], 0")
    if STAMP:
        a(f"s_memrealtime s[{sSt+2}:{sSt+3}]")
    CWM = int(opts.get("cwm", "32"))
    CWS = opts.get("cws", "0") == "1"
    if CWS:
        a("s_cmpk_ge_u32 s2, 256")
        a("s_cbranch_scc1 L_end")
        a(f"s_lshr_b32 s{sI}, s2, 3", "workgroup index inside the head")
        a(f"v_lshl_add_u32 v{vG}, s{sI}, 9, v0")
    elif CWM in (16, 32):
        a(f"v_lshlrev_b32 v{vG}, {CWM.bit_length()-1}, v0")
    else:
        a(f"v_mul_u32_u24 v{vG}, {CWM}, v0")
    a("s_getpc_b64 s[96:97]")
    a.label("L_pc")
    if CWS:
        a(f"global_load_ubyte v{vP+15}, v{vG}, s[96:97] offset:88", "512 bytes of the kernel text -> L2 (value unused)")
    else:
        a(f"global_load_dword v{vP+15}, v{vG}, s[96:97] offset:104", "kernel text -> L2 (value unused)")
    if not CWS:
        a("s_cmpk_ge_u32 s2, 256")
        a("s_cbranch_scc1 L_end")
    a(f"v_readfirstlane_b32 s{sW}, v0")
    if PERM == "01234567":
        a(f"s_and_b32 s{sH}, s2, 7", "kv head")
    elif PERM == "32107654":
        a(f"s_xor_b32 s{sH}, s2, 3")
        a(f"s_and_b32 s{sH}, s{sH}, 7", "kv head")
    else:
        a(f"s_lshl_b32 s{sH}, s2, 2")
        a(f"s_lshr_b32 s{sH}, {hex(int(''.join(reversed(PERM)), 16))}, s{sH}")
        a(f"s_and_b32 s{sH}, s{sH}, 7", "kv head")
    if not CWS:
        a(f"s_lshr_b32 s{sI}, s2, 3", "workgroup index inside the head")
    if FORCE == "late":
        a(f"s_cmp_lg_u32 s{sI}, 5")
        a("s_cbranch_scc1 L_notlate")
        a("s_movk_i32 s3, 400")
        a.label("L_latespin")
        a("s_sleep 8")
        a("s_sub_u32 s3, s3, 1")
        a("s_cmp_lg_u32 s3, 0")
        a("s_cbranch_scc1 L_latespin")
        a.label("L_notlate")
    a(f"v_bfe_u32 v{vG}, v0, 4, 2")
    a(f"v_and_b32 v{vN}, 15, v0")
    a(f"v_lshlrev_b32 v{vA}, 4, v0")
    a(f"v_xor_b32 v{vX16}, v{vN}, v{vG}")
    a(f"s_cmp_lg_u32 s{sW}, 0")
    a(f"v_lshlrev_b32 v{vX16}, 4, v{vX16}")
    a("s_cbranch_scc1 L_nons")
    a(f"s_lshl_b32 s{sT+3}, s{sH}, 8")
    a(f"v_lshl_add_u32 v{vKs}, v{vG}, 11, v{vX16}")
    a(f"s_lshl_b32 s{sP+2}, s{sI}, 15", "static blocks: physical 32*n + i, n = 0..7")
    a(f"v_add_u32 v{vKs}, s{sT+3}, v{vKs}")
    a(f"s_movk_i32 s{sT}, 7168")
    a(f"s_movk_i32 m0, {KB}")
    a(f"v_xor_b32 v{vKs+2}, 128, v{vKs}")
    a(f"v_xor_b32 v{vKs+1}, 64, v{vKs}")
    a(f"v_add_u32 v{vKs+2}, 14336, v{vKs+2}")
    a(f"v_add_u32 v{vKs+1}, s{sT}, v{vKs+1}")
    a(f"v_xor_b32 v{vKs+3}, 64, v{vKs+2}")
    a(f"s_mov_b32 s{sK+2}, {KV_BYTES}")
    a(f"v_add_u32 v{vKs+3}, s{sT}, v{vKs+3}")
    a(f"s_mov_b32 s{sK+3}, 0x20000")
    a("s_waitcnt lgkmcnt(0)")
    if STAMP and not LITE:
        a(f"s_memrealtime s[{sSt}:{sSt+1}]")
    NB0 = 6
    assert 4 * NB0 <= W
    a.label("L_burst")
    for q in range(4):
        k_load(2, q)
    a("s_addk_i32 m0, 4096")
    a(f"s_add_u32 s{sP+2}, s{sP+2}, {32*32768}")
    a(f"s_cmpk_lt_u32 m0, {KB + NB0*4096}")
    a("s_cbranch_scc1 L_burst")
    a("s_branch L_smain")
    a.label("L_nons")
    a(f"s_cmpk_lt_u32 s{sW}, 256")
    a("s_cbranch_scc1 L_notable")
    a("s_waitcnt lgkmcnt(0)")
    a(f"global_load_dwordx4 v[{vTb}:{vTb+3}], v{vA}, s[10:11] offset:-4096")
    a(f"global_load_dwordx4 v[{vTb+4}:{vTb+7}], v{vA}, s[10:11]")
    a(f"s_load_dwordx4 s[{sN}:{sN+3}], s[12:13], 0")
    if opts.get("cb", "0") == "1":
        a("s_barrier")
    a("s_branch L_cmain")
    a.label("L_notable")
    for r in range(4):
        a(f"v_mov_b32 v{vP+r}, 0")
    a(f"ds_write_b128 v{vA}, v[{vP}:{vP+3}]", "waves 1-3 clear map, flags and counters")
    if CWS:
        a(f"s_lshl_b32 s{sT}, s{sI}, 7")
        a(f"s_addk_i32 s{sT}, {16384 + 88}")
        a(f"s_min_u32 s{sT}, s{sT}, (L_codeend - L_pc - 4)")
        a(f"v_mov_b32 v{vT}, s{sT}")
        a(f"global_load_dword v{vT+1}, v{vT}, s[96:97]", "one more line of the text")
    elif opts.get("cw2", "1") == "1":
        a(f"v_lshlrev_b32 v{vT}, 1, v{vA}")
        a(f"v_add_u32 v{vT}, {16384 + 104 - 2048}, v{vT}")
        a(f"v_min_u32 v{vT}, (L_codeend - L_pc - 4), v{vT}")
        a(f"global_load_dword v{vT+1}, v{vT}, s[96:97]", "waves 1-3: rest of the kernel text -> L2")
    a("s_waitcnt lgkmcnt(0)")
    a("s_barrier")
    a("s_endpgm")
    LB = True

    a.label("L_smain")
    if opts.get("split", "1") != "1":
        a("s_barrier", "LDS flags have been cleared")
    a("s_setprio 2")
    a(f"s_lshl_b32 s{sT}, s{sI}, 15")
    a(f"v_lshlrev_b32 v{vList}, 16, v{vA}", "lane n: n * 32 blocks")
    a(f"v_add_u32 v{vList}, s{sT}, v{vList}")
    a(f"s_mov_b32 s{sKVB}, s{sK+2}")
    a(f"s_mov_b64 s[{sVal}:{sVal+1}], -1")
    a(f"s_mov_b32 s{sRnd}, 0")
    if opts.get("split", "1") == "1":
        first_tick()
        if STAMP and not LITE:
            a("s_waitcnt lgkmcnt(0)")
            a(f"v_writelane_b32 v{vX}, s{sSt}, 9")
            a(f"v_writelane_b32 v{vX+1}, s{sSt+1}, 9")
        a(f"s_lshl_b32 s{sT}, s{sH}, 7")
        a(f"s_add_u32 s{sT}, s{sT}, {WS_EP}")
        a(f"s_load_dword s{sEp}, s[18:19], s{sT}")
        a(f"v_mov_b32 v{vZ}, 0")
        a(f"v_mov_b32 v{vL16}, v{vA}")
        a(f"s_mov_b32 s{sExp}, 4")
        a(f"v_mov_b32 v{vSig}, 0")
        a(f"v_lshrrev_b32 v{vSa}, 2, v{vA}")
        a(f"v_add_u32 v{vSa}, {KL}, v{vSa}")
        if WF < W:
            a(f"s_lshr_b32 s{sT}, {SLOW}, s{sH}")
            a(f"s_bitcmp0_b32 s{sT}, 0")
            a(f"s_cselect_b64 s[{sM1}:{sM1+1}], -1, 0")
    if opts.get("split", "1") == "1":
        if STAMP and opts.get("tb", "0") == "1":
            a(f"s_memrealtime s[4:5]")
        a("s_barrier", "LDS flags have been cleared")
        if STAMP and opts.get("tb", "0") == "1":
            a(f"s_memrealtime s[6:7]")
    a.label("L_vround")
    def vcc_mode():
        if WF < W:
            a(f"s_mov_b64 vcc, s[{sM1}:{sM1+1}]")
    def perm1(pr, idx):
        p = pr & 3
        r0 = vV + 8 * (pr & 15)
        w = idx >> 1
        a(f"v_perm_b32 v{vVt + 4*idx + p}, v{r0+4+w}, v{r0+w}, s{sSelHi if idx & 1 else sSelLo}")
    def mfma1(t, j):
        D = f"v[{vAcc+4*j}:{vAcc+4*j+3}]"
        pp = vP + 4 * (t & 1)
        a(f"v_mfma_f32_16x16x32_bf16 {D}, v[{vVt+4*j}:{vVt+4*j+3}], v[{pp}:{pp+3}], {D}")
    def ptile_read(t):
        pp = vP + 4 * (t & 1)
        a(f"ds_read_b128 v[{pp}:{pp+3}], v{vL16} offset:{PB + t*1024}")
    def p_read(hf):
        a(f"ds_read_b32 v{vT+2}, v{vZ} offset:{C2}")
        ptile_read(8 * hf)
        a(f"ds_read_b32 v{vT}, v{vSa} offset:{AL - KL + 256*hf}")
        if hf:
            a(f"ds_read_b32 v{vF}, v{vZ} offset:{FLG}")
    def fetch_p(hf):
        tick(13 if hf else 7)
        a("s_waitcnt lgkmcnt(0)")
        a(f"v_cmp_gt_u32 vcc, s{sExp}, v{vT+2}")
        a(f"s_cbranch_vccnz L_pagain{hf}")
        a.label(f"L_pok{hf}")
        a(f"s_add_u32 s{sExp}, s{sExp}, 4")
        if hf:
            a(f"v_readfirstlane_b32 s{sMode}, v{vF}")
        for r in range(0, 32, 2):
            a(f"v_pk_mul_f32 v[{vAcc+r}:{vAcc+r+1}], v[{vAcc+r}:{vAcc+r+1}], v[{vT}:{vT+1}] op_sel_hi:[1,0]")
        vcc_mode()
        if hf:
            tick(5)
    blocks = [("K", k) for k in range(8)] + [("V", k) for k in range(EV)] + [("K", k) for k in range(8, 32)] + [("V", k) for k in range(EV, 32)]
    bpos = {x: i for i, x in enumerate(blocks)}
    NL = 4 * len(blocks)
    ILO = int(opts.get("ilo", "2"))
    IL = 4 * bpos[("K", 8)] - ILO
    st = {"pairs": 0, "kl": 0, "list": False, "init": False, "p": 0, "pr": 0}
    MM = opts.get("mm", "1") == "1"
    def pair_done_at(pr):
        return 4 * bpos[("V", pr >> 1)] + 2 * (pr & 1) + 1
    def do_pair(pr):
        t = pr >> 2
        if pr < 2 * EV:
            a(f"s_bitcmp0_b32 s{sVal}, {pr >> 1}")
            a(f"s_cbranch_scc1 L_vbad{pr}")
            a.label(f"L_vgood{pr}")
        if (pr & 3) == 1 and t + 1 < 16 and t + 1 != 8:
            ptile_read(t + 1)
        if pr == 30:
            p_read(1)
        if MM:
            if (pr & 3) == 0 and t > 0:
                if t != 1 and t != 9:
                    a(f"s_waitcnt lgkmcnt({4 if t == 8 else 1})")
                for idx in range(8):
                    mfma1(t - 1, idx)
                    perm1(pr, idx)
            else:
                for idx in range(8):
                    perm1(pr, idx)
            return
        for idx in range(8):
            perm1(pr, idx)
        if (pr & 3) == 3:
            if t != 0 and t != 8:
                a(f"s_waitcnt lgkmcnt({4 if t == 7 else 1})")
            for j in range(8):
                mfma1(t, j)
    def retire(complete, final=False):
        if st["init"] and st["kl"] < 32 and 4 * bpos[("K", st["kl"])] + 3 <= complete:
            n = 0
            while st["kl"] < 32 and 4 * bpos[("K", st["kl"])] + 3 <= complete:
                st["kl"] += 1; n += 1
            a(f"v_add_u32 v{vSig}, {n}, v{vSig}")
            a(f"ds_write_b32 v{vSa}, v{vSig}", "K blocks landed")
        n = 0
        while st["p"] and st["pairs"] < 63 and pair_done_at(st["pairs"]) <= complete and (final or n < 1):
            if st["pairs"] == (33 if MM else 32):
                a("s_nop 7")
                fetch_p(1)
            do_pair(st["pairs"])
            st["pairs"] += 1; n += 1
    best = -1
    for i in range(4 * NB0 - 1, NL):
        kind, k = blocks[i >> 2]; q = i & 3
        slot = (i >> 2) & 3
        if q == 0:
            a(f"s_bitcmp1_b32 s{sVal}, {k}")
            if kind == "K":
                a(f"s_cselect_b32 s{sK+2}, s{sKVB}, 0")
                a(f"s_mov_b32 m0, {KB + k*4096}")
            else:
                a(f"s_cselect_b32 s{sV+2}, s{sKVB}, 0")
            if (i >> 2) + 1 < len(blocks):
                nk = blocks[(i >> 2) + 1][1]
                if nk < 8 or st["list"]:
                    a(f"v_readlane_b32 s{sP + ((slot + 1) & 3)}, v{vList}, {nk}")
                else:
                    assert blocks[(i >> 2) + 1] == ("K", 8) and ILO <= 4
                    st["defer"] = (slot + 1) & 3
        if "csw" in opts and i == int(opts["csw"]):
            a.c("from here on the tighter window goes to the workgroups with fewer blocks")
            if "slow2" in opts:
                a(f"s_lshr_b32 s{sT}, {int(opts['slow2'], 0)}, s{sH}")
                a(f"s_bitcmp0_b32 s{sT}, 0")
            else:
                a(f"s_cmp_lt_u32 s{sMore}, 24")
            a(f"s_cselect_b64 s[{sM1}:{sM1+1}], -1, 0")
            vcc_mode()
        if (i & 1) == 0:
            Wi = W
            for sw in opts.get("ws", "136:23,224:30").split(","):
                if sw and i >= int(sw.split(":")[0]):
                    Wi = int(sw.split(":")[1])
            if i + 2 > W:
                a(f"s_waitcnt vmcnt({Wi-2})")
                best = max(best, i + 1 - Wi)
            G4 = opts.get("g4", "0") == "1"
            if WF < W and i + 2 > WF and st["init"] and i < NL - int(opts.get("free", "120")) and (q == 0 or not G4):
                a(f"s_cbranch_vccz L_nw{i}")
                WFi = WF
                if "csw" in opts and i >= int(opts["csw"]):
                    WFi = int(opts.get("wf2", "22"))
                a(f"s_waitcnt vmcnt({WF-3 if G4 else WFi-2})")
                a.label(f"L_nw{i}")
        if i < 4 * NB0:
            pass
        elif kind == "K":
            k_load(slot, q)
        else:
            assert k < 8 or st["pairs"] > 2 * (k - 8) + (q >> 1), (i, st)
            v_load(k, slot, q)
        SPLIT = opts.get("split", "1") == "1"
        if SPLIT and i == 4 * NB0 - 1:
            vcc_mode()
            st["init"] = True
        if SPLIT and i == 4 * NB0 + 3:
            a(f"s_mov_b32 s{sV}, s8")
            a(f"s_mov_b32 s{sV+1}, s9")
            a(f"s_mov_b32 s{sV+3}, 0x20000")
            a(f"v_lshlrev_b32 v{vVo0}, 13, v{vG}")
            a(f"v_lshl_add_u32 v{vVo0}, v{vN}, 4, v{vVo0}")
            a(f"v_add_u32 v{vVo0}, s{sT+3}, v{vVo0}")
            a(f"v_add_u32 v{vVo1}, 4096, v{vVo0}")
        if SPLIT and i == IL - 7:
            a.c("byte offset of candidate l = lane: (32*l + ((i - (l & 0x38)) & 31)) << 15")
            a(f"v_lshrrev_b32 v{vT+5}, 4, v{vA}")
            a(f"v_and_b32 v{vT+6}, 0x38, v{vT+5}")
            a(f"v_sub_u32 v{vT+6}, s{sI}, v{vT+6}")
            a(f"v_and_b32 v{vT+6}, 31, v{vT+6}")
            a(f"v_lshl_add_u32 v{vT+6}, v{vT+5}, 5, v{vT+6}")
            a(f"v_lshlrev_b32 v{vT+6}, 15, v{vT+6}")
        if SPLIT and i == IL + 11:
            a(f"s_mov_b32 s{sWS}, s18")
            a(f"s_mov_b32 s{sWS+1}, s19")
            a(f"s_mov_b32 s{sWS+2}, {1 << 28}")
            a(f"s_mov_b32 s{sWS+3}, 0x20000")
            a(f"s_mov_b32 s{sSelLo}, 0x05040100")
            a(f"s_mov_b32 s{sSelHi}, 0x07060302")
            a(f"s_mov_b32 s{sT0}, 0x07060500")
            a(f"s_mov_b32 s{sT3}, 0x07060501")
        if SPLIT and i == IL + 15:
            a(f"s_lshl_b32 s{sT}, s{sH}, 18")
            a(f"s_lshl_b32 s{sT+1}, s{sI}, 8")
            a(f"s_add_u32 s{sT}, s{sT}, s{sT+1}")
            a(f"v_lshlrev_b32 v{vWo}, 16, v{vG}")
            a(f"v_lshl_add_u32 v{vWo}, v{vN}, 4, v{vWo}")
            a(f"v_add_u32 v{vWo}, s{sT}, v{vWo}", "hand-off piece of slice 8*g + j: + j*8192")
        if SPLIT and i == IL + 19:
            for j in range(1, 8):
                a(f"s_mov_b32 s{sJ+j}, {j*8192}")
        if SPLIT and i in (IL + 23, IL + 27, IL + 31, IL + 35):
            c = (i - IL - 23) // 4
            a(f"s_cmp_lg_u32 s{sRnd}, 0")
            a(f"s_cbranch_scc1 L_nz{c}")
            for r in range(8 * c, 8 * c + 8):
                a(f"v_mov_b32 v{vAcc+r}, 0")
            a.label(f"L_nz{c}")
        if not SPLIT and i == max(4 * NB0, min(WF, W)) - 1:
            a.c("set-up work, hidden behind the first loads")
            a(f"s_cmp_lg_u32 s{sRnd}, 0")
            a("s_cbranch_scc1 L_vinit")
            first_tick()
            if STAMP and not LITE:
                a("s_waitcnt lgkmcnt(0)")
                a(f"v_writelane_b32 v{vX}, s{sSt}, 9")
                a(f"v_writelane_b32 v{vX+1}, s{sSt+1}, 9")
            common_init()
            a(f"s_mov_b32 s{sV}, s8")
            a(f"s_mov_b32 s{sV+1}, s9")
            a(f"s_mov_b32 s{sV+3}, 0x20000")
            a(f"v_lshlrev_b32 v{vVo0}, 13, v{vG}")
            a(f"v_lshl_add_u32 v{vVo0}, v{vN}, 4, v{vVo0}")
            a(f"v_add_u32 v{vVo0}, s{sT+3}, v{vVo0}")
            a(f"v_add_u32 v{vVo1}, 4096, v{vVo0}")
            a(f"v_mov_b32 v{vSig}, 0")
            a(f"v_lshrrev_b32 v{vSa}, 2, v{vA}")
            a(f"v_add_u32 v{vSa}, {KL}, v{vSa}")
            a(f"s_mov_b32 s{sSelLo}, 0x05040100")
            a(f"s_mov_b32 s{sSelHi}, 0x07060302")
            a(f"s_lshl_b32 s{sT}, s{sH}, 18")
            a(f"s_lshl_b32 s{sT+1}, s{sI}, 8")
            a(f"s_add_u32 s{sT}, s{sT}, s{sT+1}")
            a(f"v_lshlrev_b32 v{vWo}, 16, v{vG}")
            a(f"v_lshl_add_u32 v{vWo}, v{vN}, 4, v{vWo}")
            a(f"v_add_u32 v{vWo}, s{sT}, v{vWo}", "hand-off piece of slice 8*g + j: + j*8192")
            for j in range(1, 8):
                a(f"s_mov_b32 s{sJ+j}, {j*8192}")
            for r in range(32):
                a(f"v_mov_b32 v{vAcc+r}, 0")
            a(f"s_mov_b32 s{sT0}, 0x07060500")
            a(f"s_mov_b32 s{sT3}, 0x07060501")
            a.c("byte offset of candidate l = lane: (32*l + ((i - (l & 0x38)) & 31)) << 15")
            a(f"v_lshrrev_b32 v{vT+5}, 4, v{vA}")
            a(f"v_and_b32 v{vT+6}, 0x38, v{vT+5}")
            a(f"v_sub_u32 v{vT+6}, s{sI}, v{vT+6}")
            a(f"v_and_b32 v{vT+6}, 31, v{vT+6}")
            a(f"v_lshl_add_u32 v{vT+6}, v{vT+5}, 5, v{vT+6}")
            a(f"v_lshlrev_b32 v{vT+6}, 15, v{vT+6}")
            if WF < W:
                a(f"s_lshr_b32 s{sT}, {SLOW}, s{sH}")
                a(f"s_bitcmp0_b32 s{sT}, 0")
                a(f"s_cselect_b64 s[{sM1}:{sM1+1}], -1, 0")
            a.label("L_vinit")
            vcc_mode()
            st["init"] = True
        if i == W:
            tick(2)
        if i == IL - 2:
            list_read()
        elif i == IL:
            a(f"s_cmp_lg_u32 s{sRnd}, 0")
            a("s_cbranch_scc1 L_vlist")
            tick(14)
            get_list("L_sl")
            a.c("position of candidate l: l < 8 static, else 8 + rank among the referenced ones; unreferenced -> lane 63")
            a(f"s_and_b32 s{sT}, vcc_lo, 0xff")
            a(f"s_and_b32 vcc_hi, vcc_hi, 0xff")
            a(f"s_or_b32 vcc_lo, vcc_lo, 0xff")
            a(f"v_mbcnt_lo_u32_b32 v{vT+4}, vcc_lo, 0")
            a(f"v_mbcnt_hi_u32_b32 v{vT+4}, vcc_hi, v{vT+4}")
            a(f"s_bfm_b64 s[{sVal}:{sVal+1}], s{sMore}, 8")
            a(f"v_cndmask_b32 v{vT+4}, 63, v{vT+4}, vcc")
            a(f"s_or_b32 s{sBad}, s{sVal}, s{sT}")
            a(f"v_lshlrev_b32 v{vT+4}, 2, v{vT+4}")
            a(f"s_or_b32 s{sVal}, s{sVal}, 0xff")
            a(f"ds_permute_b32 v{vList}, v{vT+4}, v{vT+6}")
            a(f"s_add_u32 s{sEp}, s{sEp}, 1")
            make_tag(vTag, vN, vT + 4)
            a("s_waitcnt lgkmcnt(0)")
            tick(3)
            vcc_mode()
            a.label("L_vlist")
            if "defer" in st:
                a(f"v_readlane_b32 s{sP + st['defer']}, v{vList}, 8")
            st["list"] = True
        elif i == 4 * bpos[("K", 8)]:
            a(f"s_mov_b32 s{sVal}, s{sBad}", "from here on unreferenced static blocks are skipped")
        if kind == "K" and k == IPA and q == 1:
            p_read(0)
        elif kind == "K" and k == IPA and q == 3:
            fetch_p(0); st["p"] = 1
        elif (i & 1) == 1:
            retire(best)
        if i == NL - 1 - int(opts.get("sml", "48")) and opts.get("late", "1") != "1":
            signal(C4, vT + 3)
        if i == 4 * bpos[("K", 31)] + 3:
            tick(4)
            if STAMP and opts.get("tb", "0") == "1":
                a(f"v_writelane_b32 v{vX}, s4, 1")
                a(f"v_writelane_b32 v{vX+1}, s5, 1")
                a(f"v_writelane_b32 v{vX}, s6, 6")
                a(f"v_writelane_b32 v{vX+1}, s7, 6")
    signal(C4, vT + 3)
    tick(15)
    retire(best, final=True)
    while st["pairs"] < 63:
        c = pair_done_at(st["pairs"])
        a(f"s_waitcnt vmcnt({NL - 1 - c})")
        retire(c, final=True)
    assert st["kl"] == 32
    a(f"s_cmp_gt_u32 s{sMore}, 24")
    a("s_cbranch_scc1 L_vmore")
    a(f"s_bitcmp1_b32 s{sMode}, 0")
    a("s_cbranch_scc1 L_slowo")
    HOLD = opts.get("hold", "0")
    def tail(sfx):
        if HOLD != "0":
            a(f"v_mov_b32 v{vSig}, 0x1000")
        a("s_waitcnt vmcnt(0) lgkmcnt(0)")
        for op in "p0 p1 p2 p3 M0 M1 p4 p5 M2 M3 p6 p7 M4 M5 S0 M6 M7 S1 S2 S3 S4 S5 S6 S7".split():
            j = int(op[1])
            if op == HOLD:
                a(f"ds_write_b32 v{vSa}, v{vSig}", "publishing: the compute waves may poll now")
            if op[0] == "p":
                perm1(63, j)
            elif op[0] == "M":
                mfma1(15, j)
            else:
                R = vAcc + 4 * j
                a(f"v_perm_b32 v{R}, v{R}, v{vTag}, s{sT0}")
                a(f"v_perm_b32 v{R+3}, v{R+3}, v{vTag}, s{sT3}")
                a(f"buffer_store_dwordx4 v[{R}:{R+3}], v{vWo}, s[{sWS}:{sWS+3}], {'0' if j == 0 else 's%d' % (sJ + j)} offen {sfx}")
    tail("")
    tick(8)
    if opts.get("wb", "0") == "1":
        a("s_waitcnt vmcnt(0)")
        a("buffer_wbl2 sc1")
    a("s_branch L_fin" if STAMP else "s_endpgm")

    a.label("L_cmain")
    if opts.get("cb", "0") != "1":
        a("s_barrier")
    a(f"s_lshr_b32 s{sW}, s{sW}, 6")
    a(f"s_and_b32 s{sWl}, s{sW}, 3")
    first_tick()
    a(f"v_mov_b32 v{vZ}, 0")
    a(f"v_lshrrev_b32 v{vT+8}, 2, v{vA}")
    a(f"v_and_b32 v{vKl}, 0xff, v{vT+8}")
    a(f"v_add_u32 v{vKl}, {KL}, v{vKl}")
    a(f"v_and_b32 v{vT+8}, 0x1fc, v{vT+8}", "first of this thread's four table columns")
    a(f"s_lshr_b32 s{sT}, s{sWl}, 1")
    a(f"s_lshl_b32 s{sT}, s{sT}, 2")
    a(f"v_mov_b32 v{vT+7}, s{sT}")
    a("s_waitcnt lgkmcnt(0)")
    tick(1)
    for b in range(4):
        a(f"s_min_i32 s{sT}, s{sN+b}, 0x2000")
        a(f"s_cmp_lt_i32 s{sN+b}, 1")
        a(f"s_cselect_b32 s{sN+b}, 0x2000, s{sT}", "context length clamped to 1..8192 (<= 0: all positions, equal scores)")
        a(f"s_cselect_b32 s{sT}, {hex(0x000f000f << (4*b))}, 0")
        if b == 0:
            a(f"s_mov_b32 s{sM0}, s{sT}")
        else:
            a(f"s_or_b32 s{sM0}, s{sM0}, s{sT}")
    a.c("increment per (sequence, column): 1 full block, 0x10000 partial last block, 0 beyond the context")
    for hh in range(2):
        a(f"s_cmp_lt_u32 s{sWl}, 2")
        a(f"s_cselect_b32 s{sT}, s{sN+2*hh}, s{sN+2*hh+1}")
        a(f"s_lshr_b32 s{sT+1}, s{sT}, 4")
        a(f"v_sub_u32 v{vT+4}, s{sT+1}, v{vT+8}")
        a(f"s_and_b32 s{sT}, s{sT}, 15")
        a(f"s_cselect_b32 s{sT}, 0x10000, 0")
        a(f"v_mov_b32 v{vT+5}, s{sT}")
        for e in range(4):
            a(f"v_cmp_eq_i32 s[{sCm+2*e}:{sCm+2*e+1}], {e}, v{vT+4}")
        for e in range(4):
            a(f"v_cmp_lt_i32 s[{sRm+2*e}:{sRm+2*e+1}], {e}, v{vT+4}")
        for e in range(4):
            a(f"v_cndmask_b32 v{vInc+4*hh+e}, 0, v{vT+5}, s[{sCm+2*e}:{sCm+2*e+1}]")
        for e in range(4):
            a(f"v_cndmask_b32 v{vInc+4*hh+e}, v{vInc+4*hh+e}, 1, s[{sRm+2*e}:{sRm+2*e+1}]")
    a(f"s_movk_i32 s{sT+2}, 0x3f0")
    a.c("inverse page map restricted to this workgroup's physical blocks")
    for hh in range(2):
        a(f"s_waitcnt vmcnt({1 - hh})")
        if hh == 0:
            tick(2)
        for e in range(4):
            p = vTb + 4 * hh + e
            t = vT + 4 + (e & 1)
            a(f"v_lshrrev_b32 v{t}, 8, v{p}")
            a(f"v_lshl_add_u32 v{t}, v{t}, 3, v{p}")
            a(f"v_lshrrev_b32 v{p}, 1, v{p}")
            a(f"v_and_b32 v{t}, 31, v{t}")
            a(f"v_and_or_b32 v{p}, v{p}, s{sT+2}, v{vT+7}")
            a(f"v_cmpx_eq_u32 vcc, s{sI}, v{t}")
            a(f"ds_add_u32 v{p}, v{vInc+4*hh+e} offset:{INV + 8*hh}")
            a("s_mov_b64 exec, -1")
    signal(C0, vT + 4)
    tick(14)
    a(f"s_mov_b32 s{sQ}, s4")
    a(f"s_mov_b32 s{sQ+1}, s5")
    a(f"s_mov_b32 s{sQ+2}, 32768")
    a(f"s_mov_b32 s{sQ+3}, 0x20000")
    a(f"s_lshl_b32 s{sT+1}, s{sWl}, 6")
    a(f"v_xor_b32 v{vT+6}, s{sT+1}, v{vX16}")
    a(f"v_lshl_add_u32 v{vT+6}, v{vG}, 8, v{vT+6}")
    a(f"s_lshl_b32 s{sT+1}, s{sH}, 10")
    a(f"s_lshl_b32 s{sT+2}, s{sWl}, 13")
    a(f"s_add_u32 s{sT+1}, s{sT+1}, s{sT+2}")
    a(f"s_lshl_b32 s{sT+2}, s{sWl}, 10")
    a(f"s_add_u32 m0, s{sT+2}, {QL}")
    common_init()
    a(f"buffer_load_dwordx4 v{vT+6}, s[{sQ}:{sQ+3}], s{sT+1} offen lds", "four query rows -> LDS")
    a(f"v_lshrrev_b32 v{vLane}, 4, v{vL16}")
    a(f"s_lshl_b32 s{sWb}, s{sWl}, 12")
    a(f"s_addk_i32 s{sWb}, {KB}")
    a(f"s_lshr_b32 s{sT}, s{sWl}, 1")
    a(f"s_lshl_b32 s{sT}, s{sT}, 10")
    a(f"s_and_b32 s{sT+1}, s{sWl}, 1")
    a(f"s_lshl_b32 s{sT+1}, s{sT+1}, 3")
    a(f"s_add_u32 s{sT}, s{sT}, s{sT+1}")
    a(f"v_add_u32 v{vPa}, s{sT}, v{vL16}", "P of position 4b+w: tile 2b + (w>>1), half w&1")
    a(f"v_lshlrev_b32 v{vT+4}, 8, v{vN}")
    a(f"v_add_u32 v{vT+4}, s{sWb}, v{vT+4}")
    for j in range(4):
        if j == 0:
            a(f"v_add_u32 v{vKr}, v{vX16}, v{vT+4}")
        else:
            a(f"v_xor_b32 v{vKr+j}, {64*j}, v{vKr}")
    a(f"v_and_b32 v{vB4}, 12, v{vN}")
    a(f"v_mov_b32 v{vM}, {NEG}")
    a(f"v_mov_b32 v{vL}, 0")
    a(f"v_lshlrev_b32 v{vMx}, 4, v{vN}")
    a(f"s_lshl_b32 s{sT}, s{sWl}, 2")
    a(f"v_add_u32 v{vMw}, s{sT}, v{vMx}")
    a(f"s_mov_b32 s{sM0+1}, s{sM0}")
    a(f"v_mov_b32 v{vC}, 0x3e0293ee", "log2(e)/sqrt(128)")
    a(f"v_cndmask_b32 v{vC}, v{vC}, 0, s[{sM0}:{sM0+1}]")
    a(f"s_and_b32 s{sT}, s{sN}, 15")
    for b in range(1, 4):
        a(f"s_and_b32 s{sT+1}, s{sN+b}, 15")
        a(f"s_lshl_b32 s{sT+1}, s{sT+1}, {4*b}")
        a(f"s_or_b32 s{sT}, s{sT}, s{sT+1}")
    a(f"v_lshrrev_b32 v{vT+4}, v{vB4}, s{sT}")
    a(f"v_and_b32 v{vT+4}, 15, v{vT+4}")
    a(f"v_lshlrev_b32 v{vT+5}, 2, v{vG}")
    a(f"v_sub_u32 v{vT+4}, v{vT+4}, v{vT+5}")
    for r in range(4):
        a(f"v_cmp_lt_i32 s[{sRm+2*r}:{sRm+2*r+1}], {r}, v{vT+4}", "token 4g+r inside the partial last block" if r == 0 else None)
    a(f"v_and_b32 v{vOa}, 0x1f0, v{vL16}", "arrival granule of workgroup lane&31")
    a(f"s_add_u32 s{sKb}, s{sWl}, 1")
    list_read()
    get_list("L_cl")
    a(f"v_mbcnt_lo_u32_b32 v{vT+4}, s{sCm}, 0")
    a(f"s_lshr_b32 s{sBad}, vcc_lo, s{sWl}")
    a(f"v_and_b32 v{vT+4}, 3, v{vT+4}")
    a(f"v_cmp_eq_u32 vcc, s{sWl}, v{vT+4}")
    a(f"s_andn2_b32 s{sBad}, 0x11, s{sBad}", "bit0 / bit4: first / second static block is not referenced")
    a(f"s_and_b32 s{sU}, vcc_lo, s{sCm}")
    tick(3)
    a("s_waitcnt vmcnt(0)", "Q rows have landed")
    signal(CQ, vT + 4)
    a(f"s_add_u32 s{sEp}, s{sEp}, 1", "hand-off epoch of this launch")
    a(f"s_not_b32 s{sNEp}, s{sEp}")
    a(f"s_getreg_b32 s{sXcc}, hwreg(HW_REG_XCC_ID, 0, 4)")
    a(f"s_lshl_b32 s{sAr}, s{sH}, {5 + ARS}")
    a(f"s_add_u32 s{sAr}, s{sAr}, {WS_AR}")
    a(f"s_cmp_lg_u32 s{sW}, 4")
    a("s_cbranch_scc1 L_noarr")
    a.c("arrival mark of this workgroup")
    a(f"s_lshl_b32 s{sT}, s{sI}, {ARS}")
    a(f"v_mov_b32 v{vT}, s{sT}")
    a(f"v_mov_b32 v{vS+16}, s{sEp}")
    a(f"v_mov_b32 v{vS+17}, s{sNEp}")
    a(f"v_mov_b32 v{vS+18}, s{sXcc}")
    a("s_mov_b64 exec, 1")
    a(f"buffer_store_dwordx3 v[{vS+16}:{vS+18}], v{vT}, s[{sWS}:{sWS+3}], s{sAr} offen sc1")
    a("s_mov_b64 exec, -1")
    a.label("L_noarr")
    spin(CQ, vT + 4, "L_sq", "4")

    def finish(b):
        if b < 2:
            a(f"s_bitcmp1_b32 s{sBad}, {4*b}")
            a(f"s_cbranch_scc0 L_good{b}")
            for r in range(4):
                a(f"v_mov_b32 v{vS+4*b+r}, 0")
            a.label(f"L_good{b}")
        wb_, b = b, b & 3
        a(f"v_and_b32 v{vT+4}, 0xffff, v{vW+wb_}")
        a(f"v_lshrrev_b32 v{vT+5}, 16, v{vW+wb_}")
        a(f"v_add_u32 v{vT+5}, v{vT+5}, v{vT+4}")
        a(f"v_cvt_f32_u32 v{vT+4}, v{vT+4}")
        a(f"v_cvt_f32_u32 v{vT+5}, v{vT+5}")
        a(f"v_log_f32 v{vT+4}, v{vT+4}")
        a(f"v_log_f32 v{vT+5}, v{vT+5}")
        a("s_nop 0")
        for r in range(4):
            a(f"v_cndmask_b32 v{vT+6+r}, v{vT+4}, v{vT+5}, s[{sRm+2*r}:{sRm+2*r+1}]")
        for r in range(4):
            a(f"v_fma_f32 v{vS+4*b+r}, v{vS+4*b+r}, v{vC}, v{vT+6+r}")
        src = vM if b == 0 else vT
        a(f"v_max3_f32 v{vT}, v{src}, v{vS+4*b}, v{vS+4*b+1}")
        a(f"v_max3_f32 v{vT}, v{vT}, v{vS+4*b+2}, v{vS+4*b+3}")
    def qk(b):
        f = vKf + 16 * (b & 1)
        sb = vS + 4 * (b & 3)
        for j in range(4):
            a(f"ds_read_b128 v[{f+4*j}:{f+4*j+3}], v{vKr+j} offset:{(b & 3)*16384}")
        for j in range(4):
            c = "0" if j == 0 else f"v[{sb}:{sb+3}]"
            a(f"s_waitcnt lgkmcnt({3-j})")
            a(f"v_mfma_f32_16x16x32_bf16 v[{sb}:{sb+3}], v[{f+4*j}:{f+4*j+3}], v[{vQ+4*j}:{vQ+4*j+3}], {c}")
        if b < 2:
            a("s_nop 5")
        finish(b)
    def wread(k):
        a(f"v_add_u32 v{vW+k}, s{sLc}, v{vB4}")
        a(f"ds_read_b32 v{vW+k}, v{vW+k} offset:{INV}")

    a(f"s_lshl_b32 s{sLc}, s{sWl}, 4")
    a(f"v_add_u32 v{vW}, s{sLc}, v{vB4}")
    a(f"ds_read_b32 v{vW+1}, v{vW} offset:{INV + 64}")
    a(f"ds_read_b32 v{vW}, v{vW} offset:{INV}")
    a(f"s_sub_u32 s{sT}, s{sWb}, {QL}")
    for j in range(4):
        a(f"v_subrev_u32 v{vT+j}, s{sT}, v{vKr+j}")
        a(f"ds_read_b128 v[{vQ+4*j}:{vQ+4*j+3}], v{vT+j}")
    a.label("L_kround")
    for k in range(2, 8):
        pop_lc()
        wread(k)
    a.c("scores: scale, add log2(multiplicity) of the (block, sequence) pair (-inf when masked), running max")
    def decide():
        a.c("wave 4 decides how this workgroup hands its partial results over")
        a.c("mode word: bit0 = write-through stores, bits 8..15 first slice, bits 16..23 end slice")
        a(f"s_cmp_lg_u32 s{sW}, 4")
        a("s_cbranch_scc1 L_decided")
        a(f"s_lshl_b32 s{sMode}, s{sI}, 8")
        a(f"s_add_u32 s{sT}, s{sI}, 1")
        a(f"s_lshl_b32 s{sT}, s{sT}, 16")
        a(f"s_or_b32 s{sMode}, s{sMode}, s{sT}")
        a(f"s_mov_b32 s{sSpin}, 0")
        a.label("L_look")
        a("s_waitcnt vmcnt(0)")
        if FORCE == "abandon":
            a(f"s_bitcmp1_b32 s{sI}, 0")
            a(f"s_cselect_b32 s{sT}, 0, -1")
            a(f"v_and_b32 v{FO}, s{sT}, v{FO}")
            a(f"v_and_b32 v{FO+1}, s{sT}, v{FO+1}")
        if FORCE == "all":
            a(f"v_or_b32 v{FO+2}, 0x100, v{FO+2}")
        a(f"v_cmp_ne_u32 vcc, s{sEp}, v{FO}")
        a(f"v_cmp_ne_u32 s[{sCm}:{sCm+1}], s{sNEp}, v{FO+1}")
        a(f"v_cmp_ne_u32 s[{sCm+2}:{sCm+3}], s{sXcc}, v{FO+2}")
        a(f"v_cmp_le_u32 s[{sCm+4}:{sCm+5}], 64, v{FO+2}")
        a(f"s_or_b64 vcc, vcc, s[{sCm}:{sCm+1}]")
        a(f"s_or_b64 s[{sCm+2}:{sCm+3}], s[{sCm+2}:{sCm+3}], vcc")
        a("s_cbranch_scc1 L_notfast")
        a.label("L_modeset")
        a(f"v_mov_b32 v{vT+1}, s{sMode}")
        a(f"ds_write_b32 v{vZ}, v{vT+1} offset:{FLG}")
        a.label("L_decided")
    for hf in range(2):
        for b in range(4 * hf, 4 * hf + 4):
            a.label(f"L_kw{b}")
            if "spl" in opts:
                a(f"s_sleep {opts['spl']}")
            a(f"ds_read_b32 v{vT+1}, v{vKl}")
            a("s_waitcnt lgkmcnt(0)")
            a(f"v_cmp_gt_u32 vcc, s{sKb}, v{vT+1}")
            a(f"s_cbranch_vccnz L_kw{b}")
            a(f"s_add_u32 s{sKb}, s{sKb}, 4")
            qk(b)
            if b == CHKB:
                a(f"s_cmp_lg_u32 s{sW}, 4")
                a("s_cbranch_scc1 L_nochk")
                a("s_waitcnt vmcnt(0)")
                a(f"buffer_load_dwordx3 v[{FO}:{FO+2}], v{vOa}, s[{sWS}:{sWS+3}], s{sAr} offen sc1")
                a.label("L_nochk")
        if hf:
            tick(4)
        xreduce("v_max_f32", vT, vT + 1)
        a(f"ds_write_b32 v{vMw}, v{vT}")
        signal(C1, vT + 1)
        for j in range(4):
            a(f"v_xor_b32 v{vKr+j}, 0x10000, v{vKr+j}", "other half of the K positions" if j == 0 else None)
        if hf:
            tick(13)
            decide()
        spin(C1, vT + 1, f"L_s1{hf}", f"s{sExp}")
        a(f"ds_read_b128 v[{vT+4}:{vT+7}], v{vMx}")
        a("s_waitcnt lgkmcnt(0)")
        a(f"v_max3_f32 v{vT}, v{vT+4}, v{vT+5}, v{vT+6}")
        a(f"v_max_f32 v{vT}, v{vT}, v{vT+7}", "workgroup-wide running row maximum")
        a(f"v_sub_f32 v{vT+2}, v{vM}, v{vT}")
        a(f"v_exp_f32 v{vT+2}, v{vT+2}")
        a(f"v_mov_b32 v{vM}, v{vT}")
        for e in range(0, 16, 2):
            a(f"v_pk_add_f32 v[{vS+e}:{vS+e+1}], v[{vS+e}:{vS+e+1}], v[{vT}:{vT+1}] op_sel_hi:[1,0] neg_lo:[0,1] neg_hi:[0,1]")
        a(f"v_mul_f32 v{vL}, v{vL}, v{vT+2}")
        a(f"ds_write_b32 v{vKl}, v{vT+2} offset:{AL - KL + 256*hf}")
        for e in range(16):
            a(f"v_exp_f32 v{vS+e}, v{vS+e}")
        for e in range(8):
            a(f"v_cvt_pk_bf16_f32 v{vP+e}, v{vS+2*e}, v{vS+2*e+1}")
        for b in range(4):
            a(f"ds_write_b64 v{vPa}, v[{vP+2*b}:{vP+2*b+1}] offset:{PB + (4*hf + b)*2048}")
        for stp in (8, 4, 2):
            for e in range(0, stp, 2):
                a(f"v_pk_add_f32 v[{vS+e}:{vS+e+1}], v[{vS+e}:{vS+e+1}], v[{vS+e+stp}:{vS+e+stp+1}]")
        a(f"v_add_f32 v{vS}, v{vS}, v{vS+1}")
        a(f"v_add_f32 v{vL}, v{vL}, v{vS}")
        if hf:
            a(f"v_mov_b32 v{vT}, v{vL}")
            xreduce("v_add_f32", vT, vT + 1)
            a(f"ds_write_b32 v{vMw}, v{vT} offset:{LS - MX}")
        signal(C2, vT + 1)
        if str(hf) in opts.get("rw", "n"):
            a.c("keep the not yet executed text in L2: each compute wave of the XCD touches two of its lines")
            a(f"s_getpc_b64 s[{sCm+6}:{sCm+7}]")
            a.label(f"L_pc{hf}")
            a(f"s_lshl_b32 s{sCm}, s{sI}, 2")
            a(f"s_add_u32 s{sCm}, s{sCm}, s{sWl}")
            a(f"s_lshl_b32 s{sCm}, s{sCm}, 7")
            a(f"s_sub_u32 s{sCm+6}, s{sCm+6}, (L_pc{hf} - L_smain)")
            a(f"s_subb_u32 s{sCm+7}, s{sCm+7}, 0")
            a(f"v_lshl_add_u32 v{vT+2}, v{vLane}, 14, s{sCm}")
            a(f"v_min_u32 v{vT+2}, (L_codeend - L_smain - 4), v{vT+2}")
            a("s_mov_b64 exec, 3")
            a(f"global_load_dword v{FA+6}, v{vT+2}, s[{sCm+6}:{sCm+7}] sc1")
            a("s_mov_b64 exec, -1")
        spin(C2, vT + 1, f"L_s2{hf}", f"s{sExp}")
        a(f"s_add_u32 s{sExp}, s{sExp}, 4")
        tick(5 if hf else 6)
    a(f"s_cmp_gt_u32 s{sMore}, 24")
    a("s_cbranch_scc1 L_kmore")

    a.c("(max, sum) granules: [head][row group w][workgroup][4 rows]")
    a(f"s_lshl_b32 s{sMl}, s{sH}, 2")
    a(f"s_add_u32 s{sMl}, s{sMl}, s{sWl}")
    a(f"s_lshl_b32 s{sMl}, s{sMl}, 11")
    a(f"s_add_u32 s{sMl}, s{sMl}, {WS_ML}")
    a(f"s_lshl_b32 s{sT}, s{sI}, 6")
    a(f"s_add_u32 s{sT}, s{sT}, s{sMl}")
    a(f"v_and_b32 v{vT+4}, 0x30, v{vL16}")
    a(f"v_add_u32 v{vT+4}, s{sT}, v{vT+4}")
    a(f"v_mov_b32 v{vS}, v{vM}")
    a(f"v_mov_b32 v{vS+2}, s{sEp}")
    a(f"v_mov_b32 v{vS+3}, s{sNEp}")
    a(f"ds_read_b32 v{vT}, v{vZ} offset:{FLG}")
    a(f"ds_read_b128 v[{vS+4}:{vS+7}], v{vMx} offset:{LS - MX}")
    a("s_waitcnt lgkmcnt(0)")
    a(f"v_readfirstlane_b32 s{sMode}, v{vT}")
    a(f"v_add_f32 v{vS+4}, v{vS+4}, v{vS+5}")
    a(f"v_add_f32 v{vS+6}, v{vS+6}, v{vS+7}")
    a(f"v_add_f32 v{vS+1}, v{vS+4}, v{vS+6}")
    a(f"s_lshl_b32 s{sT}, s{sWl}, 2")
    a(f"s_lshl_b64 exec, 15, s{sT}", "each compute wave publishes four rows")
    a(f"s_bitcmp1_b32 s{sMode}, 0")
    a("s_cbranch_scc1 L_mlslow")
    a(f"buffer_store_dwordx4 v[{vS}:{vS+3}], v{vT+4}, s[{sWS}:{sWS+3}], 0 offen")
    a.label("L_mldone")
    a("s_mov_b64 exec, -1")
    a(f"v_lshrrev_b32 v{vT}, 2, v{vLane}")
    a(f"v_and_b32 v{vT+1}, 3, v{vLane}")
    a(f"v_add_u32 v{vT+2}, s{sT}, v{vT+1}", "unit u = 4*w + (lane&3)")
    a(f"v_lshlrev_b32 v{vOa}, 8, v{vT}")
    a(f"v_lshl_add_u32 v{vOa}, v{vT+2}, 4, v{vOa}", "c*256 + u*16")
    make_tag(vTagC, vT + 2, vT + 3)
    a(f"s_mov_b32 s{sT3}, s{sT}")
    a(f"s_movk_i32 s{sT0}, 0xff00")
    a(f"s_lshl_b32 s{sT}, s{sWl}, 13")
    a(f"s_lshl_b32 s{sT+1}, s{sH}, 10")
    a(f"s_add_u32 s{sT}, s{sT}, s{sT+1}")
    a(f"v_lshl_add_u32 v{vOut}, v{vT+1}, 8, s{sT}", "output row of unit u")
    a(f"v_and_b32 v{vT}, 1, v{vG}")
    a(f"v_lshl_add_u32 v{vOut}, v{vT}, 5, v{vOut}")
    a(f"v_lshrrev_b32 v{vT}, 1, v{vG}")
    a(f"v_lshl_add_u32 v{vOut}, v{vT}, 4, v{vOut}")
    a(f"v_and_b32 v{vT}, 12, v{vN}")
    a(f"v_lshl_add_u32 v{vOut}, v{vT}, 16, v{vOut}", "lanes holding duplicates fall outside the buffer")
    a(f"s_mov_b32 s{sQ}, s14", "output descriptor (same size as q)")
    a(f"s_mov_b32 s{sQ+1}, s15")
    a(f"s_mov_b32 s{sSpin}, 0")
    a(f"s_bfe_u32 s{sLo}, s{sMode}, 0x80008")
    a(f"s_lshr_b32 s{sHi}, s{sMode}, 16")
    a(f"s_cmp_ge_u32 s{sLo}, s{sHi}")
    a("s_cbranch_scc1 L_fin")
    if opts.get("rf", "1") == "1":
        a.c("the final instructions run once, on every CU at the same time: pull them back into L2")
        a(f"s_getpc_b64 s[{sCm+6}:{sCm+7}]")
        a.label("L_pcf")
        a(f"s_lshl_b32 s{sT}, s{sWl}, 7")
        a(f"s_add_u32 s{sT}, s{sT}, (L_opoll - L_pcf)")
        a(f"v_mov_b32 v{vT}, s{sT}")
        a("s_mov_b64 exec, 1")
        a(f"global_load_dword v{FA+6}, v{vT}, s[{sCm+6}:{sCm+7}] sc1")
        RD = int(opts.get("rd", "0"))
        if RD:
            a(f"s_cmp_lg_u32 s{sWl}, 1")
            a("s_cbranch_scc1 L_nord")
            a(f"s_sub_u32 s{sCm+6}, s{sCm+6}, (L_pcf - L_cmain + {RD*128})")
            a(f"s_subb_u32 s{sCm+7}, s{sCm+7}, 0")
            a(f"s_min_u32 s{sT}, s{sI}, {RD - 1}")
            a(f"s_lshl_b32 s{sT}, s{sT}, 7")
            a(f"v_mov_b32 v{vT}, s{sT}")
            a(f"global_load_dword v{FA+6}, v{vT}, s[{sCm+6}:{sCm+7}] sc1", "and the last lines of the streamer's text")
            a.label("L_nord")
        a("s_mov_b64 exec, -1")
    DRY = opts.get("dry", "0") == "1"
    if DRY:
        a.c("run the final reduction once with an empty output descriptor: it is on every CU's critical path later")
        a(f"s_mov_b32 s{sQ+2}, 0")
        a(f"s_mov_b32 s{sOut}, 0")
        a(f"s_or_b32 s{sHi}, s{sHi}, 0x100")
        a("s_branch L_fz")
        a.label("L_dryback")
        a(f"s_mov_b32 s{sQ+2}, 32768")
        a(f"s_and_b32 s{sHi}, s{sHi}, 0xff")
        a(f"s_sub_u32 s{sLo}, s{sLo}, 1")
    a.label("L_slice")
    a(f"s_lshl_b32 s{sT}, s{sH}, 5")
    a(f"s_add_u32 s{sT}, s{sT}, s{sLo}")
    a(f"s_lshl_b32 s{sO0}, s{sT}, 13")
    a(f"s_add_u32 s{sO1}, s{sO0}, 4096")
    a(f"s_lshr_b32 s{sOut}, s{sLo}, 3")
    a(f"s_lshl_b32 s{sOut}, s{sOut}, 6")
    a(f"s_and_b32 s{sT}, s{sLo}, 7")
    a(f"s_lshl_b32 s{sT}, s{sT}, 1")
    a(f"s_add_u32 s{sOut}, s{sOut}, s{sT}", "slice 8g+j: d = 32g + 8r + j")
    a(f"s_mov_b64 s[{sM0}:{sM0+1}], -1")
    a(f"s_mov_b64 s[{sM1}:{sM1+1}], -1")
    DUAL = opts.get("dual", "0") == "1"
    FB, sB0, sB1 = 172, 64, 66
    def o_issue(F, m0, m1, keep):
        if keep:
            a(f"s_or_b32 s{m0}, s{m0}, 1")
        a(f"s_wqm_b64 exec, s[{m0}:{m0+1}]")
        a(f"buffer_load_dwordx4 v[{F}:{F+3}], v{vOa}, s[{sWS}:{sWS+3}], s{sO0} offen sc1")
        if keep:
            a(f"s_or_b32 s{m1}, s{m1}, 1")
        a(f"s_wqm_b64 exec, s[{m1}:{m1+1}]")
        a(f"buffer_load_dwordx4 v[{F+4}:{F+7}], v{vOa}, s[{sWS}:{sWS+3}], s{sO1} offen sc1")
        a("s_mov_b64 exec, -1")
    def o_check(F, m0, m1):
        a(f"v_perm_b32 v{vT+2}, v{F+3}, v{F}, s{sT3}")
        a(f"v_perm_b32 v{vT+3}, v{F+7}, v{F+4}, s{sT3}")
        a(f"v_cmp_ne_u32 s[{m0}:{m0+1}], v{vT+2}, v{vTagC}")
        a(f"v_cmp_ne_u32 s[{m1}:{m1+1}], v{vT+3}, v{vTagC}")
    def o_test(F, m0, m1):
        o_check(F, m0, m1)
        a(f"v_and_b32 v{FA}, s{sT0}, v{F}", "drop the tag bytes")
        a(f"v_and_b32 v{FA+3}, s{sT0}, v{F+3}")
        a(f"s_or_b64 vcc, s[{m0}:{m0+1}], s[{m1}:{m1+1}]")
    def o_mul(F):
        a(f"v_and_b32 v{F+4}, s{sT0}, v{F+4}")
        a(f"v_and_b32 v{F+7}, s{sT0}, v{F+7}")
        a(f"v_mul_f32 v{FA}, v{FA}, v{FM}")
        a(f"v_mul_f32 v{FA+1}, v{F+1}, v{FM}")
        a(f"v_mul_f32 v{FA+2}, v{F+2}, v{FM}")
        a(f"v_mul_f32 v{FA+3}, v{FA+3}, v{FM}")
        a(f"v_pk_fma_f32 v[{FA}:{FA+1}], v[{F+4}:{F+5}], v[{FM+4}:{FM+5}], v[{FA}:{FA+1}] op_sel_hi:[1,0,1]")
        a(f"v_pk_fma_f32 v[{FA+2}:{FA+3}], v[{F+6}:{F+7}], v[{FM+4}:{FM+5}], v[{FA+2}:{FA+3}] op_sel_hi:[1,0,1]")
    def bound():
        a(f"s_add_u32 s{sSpin}, s{sSpin}, 1")
        a(f"s_cmp_ge_u32 s{sSpin}, 0x400000")
        a("s_cbranch_scc1 L_fin")
    a(f"s_lshr_b32 s{sT+3}, s{sExp}, 3")
    a.c("wait until the streamer has issued its last load")
    spin(C4, vT + 1, "L_s4a", f"s{sT+3}")
    a.c("poll the (max, sum) granules and the 64-byte pieces that do not carry this launch's tag yet")
    WFIRST = opts.get("wfirst", "0") == "1"
    OF = opts.get("of", "0") == "1"
    PT = opts.get("pt", "0")
    if PT != "0":
        a.c("touch lines of the hand-off area once, one request per line (values unused)")
        if PT == "p":
            a(f"s_lshl_b32 s{sT}, s{sH}, 18")
            a(f"s_lshl_b32 s{sT+1}, s{sI}, 8")
            a(f"s_add_u32 s{sT}, s{sT}, s{sT+1}")
            a(f"s_lshl_b32 s{sT+1}, s{sWl}, 16")
            a(f"s_add_u32 s{sT}, s{sT}, s{sT+1}")
            a(f"v_lshrrev_b32 v{vT}, 1, v{vN}")
            a(f"v_and_b32 v{vT+1}, 1, v{vN}")
            a(f"v_lshlrev_b32 v{vT}, 13, v{vT}")
            a(f"v_lshl_add_u32 v{vT}, v{vT+1}, 7, v{vT}")
        else:
            a(f"s_lshl_b32 s{sT}, s{sWl}, 11")
            a(f"s_add_u32 s{sT}, s{sT}, s{sO0}")
            a(f"v_lshlrev_b32 v{vT}, 7, v{vN}")
        a("s_mov_b64 exec, 0xffff")
        a(f"buffer_load_dword v{FA+5}, v{vT}, s[{sWS}:{sWS+3}], s{sT} offen sc1")
        a("s_mov_b64 exec, -1")
    a.label("L_mlpoll")
    if OF:
        o_issue(FO, sM0, sM1, False)
    a(f"buffer_load_dwordx4 v[{FM}:{FM+3}], v{vL16}, s[{sWS}:{sWS+3}], s{sMl} offen sc1")
    a(f"buffer_load_dwordx4 v[{FM+4}:{FM+7}], v{vL16}, s[{sWS}:{sWS+3}], s{sMl} offen offset:1024 sc1")
    if not OF:
        o_issue(FO, sM0, sM1, True)
    bound()
    a(f"s_waitcnt vmcnt({0 if OF else 2})")
    a(f"v_cmp_ne_u32 vcc, s{sEp}, v{FM+2}")
    a(f"v_cmp_ne_u32 s[{sCm}:{sCm+1}], s{sNEp}, v{FM+3}")
    a(f"v_cmp_ne_u32 s[{sCm+2}:{sCm+3}], s{sEp}, v{FM+6}")
    a(f"v_cmp_ne_u32 s[{sCm+4}:{sCm+5}], s{sNEp}, v{FM+7}")
    a(f"v_max_f32 v{vT}, v{FM}, v{FM+4}")
    a(f"s_or_b64 vcc, vcc, s[{sCm}:{sCm+1}]")
    a(f"s_or_b64 vcc, vcc, s[{sCm+2}:{sCm+3}]")
    a(f"s_or_b64 vcc, vcc, s[{sCm+4}:{sCm+5}]")
    def second_set():
        for r in range(8):
            a(f"v_mov_b32 v{FB+r}, v{FO+r}")
        a(f"s_mov_b64 s[{sB0}:{sB0+1}], s[{sM0}:{sM0+1}]")
        a(f"s_mov_b64 s[{sB1}:{sB1+1}], s[{sM1}:{sM1+1}]")
        o_issue(FO, sM0, sM1, True)
    if OF:
        o_check(FO, sM0, sM1)
        a("s_cbranch_scc1 L_mlpoll")
        o_issue(FO, sM0, sM1, False)
    elif DUAL and not WFIRST:
        a("s_waitcnt vmcnt(0)")
        o_check(FO, sM0, sM1)
        a("s_cbranch_scc1 L_mlpoll")
        second_set()
    else:
        a("s_cbranch_scc0 L_w")
        a("s_waitcnt vmcnt(0)")
        o_check(FO, sM0, sM1)
        a("s_branch L_mlpoll")
        a.label("L_w")
    a(f"v_max_f32_dpp v{vT}, v{vT}, v{vT} row_ror:4 {DPP}")
    a("s_nop 1")
    a(f"v_max_f32_dpp v{vT}, v{vT}, v{vT} row_ror:8 {DPP}")
    xreduce("v_max_f32", vT, vT + 1)
    a(f"v_sub_f32 v{FM}, v{FM}, v{vT}")
    a(f"v_sub_f32 v{FM+4}, v{FM+4}, v{vT}")
    a(f"v_exp_f32 v{FM}, v{FM}")
    a(f"v_exp_f32 v{FM+4}, v{FM+4}")
    a(f"v_mul_f32 v{vT}, v{FM}, v{FM+1}")
    a(f"v_fmac_f32 v{vT}, v{FM+4}, v{FM+5}")
    a("s_nop 1")
    a(f"v_add_f32_dpp v{vT}, v{vT}, v{vT} row_ror:4 {DPP}")
    a("s_nop 1")
    a(f"v_add_f32_dpp v{vT}, v{vT}, v{vT} row_ror:8 {DPP}")
    xreduce("v_add_f32", vT, vT + 1)
    a(f"v_rcp_f32 v{vT}, v{vT}")
    a("s_nop 0")
    a(f"v_mul_f32 v{FM}, v{FM}, v{vT}")
    a(f"v_mul_f32 v{FM+4}, v{FM+4}, v{vT}", "normalised weights of contributors c and 16+c")
    tick(9)
    if DUAL:
        if WFIRST:
            a("s_waitcnt vmcnt(0)")
            o_check(FO, sM0, sM1)
            second_set()
        a.c("two register sets are polled alternately so that one round is always in flight")
        a.label("L_opoll")
        o_issue(FB, sB0, sB1, True)
        a("s_waitcnt vmcnt(2)")
        o_test(FO, sM0, sM1)
        a("s_cbranch_scc0 L_oka")
        o_issue(FO, sM0, sM1, True)
        bound()
        a("s_waitcnt vmcnt(2)")
        o_test(FB, sB0, sB1)
        a("s_cbranch_scc1 L_opoll")
        o_mul(FB)
        a("s_branch L_red")
        a.label("L_oka")
        o_mul(FO)
        a.label("L_red")
    else:
        a("s_branch L_owait")
        a.label("L_opoll")
        o_issue(FO, sM0, sM1, False)
        bound()
        a.label("L_owait")
        a("s_waitcnt vmcnt(0)")
        o_test(FO, sM0, sM1)
        a("s_cbranch_scc1 L_opoll")
        a.label("L_fz")
        o_mul(FO)
    a(f"s_add_u32 s{sLo}, s{sLo}, 1")
    a(f"v_permlane32_swap_b32 v{FA}, v{FA+1}")
    a(f"v_permlane32_swap_b32 v{FA+2}, v{FA+3}")
    a(f"v_add_f32 v{FA}, v{FA}, v{FA+1}")
    a(f"v_add_f32 v{FA+2}, v{FA+2}, v{FA+3}")
    a("s_nop 1")
    a(f"v_permlane16_swap_b32 v{FA}, v{FA+2}")
    a(f"s_cmp_lt_u32 s{sHi}, 32")
    a(f"v_add_f32 v{FA}, v{FA}, v{FA+2}")
    a("s_nop 1")
    a(f"v_add_f32_dpp v{FA}, v{FA}, v{FA} row_ror:4 {DPP}")
    a("s_nop 1")
    a(f"v_add_f32_dpp v{FA}, v{FA}, v{FA} row_ror:8 {DPP}")
    a(f"v_cvt_pk_bf16_f32 v{FA}, v{FA}, v{FA}")
    a(f"buffer_store_short v{FA}, v{vOut}, s[{sQ}:{sQ+3}], s{sOut} offen {OPOL}")
    if STAMP:
        a("s_mov_b64 exec, -1")
        tick(10)
        a("s_cbranch_scc1 L_fin")
    else:
        a("s_cbranch_scc0 L_next")
        a("s_endpgm")
        a.label("L_next")
    if DRY:
        a(f"s_bitcmp1_b32 s{sHi}, 8")
        a("s_cbranch_scc1 L_dryback")
    a(f"s_cmp_lt_u32 s{sLo}, s{sHi}")
    a("s_cbranch_scc1 L_slice")
    a.c("every workgroup of this head has read the epoch word: advance it for the next launch")
    a(f"s_lshl_b32 s{sT}, s{sH}, 7")
    a(f"s_add_u32 s{sT}, s{sT}, {WS_EP}")
    a(f"v_mov_b32 v{vT}, s{sT}")
    a(f"v_mov_b32 v{vT+1}, s{sEp}")
    a("s_mov_b64 exec, 1")
    a(f"buffer_store_dword v{vT+1}, v{vT}, s[{sWS}:{sWS+3}], 0 offen {OPOL}")
    a.label("L_fin")
    if STAMP:
        a("s_mov_b64 exec, -1")
        a("s_waitcnt vmcnt(0)")
        tick(11)
        a("s_mov_b64 exec, 0xffff")
        a(f"s_lshl_b32 s{sSt}, s2, 3")
        a(f"s_add_u32 s{sSt}, s{sSt}, s{sW}")
        a(f"s_lshl_b32 s{sSt}, s{sSt}, 7")
        a(f"s_add_u32 s{sSt}, s{sSt}, {16<<20}")
        a(f"v_mbcnt_lo_u32_b32 v{vX+2}, -1, 0")
        a(f"v_lshlrev_b32 v{vX+2}, 3, v{vX+2}")
        a(f"v_add_u32 v{vX+2}, s{sSt}, v{vX+2}")
        a(f"v_cmp_ne_u32 vcc, 0, v{vX}")
        a("s_and_b64 exec, exec, vcc")
        a(f"buffer_store_dwordx2 v[{vX}:{vX+1}], v{vX+2}, s[{sWS}:{sWS+3}], 0 offen")
    a.label("L_end")
    a("s_endpgm")

    a.label("L_mlslow")
    a(f"buffer_store_dwordx4 v[{vS}:{vS+3}], v{vT+4}, s[{sWS}:{sWS+3}], 0 offen sc1")
    a("s_branch L_mldone")
    a.label("L_slowo")
    tail("sc1")
    a("s_branch L_fin")
    a.label("L_notfast")
    a("s_cbranch_vccnz L_missing")
    a(f"s_or_b32 s{sMode}, s{sMode}, 1", "peers on another XCD: write-through hand-off")
    a(f"s_cmp_eq_u64 s[{sCm+4}:{sCm+5}], 0")
    a("s_cbranch_scc1 L_modeset")
    a(f"s_mov_b32 s{sMode}, 0x200001", "somebody left: finalise every slice")
    a("s_branch L_modeset")
    a.label("L_missing")
    a(f"s_add_u32 s{sSpin}, s{sSpin}, 1")
    a(f"s_cmp_ge_u32 s{sSpin}, 64")
    a("s_cbranch_scc1 L_leave")
    a(f"buffer_load_dwordx3 v[{FO}:{FO+2}], v{vOa}, s[{sWS}:{sWS+3}], s{sAr} offen sc1")
    a("s_branch L_look")
    a.label("L_leave")
    a.c("a workgroup of this head has not started yet: leave a mark, look again, then go or stay")
    a(f"s_lshl_b32 s{sT}, s{sI}, {ARS}")
    a(f"v_mov_b32 v{vT+1}, s{sT}")
    a(f"v_mov_b32 v{vT+4}, s{sEp}")
    a(f"v_mov_b32 v{vT+5}, s{sNEp}")
    a(f"v_mov_b32 v{vT+6}, 0x100")
    a("s_mov_b64 exec, 1")
    a(f"buffer_store_dwordx3 v[{vT+4}:{vT+6}], v{vT+1}, s[{sWS}:{sWS+3}], s{sAr} offen sc1")
    a("s_mov_b64 exec, -1")
    a("s_waitcnt vmcnt(0)")
    a(f"buffer_load_dwordx3 v[{FO}:{FO+2}], v{vOa}, s[{sWS}:{sWS+3}], s{sAr} offen sc1")
    a("s_waitcnt vmcnt(0)")
    a(f"v_cmp_ne_u32 vcc, s{sEp}, v{FO}")
    a(f"v_cmp_ne_u32 s[{sCm}:{sCm+1}], s{sNEp}, v{FO+1}")
    a("s_nop 0")
    a(f"s_or_b64 vcc, vcc, s[{sCm}:{sCm+1}]")
    a(f"s_cselect_b32 s{sMode}, 1, 0x200001")
    a("s_branch L_modeset")
    for pr in range(2 * EV):
        a.label(f"L_vbad{pr}")
        for r in range(8):
            a(f"v_mov_b32 v{vV+8*pr+r}, 0")
        a(f"s_branch L_vgood{pr}")
    for hf in range(2):
        a.label(f"L_pagain{hf}")
        p_read(hf)
        a("s_waitcnt lgkmcnt(0)")
        a(f"v_cmp_gt_u32 vcc, s{sExp}, v{vT+2}")
        a(f"s_cbranch_vccnz L_pagain{hf}")
        a(f"s_branch L_pok{hf}")
    a.label("L_kmore")
    a("s_waitcnt lgkmcnt(0)")
    a("s_barrier", "second round (more than 32 referenced blocks): the streamers are done with this round's P")
    a(f"s_mov_b32 s{sMore}, 0")
    a(f"s_mov_b32 s{sBad}, 0")
    for k in range(2):
        pop_lc()
        wread(k)
    a("s_branch L_kround")
    a.label("L_vmore")
    a("s_waitcnt vmcnt(0) lgkmcnt(0)")
    for idx in range(8):
        perm1(63, idx)
    for j in range(8):
        mfma1(15, j)
    a("s_barrier")
    a(f"s_mov_b32 s{sMore}, 0")
    a(f"s_mov_b32 s{sRnd}, 1")
    a(f"s_mov_b32 s{sVal}, s{sVal+1}")
    a(f"s_mov_b32 s{sBad}, s{sVal+1}")
    a(f"v_mov_b32 v{vT+4}, v{vList}")
    a("s_nop 1")
    a(f"v_permlane32_swap_b32 v{vT+4}, v{vList}", "positions 32..63 -> lanes 0..31")
    a("s_nop 1")
    for k in range(NB0):
        a(f"v_readlane_b32 s{sP}, v{vList}, {k}")
        a(f"s_bitcmp1_b32 s{sVal}, {k}")
        a(f"s_cselect_b32 s{sK+2}, s{sKVB}, 0")
        a(f"s_mov_b32 m0, {KB + k*4096}")
        a("s_nop 1")
        for q in range(4):
            k_load(0, q)
    a(f"v_readlane_b32 s{sP + (NB0 & 3)}, v{vList}, {NB0}")
    a("s_branch L_vround")
    if CW:
        a.lines.append(".if (. - L_pc) < (17408 + 104)")
        a.lines.append(".fill ((17408 + 104 - (. - L_pc)) / 4), 4, 0xbf810000")
        a.lines.append(".endif")
        a.label("L_codeend")

    if opts.get("order", "sc") == "cs":
        L = a.lines
        i_s = L.index("L_smain:"); i_c = L.index("L_cmain:"); i_r = L.index("L_mlslow:")
        a.lines = L[:i_s] + L[i_c:i_r] + L[i_s:i_c] + L[i_r:]
    head = HEADER + f"""; @launch grid=(256,1,1) block=(512,1,1) lds={LDS_BYTES}
.amdgcn_target "amdgcn-amd-amdhsa--gfx950"
.text
.globl {NAME}_kernel
.p2align 8
.type {NAME}_kernel,@function
"""
    tail = f""".section .rodata,"a"
.p2align 6
.amdhsa_kernel {NAME}_kernel
  .amdhsa_next_free_vgpr {NVGPR}
  .amdhsa_next_free_sgpr 102
  .amdhsa_accum_offset {NVGPR}
  .amdhsa_group_segment_fixed_size 0
  .amdhsa_kernarg_size 64
  .amdhsa_user_sgpr_count 2
  .amdhsa_user_sgpr_kernarg_segment_ptr 1
  .amdhsa_system_sgpr_workgroup_id_x 1
.end_amdhsa_kernel
"""
    return head + a.text() + tail

if __name__ == "__main__":
    opts = dict(kv.split("=", 1) for kv in sys.argv[2:])
    open(sys.argv[1], "w").write(gen(opts))
```
